```python
import torch

def _softmax(x, axis=-1):
    return torch.softmax(x, dim=axis)

def _gelu(x):
    return torch.nn.functional.gelu(x, approximate='tanh')

def _silu(x):
    return torch.nn.functional.silu(x)

def _sigmoid(x):
    return torch.sigmoid(x)

def _layernorm(x, axis=-1, eps=1e-05):
    m = x.mean(dim=axis, keepdim=True)
    v = x.var(dim=axis, keepdim=True, unbiased=False)
    return (x - m) / torch.sqrt(v + eps)

def _scatter_add(tgt, idx, src, axis=0):
    return tgt.clone().index_add_(axis, idx, src)

def _segment_sum(src, seg, n):
    out = torch.zeros((n,) + src.shape[1:], dtype=src.dtype)
    return out.index_add_(0, seg, src)

def _pad(x, pw):
    flat = tuple((v for pair in reversed(pw) for v in pair))
    return torch.nn.functional.pad(x, flat)
kernel_name = 'adaLN_cond__sliding_block_cached__dense_activation_silu__prompt'

def setup_inputs():

    _w = lambda a: (lambda t: t.to(torch.bfloat16) if t.is_floating_point() else t)(torch.as_tensor(a))

    def _A_setup():
        B, Sq, D = (1, 2048, 512)
        Hq, Hkv, Sk, Dh = (32, 8, 2048, 128)
        assert Hq % Hkv == 0, (Hq, Hkv)
        return {'x': _w((lambda *s: torch.randn(*s, dtype=torch.bfloat16) * 0.05)(B, Sq, D)), 'k_cache': _w((lambda *s: torch.randn(*s, dtype=torch.bfloat16) * 1.6)(B, Hkv, Sk, Dh)), 'v_cache': _w((lambda *s: torch.randn(*s, dtype=torch.bfloat16) * 0.8)(B, Hkv, Sk, Dh)), 'wq': _w((lambda *s: torch.randn(*s, dtype=torch.bfloat16) * 1.6)(D, Hq * Dh) * D ** (-0.5)), 'wo': _w((lambda *s: torch.randn(*s, dtype=torch.bfloat16) * 0.8)(Hq * Dh, D) * (Hq * Dh) ** (-0.5))}
    _A_in = _A_setup()

    def _B_setup():
        B, S, D, F = (1, 2048, 512, 1792)
        return {'x': _w((lambda *s: torch.randn(*s, dtype=torch.bfloat16) * 0.05)(B, S, D)), 'w1': _w((lambda *s: torch.randn(*s, dtype=torch.bfloat16) * 1.6)(D, F) * D ** (-0.5)), 'w2': _w((lambda *s: torch.randn(*s, dtype=torch.bfloat16) * 0.2)(F, D) * F ** (-0.5))}
    _B_in = _B_setup()
    return {'A_x': _A_in['x'], 'A_k_cache': _A_in['k_cache'], 'A_v_cache': _A_in['v_cache'], 'A_wq': _A_in['wq'], 'A_wo': _A_in['wo'], 'B_x': _B_in['x'], 'B_w1': _B_in['w1'], 'B_w2': _B_in['w2'], 'c': _w((lambda *s: torch.randn(*s, dtype=torch.bfloat16) * 0.1)(1, 512) * 8.0), 'w_mod': _w((lambda *s: torch.randn(*s, dtype=torch.bfloat16) * 0.1)(512, 6 * 512) * 512 ** (-0.5) * 8.0)}

def reference(A_x, A_k_cache, A_v_cache, A_wq, A_wo, B_x, B_w1, B_w2, c, w_mod):

    def _A_ref(x, k_cache, v_cache, wq, wo):
        B, Sq, D = x.shape
        Hq, Dh = (32, 128)
        Hkv, Sk = (k_cache.shape[1], k_cache.shape[2])
        W = min(4096, max(256, Sk // 4))
        rep = Hq // Hkv
        q = (lambda x, *d: x.permute(*d))((x @ wq).reshape(B, Sq, Hq, Dh), 0, 2, 1, 3)
        k = (lambda x, n, axis: torch.repeat_interleave(x, n, dim=axis))(k_cache[:, :, Sk - W:, :], rep, axis=1)
        v = (lambda x, n, axis: torch.repeat_interleave(x, n, dim=axis))(v_cache[:, :, Sk - W:, :], rep, axis=1)
        scores = torch.einsum('bhqd,bhkd->bhqk', q, k) * Dh ** (-0.5)
        p = _softmax(scores, axis=-1)
        o = torch.einsum('bhqk,bhkd->bhqd', p, v)
        return (lambda x, *d: x.permute(*d))(o, 0, 2, 1, 3).reshape(B, Sq, Hq * Dh) @ wo

    def _B_ref(x, w1, w2):
        h = torch.einsum('bsd,df->bsf', x, w1)
        h = _silu(h)
        out = torch.einsum('bsf,fd->bsd', h, w2)
        return out
    x = A_x
    mod = (_silu(c) @ w_mod).reshape(c.shape[0], 6, 1, -1)
    sa, ca, ga, sb, cb, gb = (mod[:, 0].clone(), mod[:, 1].clone(), mod[:, 2].clone(), mod[:, 3].clone(), mod[:, 4].clone(), mod[:, 5].clone())
    h = _layernorm(x, axis=-1) * (1 + ca) + sa
    x = x + ga * _A_ref(h, A_k_cache, A_v_cache, A_wq, A_wo)
    h = _layernorm(x, axis=-1) * (1 + cb) + sb
    x = x + gb * _B_ref(h, B_w1, B_w2)
    return x
```

```python
import re

REG = re.compile(r'(?<![\w.])([vas])(?:(\d+)(?![\w\[])|\[(\d+):(\d+)\])')

def regs_of(tok):
    out = []
    t = tok.strip()
    if t in ('vcc', 'vcc_lo', 'vcc_hi'): return [('x', 'vcc')]
    if t in ('exec', 'exec_lo', 'exec_hi'): return [('x', 'exec')]
    if t == 'm0': return [('x', 'm0')]
    for m in REG.finditer(t):
        k = m.group(1)
        if m.group(2) is not None: out.append((k, int(m.group(2))))
        else: out += [(k, i) for i in range(int(m.group(3)), int(m.group(4)) + 1)]
    return out

def split_ops(rest):
    ops, depth, cur = [], 0, ''
    for ch in rest:
        if ch == '[': depth += 1
        if ch == ']': depth -= 1
        if ch == ',' and depth == 0:
            ops.append(cur.strip()); cur = ''
        else: cur += ch
    if cur.strip(): ops.append(cur.strip())
    return ops

TRANS = ('v_exp_f32', 'v_log_f32', 'v_rcp_f32', 'v_rsq_f32', 'v_sqrt_f32')

class Ins:
    def __init__(self, text, tag=None):
        self.text = text; self.tag = tag
        p = text.split(None, 1)
        self.op = op = p[0]
        ops = split_ops(p[1]) if len(p) > 1 else []
        if ops:
            last = ops[-1].split()
            mods = ' '.join(last[1:]); ops[-1] = last[0]
        else: mods = ''
        self.ops = ops; self.mods = mods
        R = [regs_of(o) for o in ops]
        flat = lambda L: [r for x in L for r in x]
        self.kind = 'salu'; self.w = []; self.r = []; self.srcC = []; self.passes = 0; self.data = []
        if op.startswith('v_mfma'):
            self.kind = 'mfma'; self.w = R[0]; self.r = flat(R[1:]); self.srcC = R[3]; self.ab = R[1] + R[2]
            self.passes = 8 if '32x32x16' in op else 4
        elif op.startswith('ds_read'):
            self.kind = 'lds'; self.w = R[0]; self.r = flat(R[1:])
        elif op.startswith('ds_write'):
            self.kind = 'lds'; self.r = flat(R)
        elif op.startswith('buffer_load'):
            self.kind = 'vmem'
            if ' lds' in (' ' + mods): self.r = flat(R) + [('x', 'm0')]; self.dma = True
            else: self.w = R[0]; self.r = flat(R[1:])
        elif op.startswith('buffer_store'):
            self.kind = 'vmem'; self.r = flat(R)
            if 'x4' in op or 'x3' in op: self.data = R[0]
        elif op.startswith('buffer_atomic'):
            self.kind = 'vmem'; self.r = flat(R)
            if 'sc0' in mods: self.w = R[0]
        elif op.startswith('s_load') or op in ('s_memtime', 's_memrealtime'):
            self.kind = 'smem'; self.w = R[0]; self.r = flat(R[1:])
        elif op.startswith('v_'):
            self.kind = 'valu'
            self.w = list(R[0]); self.r = flat(R[1:])
            if 'swap' in op: self.w = R[0] + R[1]; self.r = R[0] + R[1]
            if op.startswith(('v_fmac', 'v_dot2c', 'v_writelane')): self.r += R[0]
            if op.startswith(('v_add_co', 'v_sub_co', 'v_addc_co')): self.w += R[1]; self.r = flat(R[2:])
            if op.startswith('v_cmpx'): self.w += [('x', 'exec')]
        elif op.startswith('s_'):
            if op.startswith(('s_cmp', 's_bitcmp')): self.r = flat(R)
            elif op.startswith(('s_waitcnt', 's_barrier', 's_nop', 's_cbranch', 's_branch', 's_setprio', 's_sleep', 's_endpgm')): pass
            else:
                self.w = list(R[0]); self.r = flat(R[1:])
                if 'saveexec' in op: self.w += [('x', 'exec')]
        else:
            raise ValueError('unknown op ' + text)
        self.trans = op.startswith(TRANS)
        self.dpp = ('_dpp' in op) or ('row_' in mods) or ('quad_perm' in mods)
        self.perm = 'permlane' in op
        self.rdlane = op.startswith(('v_readlane', 'v_readfirstlane'))
        self.dot = op.startswith('v_dot')
    def states(self):
        if self.op == 's_nop': return int(self.ops[0]) + 1
        return 1
    def cost(self):
        if self.kind == 'mfma': return 8
        if self.trans or self.perm: return 8
        if self.op == 's_nop': return 4 * self.states()
        return 4

class Asm:
    def __init__(self):
        self.lines = []
        self.hist = []
        self.vm = []
        self.lg = []
        self.smem_pending = set()
        self.nnop = 0
        self.uid = 0
    def label(self, name):
        self.lines.append(name + ':')
    def comment(self, t):
        self.lines.append('    ; ' + t)
    def newlabel(self, p):
        self.uid += 1
        return f'L_{p}_{self.uid}'
    def raw(self, text):
        i = Ins(text); self.lines.append('    ' + text); self.hist.append(i); self.hist = self.hist[-40:]
        return i
    def _wait(self, vm=None, lg=None):
        parts = []
        if vm is not None and vm < len(self.vm):
            assert vm <= 63
            parts.append(f'vmcnt({vm})'); self.vm = self.vm[len(self.vm) - vm:] if vm else []
        if lg is not None and (lg < len(self.lg) or (lg == 0 and self.smem_pending)):
            if self.smem_pending: lg = 0
            lg = min(lg, 15)
            parts.append(f'lgkmcnt({lg})'); self.lg = self.lg[len(self.lg) - lg:] if lg else []
            if lg == 0: self.smem_pending = set()
        if parts: self.raw('s_waitcnt ' + ' '.join(parts))
    def wait_tag(self, tag):
        idx = [k for k, e in enumerate(self.vm) if e[1] == tag]
        if idx: self._wait(vm=min(63, len(self.vm) - 1 - idx[-1]))
    def wait_lds_tag(self, tag):
        idx = [k for k, e in enumerate(self.lg) if e[1] == tag]
        if idx: self._wait(lg=len(self.lg) - 1 - idx[-1])
    def wait_all(self, vm=True, lg=True):
        self._wait(vm=0 if vm else None, lg=0 if lg else None)
    def fence(self, nop=True):
        self.raw('s_waitcnt vmcnt(0) lgkmcnt(0)'); self.vm = []; self.lg = []; self.smem_pending = set()
        if nop: self.raw('s_nop 15'); self.raw('s_nop 3')
    def vm_maybe(self):
        pass
    def fake_vm(self, n, tag):
        self.vm += [(set(), tag)] * n
    def _hazard(self, i):
        need = 0
        dist = 0
        R, W = set(i.r), set(i.w)
        vR = {r for r in R if r[0] in 'va'}; vW = {r for r in W if r[0] in 'va'}
        sR = {r for r in R if r[0] == 's' or r == ('x', 'vcc')}
        if i.op.startswith('v_cndmask') or i.op.startswith('v_addc'): sR |= {('x', 'vcc')} if 'vcc' in i.text else set()
        for p in reversed(self.hist):
            pw = set(p.w); req = 0
            if p.kind == 'mfma':
                big = 12 if p.passes == 8 else 8
                if i.kind == 'mfma':
                    if pw & set(i.ab): req = big
                    elif pw & set(i.srcC):
                        req = 0 if (p.w == i.srcC and p.passes == i.passes) else (10 if p.passes == 8 else 6)
                    elif pw & vW: req = big
                elif pw & (vR | vW): req = big
                if i.kind == 'valu' and set(p.srcC) & vW: req = max(req, 7 if p.passes == 8 else 3)
            elif p.kind == 'valu':
                pv = {r for r in pw if r[0] in 'va'}; ps = {r for r in pw if r[0] == 's' or r == ('x', 'vcc')}
                if i.kind == 'mfma' and pv & vR: req = 3 if p.dot else 2
                if i.kind == 'valu':
                    if (i.dpp or i.perm) and pv & vR: req = max(req, 2)
                    if i.rdlane and pv & vR: req = max(req, 1)
                    if p.trans and not i.trans and pv & (vR | vW): req = max(req, 1)
                    if p.dot and pv & (vR | vW):
                        same = p.op == i.op and not (pv & set(regs_of(i.ops[1]) + regs_of(i.ops[2])))
                        req = max(req, 0 if same else 3)
                    if ps & sR: req = max(req, 4 if i.op.startswith(('v_readlane', 'v_writelane')) else 2)
                    if ('x', 'exec') in pw: req = max(req, 5)
                if p.dot and i.kind in ('vmem', 'lds') and pv & vR: req = max(req, 3)
                if i.kind == 'vmem' and ps & sR: req = max(req, 5)
                if i.kind == 'mfma' and ('x', 'exec') in pw: req = max(req, 4)
                if i.kind == 'salu' and ps & sR: req = max(req, 1)
                if i.op.startswith('s_cbranch_vcc') and ('x', 'vcc') in pw: req = max(req, 1)
            elif p.kind == 'salu':
                if ('x', 'm0') in pw and ('x', 'm0') in R: req = 1
            elif p.kind == 'vmem':
                if p.data and set(p.data) & vW: req = 2
            need = max(need, req - dist)
            dist += p.states()
            if dist > 24: break
        return need
    def __call__(self, text, tag=None):
        i = Ins(text, tag)
        touched = set(i.r) | set(i.w)
        vmn = None
        for k, (regs, _) in enumerate(self.vm):
            if regs & touched: vmn = len(self.vm) - 1 - k
        lgn = None
        for k, (regs, _) in enumerate(self.lg):
            if regs & touched: lgn = len(self.lg) - 1 - k
        if self.smem_pending & touched: lgn = 0
        if vmn is not None: vmn = min(vmn, 63)
        self._wait(vm=vmn, lg=lgn)
        n = self._hazard(i)
        if n > 0:
            self.nnop += n
            while n > 0:
                k = min(n, 16); self.raw(f's_nop {k-1}'); n -= k
        if i.kind == 'vmem' and len(self.vm) >= 63:
            self._wait(vm=62)
        self.lines.append('    ' + text); self.hist.append(i); self.hist = self.hist[-40:]
        if i.kind == 'vmem': self.vm.append((set(i.w), tag))
        elif i.kind == 'lds': self.lg.append((set(i.w), tag))
        elif i.kind == 'smem': self.smem_pending |= set(i.w)
        return i
    def text(self):
        return '\n'.join(self.lines) + '\n'

class Sched:
    def __init__(self):
        self.m = []
        self.gaps = {}
    def mfma(self, text):
        self.m.append(text); return len(self.m) - 1
    def at(self, g, item, tag=None):
        self.gaps.setdefault(max(g, 0), []).append((item, tag))
    def group(self, g, items, tag=None, stride=1, pre=None):
        g = max(g, getattr(self, 'gend', -10**9))
        if pre: self.at(g, pre)
        for i, x in enumerate(items): self.at(g + stride * i, x, tag)
        self.gend = g + stride * (len(items) - 1)
    def emit(self, a, report=None):
        n = len(self.m); last = max([n] + list(self.gaps.keys()))
        costs = []
        for g in range(last + 1):
            k0 = len(a.lines)
            for item, tag in self.gaps.get(g, []):
                if callable(item): item(a)
                else: a(item, tag)
            if g < n: a(self.m[g])
            c = sum(Ins(t.strip()).cost() for t in a.lines[k0:] if not t.strip().startswith(';') and not t.endswith(':'))
            costs.append(c)
        if report:
            over = sum(max(0, c - 32) for c in costs)
            print(f'{report}: {n} mfma, gaps>32: {sum(c > 32 for c in costs)}, excess {over}, total {sum(costs)}')
        return costs
```

```python
import sys, struct, math
from asmlib import Asm, Sched

NAME = 'adaLN_cond__sliding_block_cached__dense_activation_silu__prompt'
def f2u(x): return struct.unpack('<I', struct.pack('<f', x))[0]
def hx(x): return '0x%08x' % f2u(x)
LOG2E = 1.4426950408889634

SRD = dict(X=4, K=8, V=12, WQ=16, WO=20, W1=24, W2=28, C=32, WM=36, OUT=40, DBG=44, WS=48)
KOFF = dict(X=0, K=8, V=16, WQ=24, WO=32, W1=48, W2=56, C=64, WM=72, OUT=80, DBG=88, WS=96)
SIZE = dict(X=2048*512*2, K=8*2048*128*2, V=8*2048*128*2, WQ=512*4096*2, WO=4096*512*2, W1=512*1792*2,
            W2=1792*512*2, C=1024, WM=512*3072*2, OUT=2048*512*2, DBG=256, WS=1 << 28)
def srd(n): return f's[{SRD[n]}:{SRD[n]+3}]'
sW, sG, sRB = 's52', 's53', 's54'
sT0, sT1, sT2, sT3 = 's55', 's56', 's57', 's58'
sMASK = 's59'
sA, sB, sC, sD = 's60', 's61', 's62', 's63'
sST = 64

WS_MOD = 0
WS_STAMP = 0x20000
WS_X1 = 0x200000
WS_H2 = 0x400000
WS_H1 = 0x600000
WS_P1 = 0x1000000
SC = 'sc1'

L_H0, L_B, L_A, L_W = 0, 32768, 65536, 98304
LDS_BYTES = 163840

def vr(b, n=1, k='v'): return f'{k}{b}' if n == 1 else f'{k}[{b}:{b+n-1}]'
def ar(b, n=1): return vr(b, n, 'a')

OPT = dict(stamps=False)
stamp_n = [0]
def stamp(a):
    pass

def prologue(a, names, nwg, endlabel):
    a.raw(f's_cmp_ge_u32 s2, {nwg}')
    a.raw(f's_cbranch_scc1 {endlabel}')
    for n in names:
        a(f's_load_dwordx2 s[{SRD[n]}:{SRD[n]+1}], s[0:1], {KOFF[n]}')
    for n in names:
        a(f's_mov_b32 s{SRD[n]+2}, {SIZE[n]}')
        a(f's_mov_b32 s{SRD[n]+3}, 0x20000')
    a('v_lshrrev_b32 v1, 6, v0')
    a(f's_and_b32 {sG}, s2, 7')
    a(f's_lshr_b32 {sRB}, s2, 3')
    a(f'v_readfirstlane_b32 {sW}, v1')
    a('v_and_b32 v0, 63, v0')
    a(f's_mov_b32 {sMASK}, 0xffff0000')

def lane_fields(a, dst, spec, tmp, add=None):
    first = True
    for sh, nb, sc in spec:
        t = dst if first else tmp
        a(f'v_bfe_u32 v{t}, v0, {sh}, {nb}')
        if sc & (sc - 1) == 0:
            if first:
                if sc > 1: a(f'v_lshlrev_b32 v{t}, {sc.bit_length()-1}, v{t}')
            else: a(f'v_lshl_add_u32 v{dst}, v{t}, {sc.bit_length()-1}, v{dst}')
        else:
            a(f'v_mul_u32_u24 v{t}, {sc}, v{t}')
            if not first: a(f'v_add_u32 v{dst}, v{dst}, v{t}')
        first = False
    if add is not None: a(f'v_add_u32 v{dst}, {add}, v{dst}')

def tr_pattern(a, dst, tmp, hhmul):
    lane_fields(a, dst, [(5, 1, hhmul), (2, 2, 64), (4, 1, 32), (0, 1, 16), (1, 1, 8)], tmp)

def dma(soff, voff, srdn, imm):
    return f'buffer_load_dwordx4 v{voff}, {srd(srdn)}, {soff} offen offset:{imm} lds'

def phase_mod(a):
    a.comment('mod GEMV: 16 columns per workgroup')
    a(f's_lshr_b32 {sT0}, s2, 5')
    a(f's_lshl_b32 {sT0}, {sT0}, 3')
    a(f's_add_u32 {sT0}, {sT0}, {sG}')
    a(f's_lshl_b32 {sT0}, {sT0}, 2')
    a(f's_and_b32 {sT1}, {sRB}, 3')
    a(f's_add_u32 {sT0}, {sT0}, {sT1}')
    a(f's_lshl_b32 {sA}, {sT0}, 5')
    a(f's_mul_i32 {sT1}, {sW}, {32*6144}')
    a(f's_add_u32 {sA}, {sA}, {sT1}')
    lane_fields(a, 2, [(1, 5, 6144), (0, 1, 16)], 3)
    lane_fields(a, 3, [(1, 5, 2)], 4)
    a(f's_lshl_b32 {sB}, {sW}, 6')
    for i in range(4):
        a(f'buffer_load_ushort v{8+i}, v3, {srd("C")}, {sB} offen offset:{256*i}')
    for i in range(4):
        a(f'buffer_load_dwordx4 v[{16+4*i}:{19+4*i}], v2, {srd("WM")}, {sA} offen')
        if i < 3: a(f's_add_u32 {sA}, {sA}, {128*6144}')
    for i in range(8): a(f'v_mov_b32 v{32+i}, 0')
    for i in range(4):
        a(f'v_lshlrev_b32 v{8+i}, 16, v{8+i}')
        a(f'v_mul_f32 v{12+i}, {hx(-LOG2E)}, v{8+i}')
    for i in range(4): a(f'v_exp_f32 v{12+i}, v{12+i}')
    for i in range(4): a(f'v_add_f32 v{12+i}, 1.0, v{12+i}')
    for i in range(4): a(f'v_rcp_f32 v{12+i}, v{12+i}')
    for i in range(4): a(f'v_mul_f32 v{8+i}, v{8+i}, v{12+i}')
    for i in range(4): a(f'v_cvt_pk_bf16_f32 v{8+i}, v{8+i}, v{8+i}')
    for i in range(4): a(f'v_and_b32 v{8+i}, {sMASK}, v{8+i}')
    for i in range(4):
        for r in range(4):
            a(f'v_lshlrev_b32 v{40+2*r}, 16, v{16+4*i+r}')
            a(f'v_and_b32 v{41+2*r}, {sMASK}, v{16+4*i+r}')
        for e in range(8):
            a(f'v_fmac_f32 v{32+e}, v{40+e}, v{8+i}')
    for i in range(4): a(f'v_permlane32_swap_b32 v{32+i}, v{36+i}')
    for i in range(4): a(f'v_add_f32 v{32+i}, v{32+i}, v{36+i}')
    for i in range(2): a(f'v_permlane16_swap_b32 v{32+i}, v{34+i}')
    for i in range(2): a(f'v_add_f32 v{32+i}, v{32+i}, v{34+i}')
    for sh in (8, 4, 2):
        for i in range(2):
            a(f'v_add_f32_dpp v{32+i}, v{32+i}, v{32+i} row_ror:{sh} row_mask:0xf bank_mask:0xf')
    lane_fields(a, 4, [(0, 1, 32), (4, 2, 8)], 5)
    a(f's_lshl_b32 {sT1}, {sW}, 6')
    a(f'v_add_u32 v4, {sT1}, v4')
    a('ds_write_b64 v4, v[32:33]')
    a.wait_all(vm=False)
    a.raw('s_barrier')
    lane_fields(a, 4, [(0, 4, 4)], 5)
    for i in range(4): a(f'ds_read_b32 v{8+i}, v4 offset:{64*i}')
    a(f's_lshr_b32 {sT1}, {sT0}, 5')
    a(f's_mov_b32 {sB}, {hx(LOG2E/math.sqrt(128.0))}')
    a(f's_cmp_eq_u32 {sT1}, 2'); a(f's_cselect_b32 {sB}, 1.0, {sB}')
    a(f's_cmp_ge_u32 {sT1}, 3'); a(f's_cselect_b32 {sB}, {hx(-LOG2E)}, {sB}')
    a(f's_cmp_eq_u32 {sT1}, 5'); a(f's_cselect_b32 {sB}, {hx(-1.0/LOG2E)}, {sB}')
    a(f's_mov_b32 {sC}, 0')
    a(f's_cmp_eq_u32 {sT1}, 1'); a(f's_cselect_b32 {sC}, 1.0, {sC}')
    a(f's_cmp_eq_u32 {sT1}, 4'); a(f's_cselect_b32 {sC}, 1.0, {sC}')
    a('v_add_f32 v8, v8, v9'); a('v_add_f32 v10, v10, v11'); a('v_add_f32 v8, v8, v10')
    a('v_cvt_pk_bf16_f32 v8, v8, v8'); a(f'v_and_b32 v8, {sMASK}, v8')
    a(f'v_add_f32 v8, {sC}, v8')
    a('v_cvt_pk_bf16_f32 v8, v8, v8'); a(f'v_and_b32 v8, {sMASK}, v8')
    a(f'v_mul_f32 v8, {sB}, v8')
    a(f's_lshl_b32 {sT1}, {sT0}, 6')
    a(f's_add_u32 {sT1}, {sT1}, {WS_MOD}')
    lab = a.newlabel('modskip')
    a(f's_cmp_lg_u32 {sW}, 0')
    a.raw(f's_cbranch_scc1 {lab}')
    a('s_mov_b64 exec, 0xffff')
    a(f'buffer_store_dword v8, v4, {srd("WS")}, {sT1} offen {SC}')
    a('s_mov_b64 exec, -1')
    a.label(lab)

vW4 = 2
vKD = 6
vVD = 10
vTRA, vTRB, vTRV = 11, 12, 13
vK = 14
vH = 22
vL = 26
vT = 28
vS = 32
vP = 96
vO = 128
aQ = 0
aF = 64

def slot_addr(sig):
    return (vTRA, 16384 * (sig + 2)) if sig < 2 else (vTRB, 16384 * (sig - 2))
def slot_lds(sig): return L_A + 16384 * sig

def butterfly16(a, r, t):
    for i in range(8): a(f'v_permlane32_swap_b32 v{r+i}, v{r+i+8}')
    for i in range(8): a(f'v_add_f32 v{r+i}, v{r+i}, v{r+i+8}')
    for i in range(4): a(f'v_permlane16_swap_b32 v{r+i}, v{r+i+4}')
    for i in range(4): a(f'v_add_f32 v{r+i}, v{r+i}, v{r+i+4}')
    for sh in (8, 4, 2, 1):
        for i in range(4):
            a(f'v_add_f32_dpp v{r+i}, v{r+i}, v{r+i} row_ror:{sh} row_mask:0xf bank_mask:0xf')

def sbc(i):
    b = (sST + i) & ~1
    return f's[{b}:{b+1}]', ('op_sel_hi:[1,0]' if (sST + i) % 2 == 0 else 'op_sel:[0,1] op_sel_hi:[1,1]')

def wq_dma(k):
    sig = (k + 4) % 6
    out = [f's_add_u32 m0, {sC}, {slot_lds(sig)}']
    out += [dma(sA, vW4 + p, 'WQ', 1024 * p) for p in range(4)]
    out += [f's_add_u32 {sA}, {sA}, {16*8192}']
    return out

def kv_dma(t, which):
    buf = (L_A if t % 2 == 0 else L_B) + (0 if which == 'K' else 16384)
    unit = 2 * t + 1 if which == 'K' else 2 * t - 1
    def kk(a, u, em):
        em(f's_add_u32 {sT0}, {sD}, {u*8192}')
        for p in range(4): em(dma(sT0, vKD + p, 'K', 1024 * p))
    def vv(a, u, em):
        em(f's_add_u32 {sT0}, {sD}, {u*8192}')
        for p in range(4): em(dma(sT0, vVD, 'V', 1024 * p))
    tag = ('kv', t)
    if (t, which) in ((0, 'V'), (7, 'K')):
        def f(a):
            l1, l2 = a.newlabel('kv'), a.newlabel('kv')
            a(f's_add_u32 m0, {sC}, {buf}')
            a(f's_cmp_lt_u32 {sW}, 2')
            a.raw(f's_cbranch_scc1 {l1}')
            vv(a, -1 if t == 0 else 14, a.raw)
            a.raw(f's_branch {l2}')
            a.label(l1)
            kk(a, 0 if t == 0 else 15, a.raw)
            a.label(l2)
            a.fake_vm(4, tag)
        return [f]
    out = [f's_add_u32 m0, {sC}, {buf}']
    (kk if which == 'K' else vv)(None, unit, out.append)
    return out

def k_off(u):
    if u == 0: return L_A + 16384 - L_B
    t = (u - 1) // 2
    return (L_A if t % 2 == 0 else L_B) + 8192 * ((u - 1) % 2) - L_B
def v_off(u):
    if u == 15: return 8192
    t = (u + 1) // 2
    return (L_A if t % 2 == 0 else L_B) + 16384 + 8192 * ((u + 1) % 2) - L_B

WO_SIG = [2, 3, 4, 5, -2, -1]
def wo_slot(n):
    m = n % 12
    return WO_SIG[m // 2], 2048 * (m % 2)
def wo_dma(n2):
    sig, _ = wo_slot(2 * n2)
    c, k = divmod(2 * n2, 32)
    out = [f's_add_u32 m0, {sC}, {slot_lds(sig)}', f's_add_u32 {sT1}, {sB}, {k*16*1024 + c*128}']
    out += [dma(sT1, vW4 + p, 'WO', 1024 * p) for p in range(4)]
    return out

def phase_main_setup(a):
    a.comment('address set-up')
    a(f's_lshl_b32 {sC}, {sW}, 12')
    a(f's_lshl_b32 {sT0}, {sRB}, 16')
    a(f's_lshl_b32 {sT1}, {sW}, 14')
    a(f's_add_u32 {sT0}, {sT0}, {sT1}')
    a(f'v_lshlrev_b32 v{vT}, 4, v0')
    for i in range(16):
        if i and i % 4 == 0: a(f's_add_u32 {sT0}, {sT0}, 4096')
        a(f'buffer_load_dwordx4 v[{64+4*i}:{67+4*i}], v{vT}, {srd("X")}, {sT0} offen offset:{1024*(i%4)}')
    lane_fields(a, vW4, [(0, 2, 16), (2, 2, 8192), (4, 2, 64)], vT + 1)
    for p in range(1, 4): a(f'v_add_u32 v{vW4+p}, {p*(4*8192-1024)}, v{vW4}')
    a(f's_lshl_b32 {sA}, {sG}, 10')
    a(f's_lshl_b32 {sT1}, {sW}, 8')
    a(f's_add_u32 {sA}, {sA}, {sT1}')
    for k in range(6):
        for t in wq_dma(k): a(t, ('wq', k))
    a(f's_lshl_b32 {sD}, {sG}, 19')
    a(f's_add_u32 {sD}, {sD}, {1536*256}')
    a(f's_add_u32 {sD}, {sD}, {sC}')
    lane_fields(a, vVD, [(0, 2, 16), (2, 2, 256), (4, 2, 64)], vT + 1)
    a(f'v_lshrrev_b32 v{vT+1}, 4, v0')
    a(f'v_and_b32 v{vT+2}, 15, v0')
    a(f'v_xor_b32 v{vT+2}, v{vT+2}, v{vT+1}')
    a(f'v_lshlrev_b32 v{vT+2}, 4, v{vT+2}')
    a(f'v_lshl_add_u32 v{vKD}, v{vT+1}, 8, v{vT+2}')
    for p in range(1, 4): a(f'v_xor_b32 v{vKD+p}, {64*p}, v{vKD}')
    tr_pattern(a, vTRV, vT + 1, 2048)
    a(f's_add_u32 {sT0}, {sC}, {L_B}')
    a(f'v_add_u32 v{vTRA}, {sT0}, v{vTRV}')
    a(f'v_add_u32 v{vTRB}, 0x10000, v{vTRA}')
    a(f'v_add_u32 v{vTRV}, {L_B}, v{vTRV}')
    lane_fields(a, vT + 1, [(0, 2, 1), (3, 1, 4), (2, 1, 8), (4, 1, 16)], vT + 2)
    a(f'v_and_b32 v{vT+2}, 15, v{vT+1}')
    a(f'v_lshrrev_b32 v{vT+3}, 5, v0')
    a(f'v_xor_b32 v{vT+2}, v{vT+2}, v{vT+3}')
    a(f'v_lshlrev_b32 v{vT+2}, 4, v{vT+2}')
    a(f'v_lshl_add_u32 v{vK}, v{vT+1}, 8, v{vT+2}')
    a(f'v_add_u32 v{vK}, {L_B}, v{vK}')
    for s in range(1, 8): a(f'v_xor_b32 v{vK+s}, {32*s}, v{vK}')
    a(f'v_and_b32 v{vT+1}, 31, v0')
    a(f'v_xor_b32 v{vT+1}, v{vT+1}, v{vT+3}')
    a(f'v_lshlrev_b32 v{vT+1}, 4, v{vT+1}')
    a(f'v_lshl_add_u32 v{vH}, v{vT+3}, 9, v{vT+1}')
    for s in range(1, 4): a(f'v_xor_b32 v{vH+s}, {32*s}, v{vH}')

def phase_ln1_stats(a):
    a.comment('LN1 statistics')
    D = 128; R = 32
    for i in range(16):
        for r in range(4):
            a(f'v_lshlrev_b32 v{D+8*i+2*r}, 16, v{64+4*i+r}')
            a(f'v_and_b32 v{D+8*i+2*r+1}, {sMASK}, v{64+4*i+r}')
        d = D + 8 * i; t = 48 + 4 * (i % 2)
        a(f'v_pk_add_f32 v[{t}:{t+1}], v[{d}:{d+1}], v[{d+2}:{d+3}]')
        a(f'v_pk_add_f32 v[{t+2}:{t+3}], v[{d+4}:{d+5}], v[{d+6}:{d+7}]')
        a(f'v_pk_add_f32 v[{t}:{t+1}], v[{t}:{t+1}], v[{t+2}:{t+3}]')
        a(f'v_add_f32 v{R+i}, v{t}, v{t+1}')
    butterfly16(a, R, None)
    for i in range(4): a(f'v_mul_f32 v{R+i}, {hx(-1.0/512)}, v{R+i}')
    for q in range(4):
        for i in range(4): a(f'v_readlane_b32 s{sST+i+4*q}, v{R+i}, {16*q}')
    for i in range(16):
        d = D + 8 * i; t = 48 + 2 * (i % 2); so, md = sbc(i)
        for r in range(4): a(f'v_pk_add_f32 v[{d+2*r}:{d+2*r+1}], v[{d+2*r}:{d+2*r+1}], {so} {md}')
        a(f'v_pk_mul_f32 v[{t}:{t+1}], v[{d}:{d+1}], v[{d}:{d+1}]')
        for r in range(1, 4):
            a(f'v_pk_fma_f32 v[{t}:{t+1}], v[{d+2*r}:{d+2*r+1}], v[{d+2*r}:{d+2*r+1}], v[{t}:{t+1}]')
        a(f'v_add_f32 v{R+i}, v{t}, v{t+1}')
    butterfly16(a, R, None)
    a(f'v_mov_b32 v48, {hx(1e-5)}')
    for i in range(4): a(f'v_fmamk_f32 v{R+i}, v{R+i}, {hx(1.0/512)}, v48')
    for i in range(4): a(f'v_rsq_f32 v{R+i}, v{R+i}')
    for q in range(4):
        for i in range(4): a(f'v_readlane_b32 s{sST+i+4*q}, v{R+i}, {16*q}')
    for i in range(16):
        d = D + 8 * i; so, md = sbc(i)
        for r in range(4): a(f'v_pk_mul_f32 v[{d+2*r}:{d+2*r+1}], v[{d+2*r}:{d+2*r+1}], {so} {md}')
    a(f's_lshr_b32 {sT0}, {sW}, 1')
    a(f's_lshl_b32 {sT0}, {sT0}, 15')
    a(f's_and_b32 {sT1}, {sW}, 1')
    a(f's_lshl_b32 {sT1}, {sT1}, 8')
    a(f's_add_u32 {sT0}, {sT0}, {sT1}')
    lane_fields(a, 32, [(0, 6, 512), (0, 3, 16)], 33, add=sT0)
    for i in range(1, 8): a(f'v_xor_b32 v{32+i}, {16*i}, v32')

def phase_ln1_modload(a):
    a(f'v_lshlrev_b32 v{vT+1}, 5, v0')
    for vec in range(2):
        for hf in range(2):
            b = 40 + 8 * vec + 4 * hf
            a(f'buffer_load_dwordx4 v[{b}:{b+3}], v{vT+1}, {srd("WS")}, 0 offen offset:{WS_MOD + 2048*vec + 16*hf} {SC}')

def phase_ln1_apply(a):
    a.comment('h = xn*A + B -> LDS')
    D = 128
    for i in range(16):
        d = D + 8 * i; t = 64 + 4 * i
        for r in range(4):
            a(f'v_pk_fma_f32 v[{d+2*r}:{d+2*r+1}], v[{d+2*r}:{d+2*r+1}], v[{48+2*r}:{49+2*r}], v[{40+2*r}:{41+2*r}]')
        for r in range(4): a(f'v_cvt_pk_bf16_f32 v{t+r}, v{d+2*r}, v{d+2*r+1}')
        a(f'ds_write_b128 v{32+(i&7)}, v[{t}:{t+3}] offset:{128*(i>>3)}')

def mf(d, A, B, first):
    return f'v_mfma_f32_32x32x16_bf16 {d}, {A}, {B}, {"0" if first else d}'

def o_convert(j, qt):
    o = vO + 16 * (2 * j + qt); out = []
    for hf in range(2):
        t = vS + 8 * ((2 * j + qt) % 4) + 4 * hf
        sel = 'op_sel_hi:[1,0]' if qt == 0 else 'op_sel:[0,1] op_sel_hi:[1,1]'
        for r in range(4):
            b = o + 8 * hf + 2 * r
            out.append(f'v_pk_mul_f32 v[{b}:{b+1}], v[{b}:{b+1}], v[{vL}:{vL+1}] {sel}')
        for r in range(4):
            b = o + 8 * hf + 2 * r
            out.append(f'v_cvt_pk_bf16_f32 v{t+r}, v{b}, v{b+1}')
        out.append(f'ds_write_b128 v{vH+qt}, v[{t}:{t+3}] offset:{1024*(2*j+hf)}')
    return out

def l_total():
    out = []
    for qt in range(2): out.append(f'v_mov_b32 v{vT+qt}, v{vL+qt}')
    for qt in range(2): out.append(f'v_permlane32_swap_b32 v{vL+qt}, v{vT+qt}')
    for qt in range(2): out.append(f'v_add_f32 v{vL+qt}, v{vL+qt}, v{vT+qt}')
    return out

def phase_main(a, slow_label, join_label):
    S = Sched()
    aA = lambda k, j: aF + 24 * (k % 2) + 4 * j
    aB = lambda k, qt: aF + 24 * (k % 2) + 16 + 4 * qt
    def q_reads(k, g0):
        reg, base = slot_addr((k + 4) % 6)
        S.at(g0, lambda a, k=k: a.wait_tag(('wq', k)))
        for qt in range(2):
            S.at(g0 + qt, f'ds_read_b128 {ar(aB(k,qt),4)}, v{vH+(k&3)} offset:{32768*qt + 1024*k}', ('qr', k))
        for j in range(4):
            for rr in range(2):
                S.at(g0 + min(2 * j + rr, 6), f'ds_read_b64_tr_b16 {ar(aA(k,j)+2*rr,2)}, v{reg} offset:{base + 256*j + 1024*rr}', ('qr', k))
    S.at(0, lambda a: (a.wait_all(vm=False), a.raw('s_barrier')))
    q_reads(0, -100)
    for k in range(32):
        g0 = 8 * k
        for j in range(4):
            for qt in range(2):
                S.mfma(mf(vr(vO + 16 * (2 * j + qt), 16), ar(aA(k, j), 4), ar(aB(k, qt), 4), k == 0))
        if k + 1 < 32: q_reads(k + 1, g0 + 1)
        nxt = None
        if k + 6 < 32: nxt = (wq_dma(k + 6), ('wq', k + 6))
        elif k == 26: nxt = (kv_dma(0, 'K'), ('kv', 0))
        elif k == 27: nxt = (kv_dma(0, 'V'), ('kv', 0))
        if nxt:
            S.group(g0 + 2, nxt[0], nxt[1], pre=lambda a, k=k: a.wait_lds_tag(('qr', k)))
    G = 256
    ring = [0]
    NF = 10
    def newfrag():
        r = aF + 48 + 4 * (ring[0] % NF); ring[0] += 1; return r
    LA = 8
    sreg = lambda u, qt: vS + 32 * (u % 2) + 16 * qt
    preg = lambda u, qt, sp: vP + 16 * (u % 2) + 8 * qt + 4 * sp
    last_read = {}; first_read = {}
    def note(t, g):
        last_read[t] = max(last_read.get(t, -1), g); first_read[t] = min(first_read.get(t, 10**9), g)
    reads = []
    def qk(u):
        t = 0 if u == 0 else (u - 1) // 2
        for s in range(8):
            f = newfrag(); g = len(S.m)
            reads.append((g, t, [f'ds_read_b128 {ar(f,4)}, v{vK+s} offset:{k_off(u)}']))
            for qt in range(2):
                S.mfma(mf(vr(sreg(u, qt), 16), ar(f, 4), ar(aQ + 32 * qt + 4 * s, 4), s == 0))
    def pv(u):
        t = 7 if u == 15 else (u + 1) // 2
        for j in range(4):
            for sp in range(2):
                f = newfrag(); g = len(S.m)
                reads.append((g, t, [f'ds_read_b64_tr_b16 {ar(f+2*rr,2)}, v{vTRV} offset:{v_off(u) + 4096*sp + 256*j + 1024*rr}' for rr in range(2)]))
                for qt in range(2):
                    S.mfma(mf(vr(vO + 16 * (2 * j + qt), 16), ar(f, 4), vr(preg(u, qt, sp), 4), u == 0 and sp == 0))
    qk(0)
    slot_g = {}
    for u in range(16):
        slot_g[u] = len(S.m)
        if u < 15: qk(u + 1)
        if u >= 1: pv(u - 1)
    slot_g[16] = len(S.m)
    pv(15)
    Gend = len(S.m)
    BD = 3
    prev_t = -1; hold = 0
    for g, t, txt in reads:
        gi = g - LA
        if t != prev_t:
            gb = (G - 4) if t == 0 else gi + BD
            def bar(a, t=t):
                a.wait_tag(('kv', t)); a.wait_all(vm=False); a.raw('s_barrier')
            S.at(gb, bar)
            hold = gb
            if t + 1 <= 7:
                S.group(gb + 6, kv_dma(t + 1, 'K') + kv_dma(t + 1, 'V'), ('kv', t + 1), stride=2)
            if t in (5, 6):
                for n2 in (2 * t - 10, 2 * t - 9): S.group(slot_g[2 * t + 1], wo_dma(n2), ('wo', n2), stride=2)
            prev_t = t
        for i, x in enumerate(txt): S.at(max(gi + i, hold), x)
    for s in range(8):
        for qt in range(2):
            o = vO + 16 * (2 * (s // 2) + qt) + 8 * (s % 2)
            g = G + 2 * s + qt - (0 if s == 0 else 1)
            tt = vP + 4 * ((2 * s + qt) % 4)
            for r in range(4): S.at(g, f'v_cvt_pk_bf16_f32 v{tt+r}, v{o+2*r}, v{o+2*r+1}')
            for r in range(4): S.at(g, f'v_accvgpr_write_b32 a{aQ+32*qt+4*s+r}, v{tt+r}')
    for u in range(16):
        g0, g1 = slot_g[u], slot_g[u + 1]
        n = g1 - g0
        st = 2 if u == 0 else 0
        if u == 15: g0 -= 12; n += 12
        for e in range(32):
            qt, r = divmod(e, 16); reg = sreg(u, qt) + r
            ge = g0 + st + (e * (n - st - 1)) // 32
            S.at(ge, f'v_exp_f32 v{reg}, v{reg}')
            if u == 0 and r == 1: S.at(ge + 1, f'v_add_f32 v{vL+qt}, v{reg-1}, v{reg}')
            elif not (u == 0 and r == 0): S.at(ge + 1, f'v_add_f32 v{vL+qt}, v{vL+qt}, v{reg}')
            if r % 2 == 1:
                S.at(max(ge + 1, slot_g[u]), f'v_cvt_pk_bf16_f32 v{preg(u,qt,r//8) + (r%8)//2}, v{reg-1}, v{reg}')
    gw = slot_g[9]
    def wo_setup(a):
        lane_fields(a, vW4, [(0, 2, 16), (2, 2, 1024), (4, 1, 64), (5, 1, 4096)], vT + 1)
    S.at(gw, wo_setup)
    for p in range(1, 4): S.at(gw + 1 + p, f'v_add_u32 v{vW4+p}, {p*(8*1024-1024)}, v{vW4}')
    S.at(gw + 5, f's_lshl_b32 {sB}, {sG}, 19'); S.at(gw + 5, f's_lshl_b32 {sT1}, {sW}, 8'); S.at(gw + 6, f's_add_u32 {sB}, {sB}, {sT1}')
    S.at(gw + 7, f'v_bfe_u32 v{vT}, v0, 5, 1'); S.at(gw + 8, f'v_lshlrev_b32 v{vT}, 10, v{vT}')
    S.at(gw + 9, f'v_sub_u32 v{vTRA}, v{vTRA}, v{vT}'); S.at(gw + 10, f'v_sub_u32 v{vTRB}, v{vTRB}, v{vT}')
    S.at(gw + 11, f's_lshl_b32 {sT1}, {sW}, 13'); S.at(gw + 11, f'v_lshlrev_b32 v{vH+2}, 4, v0')
    S.at(gw + 12, f'v_add_u32 v{vH}, {sT1}, v{vH+2}'); S.at(gw + 13, f'v_add_u32 v{vH+1}, {L_A}, v{vH}')
    S.at(gw + 14, f'v_add_u32 v{vH+3}, {L_A}, v{vH+2}')
    g = slot_g[16]
    for i, x in enumerate(l_total()): S.at(g + 1 + i // 2, x)
    def check(a):
        a(f's_mov_b32 {sT0}, {hx(2.0**40)}')
        a(f'v_mov_b32 v{vT+2}, {hx(2.0**-40)}')
        for qt in range(2): a(f'v_med3_f32 v{vT+qt}, v{vL+qt}, v{vT+2}, {sT0}')
        a(f'v_cmp_neq_f32 vcc, v{vT}, v{vL}')
        a(f'v_cmp_neq_f32 s[96:97], v{vT+1}, v{vL+1}')
        for qt in range(2): a(f'v_rcp_f32 v{vL+qt}, v{vL+qt}')
        a('s_or_b64 vcc, vcc, s[96:97]')
        a.raw(f's_cbranch_vccnz {slow_label}')
    S.at(g + 4, check)
    for j in range(4):
        for qt in range(2):
            ins = o_convert(j, qt)
            gs = g + 4 * j + 6 + 2 * qt
            for i, x in enumerate(ins): S.at(min(gs + i // 9, Gend), x)
    S.emit(a, 'qproj+attn')
    a.label(join_label)
    S = Sched()
    vA = lambda n, j: 32 + 8 * (n % 4) + 4 * j
    aB2 = lambda k, qt: 128 * qt + 4 * k
    acc = lambda c, j, qt: 128 + 64 * c + 16 * (2 * j + qt)
    def a_reads(n, g0):
        sig, o = wo_slot(n); reg, base = slot_addr(sig)
        if n % 2 == 0: S.at(g0, lambda a, n=n: a.wait_tag(('wo', n // 2)))
        for j in range(2):
            for rr in range(2):
                S.at(g0 + 2 * j + rr, f'ds_read_b64_tr_b16 {vr(vA(n,j)+2*rr,2)}, v{reg} offset:{base + o + 256*j + 512*rr}', ('ar', n))
    def b_reads(k, g0):
        for qt in range(2):
            S.at(g0 + 2 * qt, f'ds_read_b128 {ar(aB2(k,qt),4)}, v{vH+2+qt} offset:{1024*k}')
    S.at(0, lambda a: (a.wait_all(vm=False), a.raw('s_barrier')))
    b_reads(0, -100); a_reads(0, -100); b_reads(1, -100); a_reads(1, -100)
    for n2 in (4, 5):
        S.group(1, wo_dma(n2), ('wo', n2))
    for n in range(64):
        c, k = divmod(n, 32); g0 = 4 * n
        for j in range(2):
            for qt in range(2):
                S.mfma(mf(vr(acc(c, j, qt), 16), vr(vA(n, j), 4), ar(aB2(k, qt), 4), k == 0))
        if n + 2 < 32: b_reads(n + 2, g0 + 1)
        if n + 2 < 64: a_reads(n + 2, g0 + 1)
        if n % 2 == 0 and n // 2 + 6 < 32:
            S.group(g0 + 3, wo_dma(n // 2 + 6), ('wo', n // 2 + 6), pre=lambda a, n=n: a.wait_lds_tag(('ar', n + 1)))
    def st_setup(a):
        lane_fields(a, vT, [(3, 2, 65536), (5, 1, 128), (0, 3, 16)], vT + 1)
        a(f's_lshl_b32 {sT2}, {sRB}, 19'); a(f's_lshl_b32 {sT0}, {sG}, 13'); a(f's_add_u32 {sT2}, {sT2}, {sT0}')
        a(f's_lshl_b32 {sT0}, {sW}, 11'); a(f's_add_u32 {sT2}, {sT2}, {sT0}'); a(f's_add_u32 {sT2}, {sT2}, {WS_P1}')
        a(f's_add_u32 {sT3}, {sT2}, 0x40000')
    S.at(100, st_setup)
    for c in range(2):
        i = 0
        for j in range(2):
            for qt in range(2):
                for hf in range(2):
                    o = acc(c, j, qt) + 8 * hf; t = 64 + 4 * i
                    gs = 128 + 4 + 14 * i if c == 0 else 256
                    for r in range(4): S.at(gs + (r if c == 0 else 0), f'v_cvt_pk_bf16_f32 v{t+r}, v{o+2*r}, v{o+2*r+1}')
                    S.at(gs + (4 if c == 0 else 0), f'buffer_store_dwordx4 v[{t}:{t+3}], v{vT}, {srd("WS")}, {sT3 if qt else sT2} offen offset:{1024*c + 512*j + 256*hf} {SC}', 'p1')
                    i += 1
    S.emit(a, 'wo')

def slow_path(a, slow_label, join_label):
    a.label(slow_label)
    a.fence()
    vM = vT; vAD = 96; vF = 100; vPP = 104
    a(f's_sub_u32 {sT2}, {sD}, {sC}')
    a(f's_lshl_b32 {sT3}, {sW}, 13')
    lane_fields(a, vAD, [(0, 2, 256), (3, 1, 1024), (2, 1, 2048), (4, 1, 4096), (5, 1, 16)], vAD + 1)
    tr_pattern(a, vAD + 1, vAD + 2, 2048)
    a(f'v_add_u32 v{vAD+1}, {sT3}, v{vAD+1}')
    for qt in range(2):
        a(f'v_mov_b32 v{vM+qt}, 0xff800000'); a(f'v_mov_b32 v{vL+qt}, 0')
    for r in range(128): a(f'v_mov_b32 v{vO+r}, 0')
    a(f's_mov_b32 s98, 0')
    loop = a.newlabel('slowloop')
    a.fence()
    a.label(loop)
    for hf in range(2):
        a(f's_add_u32 m0, {sT3}, {4096*hf}')
        a(f's_add_u32 {sT0}, {sT2}, {4096*hf}')
        for p in range(4): a(dma(sT0, vVD, 'V', 1024 * p))
    for s in range(8):
        a(f'buffer_load_dwordx4 {ar(aF+4*s,4)}, v{vAD}, {srd("K")}, {sT2} offen offset:{32*s}')
    for s in range(8):
        for qt in range(2):
            a(mf(vr(vS + 16 * qt, 16), ar(aF + 4 * s, 4), ar(aQ + 32 * qt + 4 * s, 4), s == 0))
    for qt in range(2):
        b = vS + 16 * qt; t = vF
        a(f'v_max3_f32 v{t}, v{b}, v{b+1}, v{vM+qt}')
        for r in range(2, 16, 2): a(f'v_max3_f32 v{t}, v{b+r}, v{b+r+1}, v{t}')
        a(f'v_mov_b32 v{t+1}, v{t}')
        a(f'v_permlane32_swap_b32 v{t}, v{t+1}')
        a(f'v_max_f32 v{t}, v{t}, v{t+1}')
        a(f'v_sub_f32 v{t+1}, v{vM+qt}, v{t}')
        a(f'v_exp_f32 v{t+1}, v{t+1}')
        a(f'v_mov_b32 v{vM+qt}, v{t}')
        a(f'v_mul_f32 v{vL+qt}, v{vL+qt}, v{t+1}')
        for j in range(4):
            for r in range(16):
                o = vO + 16 * (2 * j + qt) + r
                a(f'v_mul_f32 v{o}, v{o}, v{t+1}')
        for r in range(16): a(f'v_sub_f32 v{b+r}, v{b+r}, v{t}')
        for r in range(16): a(f'v_exp_f32 v{b+r}, v{b+r}')
        for r in range(16): a(f'v_add_f32 v{vL+qt}, v{vL+qt}, v{b+r}')
        for r in range(8): a(f'v_cvt_pk_bf16_f32 v{vPP+8*qt+r}, v{b+2*r}, v{b+2*r+1}')
    a.wait_all()
    for j in range(4):
        for sp in range(2):
            f = aF + 32 + 4 * (2 * j + sp)
            for rr in range(2):
                a(f'ds_read_b64_tr_b16 {ar(f+2*rr,2)}, v{vAD+1} offset:{4096*sp + 256*j + 1024*rr}')
    for j in range(4):
        for sp in range(2):
            f = aF + 32 + 4 * (2 * j + sp)
            for qt in range(2):
                a(mf(vr(vO + 16 * (2 * j + qt), 16), ar(f, 4), vr(vPP + 8 * qt + 4 * sp, 4), False))
    a(f's_add_u32 {sT2}, {sT2}, 8192')
    a.fence()
    a('s_add_u32 s98, s98, 1')
    a('s_cmp_lt_u32 s98, 16')
    a.raw(f's_cbranch_scc1 {loop}')
    for x in l_total(): a(x)
    for qt in range(2): a(f'v_rcp_f32 v{vL+qt}, v{vL+qt}')
    for j in range(4):
        for qt in range(2):
            for x in o_convert(j, qt): a(x)
    a.fence()
    a.raw(f's_branch {join_label}')

def phase_red_pre(a):
    a.comment('residual / modulation operands of the reduce phase')
    lane_fields(a, 2, [(0, 3, 1024), (3, 3, 16)], 3)
    a(f's_lshl_b32 {sT0}, s2, 13')
    a(f's_lshl_b32 {sT1}, {sW}, 8')
    a(f's_add_u32 {sT0}, {sT0}, {sT1}')
    for i in range(2): a(f'buffer_load_dwordx4 v[{8+4*i}:{11+4*i}], v2, {srd("X")}, {sT0} offen offset:{128*i}')
    lane_fields(a, 3, [(3, 3, 32)], 4)
    a(f's_lshl_b32 {sT0}, {sW}, 9')
    for vec in range(3):
        a(f's_add_u32 {sT1}, {sT0}, {WS_MOD + 2048*(2+vec)}')
        for i in range(2):
            for hf in range(2):
                b = 16 + 16 * vec + 8 * i + 4 * hf
                a(f'buffer_load_dwordx4 v[{b}:{b+3}], v3, {srd("WS")}, {sT1} offen offset:{256*i + 16*hf} {SC}')

def allred8(a, r, t):
    a(f'v_add_f32_dpp v{r}, v{r}, v{r} row_ror:8 row_mask:0xf bank_mask:0xf')
    a(f'v_mov_b32 v{t}, v{r}'); a(f'v_permlane16_swap_b32 v{r}, v{t}'); a(f'v_add_f32 v{r}, v{r}, v{t}')
    a(f'v_mov_b32 v{t}, v{r}'); a(f'v_permlane32_swap_b32 v{r}, v{t}'); a(f'v_add_f32 v{r}, v{r}, v{t}')

def phase_red(a, lds_tmp):
    a.comment('sum of the 8 partial projections')
    P = 128; ACC = 64; T = 80
    a('v_lshlrev_b32 v4, 4, v0')
    a(f's_lshl_b32 {sT0}, s2, 16')
    a(f's_lshl_b32 {sT1}, {sW}, 11')
    a(f's_add_u32 {sT0}, {sT0}, {sT1}')
    a(f's_add_u32 {sT0}, {sT0}, {WS_P1}')
    for g in range(8):
        for i in range(2):
            b = P + 8 * g + 4 * i
            a(f'buffer_load_dwordx4 v[{b}:{b+3}], v4, {srd("WS")}, {sT0} offen offset:{1024*i} {SC}')
        if g < 7: a(f's_add_u32 {sT0}, {sT0}, 8192')
    a('v_mov_b32 v5, 0x3f80'); a('v_mov_b32 v6, 0x3f800000')
    for r in range(8):
        a(f'v_lshlrev_b32 v{T+2*r}, 16, v{8+r}'); a(f'v_and_b32 v{T+2*r+1}, {sMASK}, v{8+r}')
    lane_fields(a, 7, [(0, 3, 32)], 2, add=lds_tmp)
    a(f's_lshl_b32 {sT1}, {sW}, 3')
    a(f'v_add_u32 v2, {sT1}, v7')
    for r in range(8):
        a(f'v_lshlrev_b32 v{ACC+2*r}, 16, v{P+r}'); a(f'v_and_b32 v{ACC+2*r+1}, {sMASK}, v{P+r}')
    for g in range(1, 8):
        for r in range(8):
            a(f'v_dot2c_f32_bf16 v{ACC+2*r}, v{P+8*g+r}, v5'); a(f'v_dot2c_f32_bf16 v{ACC+2*r+1}, v{P+8*g+r}, v6')
    for r in range(8):
        a(f'v_pk_fma_f32 v[{ACC+2*r}:{ACC+2*r+1}], v[{ACC+2*r}:{ACC+2*r+1}], v[{16+2*r}:{17+2*r}], v[{T+2*r}:{T+2*r+1}]')
    for r in range(4): a(f'v_pk_add_f32 v[{T+2*r}:{T+2*r+1}], v[{ACC+2*r}:{ACC+2*r+1}], v[{ACC+8+2*r}:{ACC+9+2*r}]')
    for r in range(2): a(f'v_pk_add_f32 v[{T+2*r}:{T+2*r+1}], v[{T+2*r}:{T+2*r+1}], v[{T+4+2*r}:{T+5+2*r}]')
    a(f'v_pk_add_f32 v[{T}:{T+1}], v[{T}:{T+1}], v[{T+2}:{T+3}]')
    a(f'v_add_f32 v{T}, v{T}, v{T+1}')
    for r in range(8): a(f'v_cvt_pk_bf16_f32 v{8+r}, v{ACC+2*r}, v{ACC+2*r+1}')
    allred8(a, T, T + 1)
    a(f'v_mul_f32 v{T}, {hx(-1.0/128)}, v{T}')
    a(f's_lshl_b32 {sT0}, s2, 13'); a(f's_lshl_b32 {sT1}, {sW}, 11'); a(f's_add_u32 {sT0}, {sT0}, {sT1}'); a(f's_add_u32 {sT0}, {sT0}, {WS_X1}')
    for r in range(8): a(f'v_pk_add_f32 v[{ACC+2*r}:{ACC+2*r+1}], v[{ACC+2*r}:{ACC+2*r+1}], v[{T}:{T+1}] op_sel_hi:[1,0]')
    for i in range(2): a(f'buffer_store_dwordx4 v[{8+4*i}:{11+4*i}], v4, {srd("WS")}, {sT0} offen offset:{1024*i} {SC}', 'x1')
    for h in range(2): a(f'v_pk_mul_f32 v[{T+2+2*h}:{T+3+2*h}], v[{ACC+2*h}:{ACC+2*h+1}], v[{ACC+2*h}:{ACC+2*h+1}]')
    for r in range(2, 8):
        h = r % 2
        a(f'v_pk_fma_f32 v[{T+2+2*h}:{T+3+2*h}], v[{ACC+2*r}:{ACC+2*r+1}], v[{ACC+2*r}:{ACC+2*r+1}], v[{T+2+2*h}:{T+3+2*h}]')
    a(f'v_pk_add_f32 v[{T+2}:{T+3}], v[{T+2}:{T+3}], v[{T+4}:{T+5}]')
    a(f'v_add_f32 v{T+1}, v{T+2}, v{T+3}')
    allred8(a, T + 1, T + 2)
    a(f'ds_write_b64 v2, v[{T}:{T+1}]')
    a.wait_all(vm=False)
    a.raw('s_barrier')
    a(f'ds_read_b128 v[{T+4}:{T+7}], v7'); a(f'ds_read_b128 v[{T+8}:{T+11}], v7 offset:16')
    lane_fields(a, 2, [(3, 3, 512), (0, 3, 16)], 3)
    a(f's_lshr_b32 {sT0}, s2, 2'); a(f's_lshl_b32 {sT0}, {sT0}, 15')
    a(f's_and_b32 {sT1}, s2, 3'); a(f's_lshl_b32 {sT1}, {sT1}, 7'); a(f's_add_u32 {sT0}, {sT0}, {sT1}')
    a(f's_lshl_b32 {sT1}, {sW}, 13'); a(f's_add_u32 {sT0}, {sT0}, {sT1}'); a(f's_add_u32 {sT0}, {sT0}, {WS_H2}')
    a(f's_add_u32 {sT1}, {sT0}, 4096')
    a(f'v_pk_add_f32 v[{T+12}:{T+13}], v[{T+4}:{T+5}], v[{T+6}:{T+7}]')
    a(f'v_pk_add_f32 v[{T+14}:{T+15}], v[{T+8}:{T+9}], v[{T+10}:{T+11}]')
    a(f'v_pk_add_f32 v[{T+12}:{T+13}], v[{T+12}:{T+13}], v[{T+14}:{T+15}]')
    a(f'v_mul_f32 v{T+12}, {hx(0.25)}, v{T+12}')
    for w in range(4): a(f'v_sub_f32 v{T+4+2*w}, v{T+4+2*w}, v{T+12}')
    a(f'v_mul_f32 v{T+14}, v{T+4}, v{T+4}')
    for w in range(1, 4): a(f'v_fmac_f32 v{T+14}, v{T+4+2*w}, v{T+4+2*w}')
    a(f'v_fmamk_f32 v{T+13}, v{T+14}, {hx(128.0)}, v{T+13}')
    a(f'v_mov_b32 v{T+14}, {hx(1e-5)}')
    a(f'v_fmamk_f32 v{T+13}, v{T+13}, {hx(1.0/512)}, v{T+14}')
    a(f'v_rsq_f32 v{T+13}, v{T+13}')
    a(f'v_sub_f32 v{T+12}, v{T+12}, v{T}')
    a(f'v_mul_f32 v{T+12}, v{T+12}, v{T+13}')
    for r in range(8):
        a(f'v_pk_fma_f32 v[{ACC+2*r}:{ACC+2*r+1}], v[{ACC+2*r}:{ACC+2*r+1}], v[{T+12}:{T+13}], v[{T+12}:{T+13}] op_sel:[0,1,0] op_sel_hi:[1,1,0]')
    for r in range(8):
        a(f'v_pk_fma_f32 v[{ACC+2*r}:{ACC+2*r+1}], v[{ACC+2*r}:{ACC+2*r+1}], v[{48+2*r}:{49+2*r}], v[{32+2*r}:{33+2*r}]')
    for r in range(8): a(f'v_cvt_pk_bf16_f32 v{T+r}, v{ACC+2*r}, v{ACC+2*r+1}')
    for i in range(2): a(f'buffer_store_dwordx4 v[{T+4*i}:{T+4*i+3}], v2, {srd("WS")}, {sT1 if i else sT0} offen {SC}', 'h2')

def g1_ids(a):
    a(f's_cmp_ge_u32 {sRB}, 14'); a(f's_cselect_b32 {sA}, 1, 0')
    a(f's_mul_i32 {sB}, {sA}, 14'); a(f's_sub_u32 {sB}, {sRB}, {sB}')
    a(f's_lshl_b32 {sA}, {sA}, 2'); a(f's_lshl_b32 {sT0}, {sG}, 3'); a(f's_add_u32 {sA}, {sA}, {sT0}')
    a(f's_add_u32 {sA}, {sA}, {sW}')

def g1_wload(a):
    a.comment('w1 slice -> LDS')
    lane_fields(a, 2, [(0, 2, 16), (2, 2, 3584), (4, 2, 64)], 6)
    for p in range(1, 4): a(f'v_add_u32 v{2+p}, {p*(4*3584-1024)}, v2')
    a(f's_lshl_b32 {sT0}, {sB}, 8')
    a(f's_mul_i32 {sT1}, {sW}, {16*3584}'); a(f's_add_u32 {sT0}, {sT0}, {sT1}')
    a(f's_lshl_b32 {sT1}, {sW}, 12')
    for i in range(8):
        a(f's_add_u32 m0, {sT1}, {16384*i}')
        for p in range(4): a(dma(sT0, 2 + p, 'W1', 1024 * p), ('w1', i))
        if i < 7: a(f's_add_u32 {sT0}, {sT0}, {64*3584}')

def g1_bload(a):
    a('v_lshlrev_b32 v6, 4, v0')
    a(f's_lshl_b32 {sT0}, {sA}, 15'); a(f's_add_u32 {sT0}, {sT0}, {WS_H2}')
    for k in range(32):
        if k and k % 4 == 0: a(f's_add_u32 {sT0}, {sT0}, 4096')
        a(f'buffer_load_dwordx4 {ar(4*k,4)}, v6, {srd("WS")}, {sT0} offen offset:{1024*(k%4)} {SC}')

def phase_g1(a):
    tr_pattern(a, 7, 8, 2048)
    a('v_add_u32 v8, 0x10000, v7')
    a(f's_mul_i32 {sT2}, {sA}, {112*1024}'); a(f's_lshl_b32 {sT0}, {sB}, 13'); a(f's_add_u32 {sT2}, {sT2}, {sT0}')
    a(f's_add_u32 {sT2}, {sT2}, {WS_H1}'); a(f's_add_u32 {sT3}, {sT2}, 4096')
    S = Sched()
    acc = lambda j: 128 + 16 * j
    NF = 8; ring = [0]; LA = 5
    done = {}
    for grp in ((0, 1), (2,), (3,)):
        for k in range(32):
            for j in grp:
                f = 32 + 4 * (ring[0] % NF); ring[0] += 1
                g = len(S.m)
                for rr in range(2):
                    S.at(g - LA, f'ds_read_b64_tr_b16 {vr(f+2*rr,2)}, v{7 + k//16} offset:{4096*(k%16) + 256*j + 1024*rr}')
                S.mfma(mf(vr(acc(j), 16), vr(f, 4), ar(4 * k, 4), k == 0))
        for j in grp: done[j] = len(S.m)
    def silu(j, g0, span):
        ins = []
        for hf in range(2):
            o = acc(j) + 8 * hf; t = 64 + 16 * (j % 2) + 8 * hf; p = 96 + 8 * (j % 2) + 4 * hf
            for r in range(8): ins.append(f'v_exp_f32 v{t+r}, v{o+r}')
            for r in range(8): ins.append(f'v_add_f32 v{t+r}, 1.0, v{t+r}')
            for r in range(8): ins.append(f'v_rcp_f32 v{t+r}, v{t+r}')
            for r in range(8): ins.append(f'v_mul_f32 v{t+r}, v{o+r}, v{t+r}')
            for r in range(4): ins.append(f'v_cvt_pk_bf16_f32 v{p+r}, v{t+2*r}, v{t+2*r+1}')
            s_ = 2 * j + hf
            ins.append(f'buffer_store_dwordx4 v[{p}:{p+3}], v6, {srd("WS")}, {sT3 if s_ >= 4 else sT2} offen offset:{1024*(s_%4)} {SC}')
        for i, x in enumerate(ins): S.at(g0 + (i * span) // len(ins), x, 'h1')
    silu(0, 66, 21); silu(1, 87, 21); silu(2, 108, 20); silu(3, 128, 0)
    S.emit(a, 'gemm1')

def phase_g2(a):
    NS = 20
    lane_fields(a, 2, [(0, 2, 16), (2, 2, 1024), (4, 1, 64), (5, 1, 4096)], 6)
    for p in range(1, 4): a(f'v_add_u32 v{2+p}, {p*(8*1024-1024)}, v2')
    a(f's_and_b32 {sB}, {sRB}, 7')
    a(f's_lshr_b32 {sA}, {sRB}, 3'); a(f's_lshl_b32 {sT0}, {sG}, 2'); a(f's_add_u32 {sA}, {sA}, {sT0}')
    a(f's_mul_i32 {sC}, {sW}, {448*1024}'); a(f's_lshl_b32 {sT0}, {sB}, 7'); a(f's_add_u32 {sC}, {sC}, {sT0}')
    a(f's_mul_i32 {sD}, {sW}, 40960')
    a('v_lshlrev_b32 v6, 4, v0')
    a(f's_mul_i32 {sT2}, {sA}, {2*112*1024}'); a(f's_mul_i32 {sT0}, {sW}, {28*1024}'); a(f's_add_u32 {sT2}, {sT2}, {sT0}')
    a(f's_add_u32 {sT2}, {sT2}, {WS_H1}')
    tr_pattern(a, 7, 8, 1024)
    a(f'v_add_u32 v7, {sD}, v7')
    def w2_dma(n2):
        out = [f's_add_u32 m0, {sD}, {4096*(n2 % (NS//2))}', f's_add_u32 {sT1}, {sC}, {n2*32*1024}']
        return out + [dma(sT1, 2 + p, 'W2', 1024 * p) for p in range(4)]
    aB = lambda k, qt: 8 * k + 4 * qt
    def b_load(k):
        out = []
        for qt in range(2):
            out.append(f's_add_u32 {sT0}, {sT2}, {qt*112*1024 + 1024*k}')
            out.append(f'buffer_load_dwordx4 {ar(aB(k,qt),4)}, v6, {srd("WS")}, {sT0} offen {SC}')
        return out
    S = Sched()
    PF = 7
    def issue(n2, g, spread):
        ins = [(x, ('w2', n2)) for x in w2_dma(n2)] + [(x, None) for k in (2 * n2, 2 * n2 + 1) for x in b_load(k)]
        for i, (x, tg) in enumerate(ins): S.at(g + (i * spread) // len(ins), x, tg)
    for n2 in range(PF): issue(n2, -100, 0)
    vA = lambda k, j: 32 + 8 * (k % 4) + 4 * j
    acc = lambda j, qt: 128 + 16 * (2 * j + qt)
    def a_reads(k, g0):
        if k % 2 == 0: S.at(g0, lambda a, k=k: a.wait_tag(('w2', k // 2)))
        for j in range(2):
            for rr in range(2):
                S.at(g0 + 2 * j + rr, f'ds_read_b64_tr_b16 {vr(vA(k,j)+2*rr,2)}, v7 offset:{2048*(k % NS) + 256*j + 512*rr}', ('ar', k))
    a_reads(0, -100); a_reads(1, -100)
    for k in range(28):
        g0 = 4 * k
        for j in range(2):
            for qt in range(2):
                S.mfma(mf(vr(acc(j, qt), 16), vr(vA(k, j), 4), ar(aB(k, qt), 4), k == 0))
        if k + 2 < 28: a_reads(k + 2, g0 + 1)
        if k % 2 == 0 and k // 2 + PF < 14: issue(k // 2 + PF, g0 + 1, 8)
    def epi_loads(a):
        lane_fields(a, 8, [(0, 3, 128), (3, 3, 16)], 9)
        a(f's_lshl_b32 {sT0}, {sA}, 16'); a(f's_lshl_b32 {sT1}, {sW}, 14'); a(f's_add_u32 {sT0}, {sT0}, {sT1}')
        a(f's_lshl_b32 {sT1}, {sB}, 10'); a(f's_add_u32 {sT0}, {sT0}, {sT1}'); a(f's_add_u32 {sT0}, {sT0}, {WS_X1}')
        a(f'buffer_load_dwordx4 v[12:15], v8, {srd("WS")}, {sT0} offen {SC}')
        a(f's_add_u32 {sT0}, {sT0}, 8192')
        a(f'buffer_load_dwordx4 v[16:19], v8, {srd("WS")}, {sT0} offen {SC}')
        lane_fields(a, 9, [(0, 3, 32)], 10)
        a(f's_lshl_b32 {sT0}, {sB}, 8'); a(f's_add_u32 {sT0}, {sT0}, {WS_MOD + 2048*5}')
        for hf in range(2): a(f'buffer_load_dwordx4 v[{20+4*hf}:{23+4*hf}], v9, {srd("WS")}, {sT0} offen offset:{16*hf} {SC}')
    S.at(70, epi_loads)
    S.emit(a, 'gemm2')
    OCT = 1152; HALF = 8 * OCT; WV = 2 * HALF
    lane_fields(a, 10, [(3, 2, OCT), (5, 1, 144), (0, 3, 16)], 11)
    a(f's_mul_i32 {sT0}, {sW}, {WV}'); a(f'v_add_u32 v10, {sT0}, v10')
    lane_fields(a, 11, [(0, 3, 144), (3, 3, 16)], 9)
    a(f's_mul_i32 {sT0}, {sW}, {2*OCT}'); a(f'v_add_u32 v11, {sT0}, v11')
    a.wait_all(vm=False)
    a.raw('s_barrier')
    for j in range(2):
        for qt in range(2):
            for hf in range(2):
                for e in range(2):
                    o = acc(j, qt) + 8 * hf + 4 * e
                    a(f'ds_write_b128 v10, v[{o}:{o+3}] offset:{e*HALF + 4*qt*OCT + (4*j + 2*hf)*144}')
    a(f'v_add_u32 v9, {2*WV}, v11')
    lane_fields(a, 8, [(3, 3, 1024), (0, 3, 16)], 28)
    a(f's_lshl_b32 {sT0}, {sA}, 16'); a(f's_lshl_b32 {sT1}, {sW}, 14'); a(f's_add_u32 {sT0}, {sT0}, {sT1}')
    a(f's_lshl_b32 {sT1}, {sB}, 7'); a(f's_add_u32 {sT0}, {sT0}, {sT1}'); a(f's_add_u32 {sT1}, {sT0}, 8192')
    for r in range(8):
        a(f'v_lshlrev_b32 v{96+2*r}, 16, v{12+r}'); a(f'v_and_b32 v{97+2*r}, {sMASK}, v{12+r}')
    a.wait_all(vm=False)
    a.raw('s_barrier')
    for i in range(2):
        for w in range(4):
            for e in range(2):
                b = 32 + 32 * i + 8 * w + 4 * e
                a(f'ds_read_b128 v[{b}:{b+3}], v{11 if w < 2 else 9} offset:{(w%2)*WV + e*HALF + i*OCT}')
    for i in range(2):
        b = 32 + 32 * i
        for r in range(4): a(f'v_pk_add_f32 v[{b+2*r}:{b+2*r+1}], v[{b+2*r}:{b+2*r+1}], v[{b+8+2*r}:{b+9+2*r}]')
        for r in range(4): a(f'v_pk_add_f32 v[{b+16+2*r}:{b+17+2*r}], v[{b+16+2*r}:{b+17+2*r}], v[{b+24+2*r}:{b+25+2*r}]')
        for r in range(4): a(f'v_pk_add_f32 v[{b+2*r}:{b+2*r+1}], v[{b+2*r}:{b+2*r+1}], v[{b+16+2*r}:{b+17+2*r}]')
        for r in range(4): a(f'v_pk_fma_f32 v[{b+2*r}:{b+2*r+1}], v[{b+2*r}:{b+2*r+1}], v[{20+2*r}:{21+2*r}], v[{96+8*i+2*r}:{97+8*i+2*r}]')
        for r in range(4): a(f'v_cvt_pk_bf16_f32 v{b+8+r}, v{b+2*r}, v{b+2*r+1}')
        a(f'buffer_store_dwordx4 v[{b+8}:{b+11}], v8, {srd("OUT")}, {sT1 if i else sT0} offen')

def kernel(name, body):
    a = Asm(); a.uid = kernel.uid
    body(a, name + '_end')
    kernel.uid = a.uid
    print(name, 'nop states', a.nnop, 'lines', len(a.lines))
    return f'.globl {name}\n.p2align 8\n.type {name},@function\n{name}:\n' + a.text()
kernel.uid = 0

def desc(name):
    return f""".p2align 6
.amdhsa_kernel {name}
  .amdhsa_next_free_vgpr 512
  .amdhsa_next_free_sgpr 102
  .amdhsa_accum_offset 256
  .amdhsa_group_segment_fixed_size 0
  .amdhsa_kernarg_size 104
  .amdhsa_user_sgpr_count 2
  .amdhsa_user_sgpr_kernarg_segment_ptr 1
  .amdhsa_system_sgpr_workgroup_id_x 1
.end_amdhsa_kernel
"""

def k_mod(a, end):
    prologue(a, ['C', 'WM', 'WS'], 192, end)
    phase_mod(a)
    a.label(end); a.raw('s_endpgm')
def k_main(a, end):
    prologue(a, ['X', 'WQ', 'K', 'V', 'WO', 'WS'], 256, end)
    phase_main_setup(a)
    phase_ln1_stats(a)
    phase_ln1_modload(a)
    phase_ln1_apply(a)
    phase_main(a, 'L_slow', 'L_join')
    a.label(end); a.raw('s_endpgm')
    slow_path(a, 'L_slow', 'L_join')
def k_red(a, end):
    prologue(a, ['X', 'WS'], 256, end)
    phase_red_pre(a)
    phase_red(a, 0)
    a.label(end); a.raw('s_endpgm')
def k_g1(a, end):
    prologue(a, ['W1', 'WS'], 224, end)
    g1_ids(a); g1_wload(a); g1_bload(a)
    a.wait_tag(('w1', 7)); a.raw('s_barrier')
    phase_g1(a)
    a.label(end); a.raw('s_endpgm')
def k_g2(a, end):
    prologue(a, ['W2', 'WS', 'OUT'], 256, end)
    phase_g2(a)
    a.label(end); a.raw('s_endpgm')

def main(out):
    ks = [('mod_kernel', k_mod, 192, 1024), ('main_kernel', k_main, 256, LDS_BYTES), ('red_kernel', k_red, 256, 1024),
          ('g1_kernel', k_g1, 224, 131072), ('g2_kernel', k_g2, 256, LDS_BYTES)]
    ref = open(f'cdna_kernels/{NAME}.s.ref').read().splitlines()
    head = [l for l in ref if l.startswith(';') and '@launch' not in l and 'Override' not in l and 'grid=ceil' not in l]
    s = '\n'.join(head) + '\n'
    for n, _, g, lds in ks: s += f'; @launch kernel={n} grid=({g},1,1) block=(256,1,1) lds={lds}\n'
    s += '.amdgcn_target "amdgcn-amd-amdhsa--gfx950"\n.text\n'
    for n, b, _, _ in ks: s += kernel(n, b)
    s += '.section .rodata,"a"\n'
    for n, *_ in ks: s += desc(n)
    open(out, 'w').write(s)

if __name__ == '__main__':
    main(sys.argv[1] if len(sys.argv) > 1 else f'cdna_kernels/{NAME}.s')
```

```python
import sys, struct, math
from asmlib import Asm, Sched

NAME = 'adaLN_cond__sliding_block_cached__dense_activation_silu__prompt'
def f2u(x): return struct.unpack('<I', struct.pack('<f', x))[0]
def hx(x): return '0x%08x' % f2u(x)
LOG2E = 1.4426950408889634

SRD = dict(X=4, K=8, V=12, WQ=16, WO=20, W1=24, W2=28, C=32, WM=36, OUT=40, DBG=44, WS=48)
KOFF = dict(X=0, K=8, V=16, WQ=24, WO=32, W1=48, W2=56, C=64, WM=72, OUT=80, DBG=88, WS=96)
SIZE = dict(X=2048*512*2, K=8*2048*128*2, V=8*2048*128*2, WQ=512*4096*2, WO=4096*512*2, W1=512*1792*2,
            W2=1792*512*2, C=1024, WM=512*3072*2, OUT=2048*512*2, DBG=256, WS=1 << 28)
def srd(n): return f's[{SRD[n]}:{SRD[n]+3}]'
sW, sG, sRB = 's52', 's53', 's54'
sT0, sT1, sT2, sT3 = 's55', 's56', 's57', 's58'
sMASK = 's59'
sA, sB, sC, sD = 's60', 's61', 's62', 's63'
sST = 64

WS_MOD = 0
WS_FLG = 0x10000
WS_STAMP = 0x20000
WS_X1 = 0x200000
WS_H2 = 0x400000
WS_H1 = 0x600000
WS_P1 = 0x1000000
SC = 'sc1'

L_H0, L_B, L_A, L_W = 0, 32768, 65536, 98304
LDS_BYTES = 163840

def vr(b, n=1, k='v'): return f'{k}{b}' if n == 1 else f'{k}[{b}:{b+n-1}]'
def ar(b, n=1): return vr(b, n, 'a')

OPT = dict(stamps=0, r2=0)
stamp_names = []
def stamp(a, name):
    if not OPT['stamps']: return
    i = len(stamp_names[-1]); stamp_names[-1].append(name)
    a('s_memrealtime s[100:101]')
    a(f'v_writelane_b32 v1, s100, {i}')
    a('s_memtime s[100:101]')
    a(f'v_writelane_b32 v1, s100, {32+i}')
def stamp_flush(a):
    if not OPT['stamps']: return
    a.wait_all()
    stamp(a, 'end')
    a(f's_lshl_b32 s100, s2, 10'); a(f's_lshl_b32 s101, {sW}, 8'); a('s_add_u32 s100, s100, s101')
    a(f's_add_u32 s100, s100, {WS_STAMP + 0x40000*(len(stamp_names)-1)}')
    a('v_lshlrev_b32 v0, 2, v0')
    a(f'buffer_store_dword v1, v0, {srd("WS")}, s100 offen')

def prologue(a, names, nwg, endlabel):
    a.raw(f's_cmp_ge_u32 s2, {nwg}')
    a.raw(f's_cbranch_scc1 {endlabel}')
    stamp_names.append([])
    if OPT['stamps']: a('s_memrealtime s[98:99]'); a('s_memtime s[96:97]')
    for n in names:
        a(f's_load_dwordx2 s[{SRD[n]}:{SRD[n]+1}], s[0:1], {KOFF[n]}')
    for n in names:
        a(f's_mov_b32 s{SRD[n]+2}, {SIZE[n]}')
        a(f's_mov_b32 s{SRD[n]+3}, 0x20000')
    a('v_lshrrev_b32 v1, 6, v0')
    if OPT['r2']:
        a(f's_and_b32 {sG}, s2, 3'); a(f's_lshl_b32 {sG}, {sG}, 1'); a(f's_bfe_u32 {sT0}, s2, 0x10003'); a(f's_add_u32 {sG}, {sG}, {sT0}')
        a(f's_bfe_u32 {sT0}, s2, 0x10002'); a(f's_lshl_b32 {sT0}, {sT0}, 4'); a(f's_lshr_b32 {sRB}, s2, 4'); a(f's_add_u32 {sRB}, {sRB}, {sT0}')
    else:
        a(f's_and_b32 {sG}, s2, 7')
        a(f's_lshr_b32 {sRB}, s2, 3')
    a(f's_lshl_b32 s3, {sRB}, 3'); a(f's_add_u32 s3, s3, {sG}')
    a(f'v_readfirstlane_b32 {sW}, v1')
    a('v_and_b32 v0, 63, v0')
    a(f's_mov_b32 {sMASK}, 0xffff0000')
    if OPT['stamps']:
        stamp_names[-1].append('start')
        a('v_writelane_b32 v1, s98, 0'); a('v_writelane_b32 v1, s96, 32')
        stamp(a, 'args')

def lane_fields(a, dst, spec, tmp, add=None):
    first = True
    for sh, nb, sc in spec:
        t = dst if first else tmp
        a(f'v_bfe_u32 v{t}, v0, {sh}, {nb}')
        if sc & (sc - 1) == 0:
            if first:
                if sc > 1: a(f'v_lshlrev_b32 v{t}, {sc.bit_length()-1}, v{t}')
            else: a(f'v_lshl_add_u32 v{dst}, v{t}, {sc.bit_length()-1}, v{dst}')
        else:
            a(f'v_mul_u32_u24 v{t}, {sc}, v{t}')
            if not first: a(f'v_add_u32 v{dst}, v{dst}, v{t}')
        first = False
    if add is not None: a(f'v_add_u32 v{dst}, {add}, v{dst}')

def tr_pattern(a, dst, tmp, hhmul):
    lane_fields(a, dst, [(5, 1, hhmul), (2, 2, 64), (4, 1, 32), (0, 1, 16), (1, 1, 8)], tmp)

def dma(soff, voff, srdn, imm):
    return f'buffer_load_dwordx4 v{voff}, {srd(srdn)}, {soff} offen offset:{imm} lds'

def x_load(i):
    out = []
    if i and i % 4 == 0: out.append(f's_add_u32 {sT2}, {sT2}, 4096')
    out.append(f'buffer_load_dwordx4 v[{64+4*i}:{67+4*i}], v{vT}, {srd("X")}, {sT2} offen offset:{1024*(i%4)}')
    return out

def x_setup(a):
    a(f's_lshl_b32 {sT2}, {sRB}, 16')
    a(f's_lshl_b32 {sT1}, {sW}, 14')
    a(f's_add_u32 {sT2}, {sT2}, {sT1}')
    a(f'v_lshlrev_b32 v{vT}, 4, v0')

def set_exec(a, nl):
    if nl < 32: a.raw(f's_mov_b64 exec, {hex((1 << nl) - 1)}')
    else: a.raw('s_mov_b32 exec_lo, -1'); a.raw(f's_mov_b32 exec_hi, {hex((1 << (nl - 32)) - 1)}')

def touch(a, n, spec, nl, soff, dst, tmp):
    lane_fields(a, tmp, spec, dst)
    if nl < 64: set_exec(a, nl)
    a.raw(f'buffer_load_dword a255, v{tmp}, {srd(n)}, {soff} offen'); a.fake_vm(1, None)
    if nl < 64: a('s_mov_b64 exec, -1')

def phase_mod(a):
    a.comment('mod GEMV')
    W = 128; SL = 32; SH = 48; ACC = 8
    a(f's_lshl_b32 {sA}, s2, 7')
    a(f's_mul_i32 {sT1}, {sW}, {128*6144}')
    a(f's_add_u32 {sA}, {sA}, {sT1}')
    lane_fields(a, 2, [(3, 3, 16 * 6144), (0, 3, 16)], 3)
    lane_fields(a, 3, [(3, 3, 32)], 4)
    a(f's_lshl_b32 {sB}, {sW}, 8')
    for i in range(2): a(f'buffer_load_dwordx4 v[{16+4*i}:{19+4*i}], v3, {srd("C")}, {sB} offen offset:{16*i}')
    for i in range(16):
        a(f'buffer_load_dwordx4 v[{W+4*i}:{W+4*i+3}], v2, {srd("WM")}, {sA} offen')
        if i < 15: a(f's_add_u32 {sA}, {sA}, 6144')
    for i in range(8): a(f'v_mov_b32 v{ACC+i}, 0')
    lab = a.newlabel('nz')
    a('s_cmp_ge_u32 s2, 16')
    a.raw(f's_cbranch_scc1 {lab}')
    a.raw(f's_lshl_b32 {sT0}, s2, 12'); a.raw(f's_lshl_b32 {sT1}, {sW}, 10'); a.raw(f's_add_u32 {sT0}, {sT0}, {sT1}')
    a.raw(f's_add_u32 {sT0}, {sT0}, {WS_FLG}')
    a.raw(f'buffer_store_dwordx4 v[{ACC}:{ACC+3}], v{vT}, {srd("WS")}, {sT0} offen {SC}')
    a.label(lab)
    a.vm_maybe()
    for r in range(8):
        a(f'v_lshlrev_b32 v{SH+2*r}, 16, v{16+r}'); a(f'v_and_b32 v{SH+2*r+1}, {sMASK}, v{16+r}')
    for i in range(16): a(f'v_mul_f32 v{SL+i}, {hx(-LOG2E)}, v{SH+i}')
    for i in range(16): a(f'v_exp_f32 v{SL+i}, v{SL+i}')
    for i in range(16): a(f'v_add_f32 v{SL+i}, 1.0, v{SL+i}')
    for i in range(16): a(f'v_rcp_f32 v{SL+i}, v{SL+i}')
    for i in range(16): a(f'v_mul_f32 v{SH+i}, v{SH+i}, v{SL+i}')
    for i in range(16): a(f'v_cvt_pk_bf16_f32 v{SL+i}, v{SH+i}, 0')
    for i in range(16): a(f'v_lshlrev_b32 v{SH+i}, 16, v{SL+i}')
    for i in range(16):
        for r in range(4):
            a(f'v_dot2c_f32_bf16 v{ACC+2*r}, v{W+4*i+r}, v{SL+i}')
            a(f'v_dot2c_f32_bf16 v{ACC+2*r+1}, v{W+4*i+r}, v{SH+i}')
        if i < 8:
            for t in x_load(i): a(t)
    for i in range(4): a(f'v_permlane32_swap_b32 v{ACC+i}, v{ACC+4+i}')
    for i in range(4): a(f'v_add_f32 v{ACC+i}, v{ACC+i}, v{ACC+4+i}')
    for i in range(2): a(f'v_permlane16_swap_b32 v{ACC+i}, v{ACC+2+i}')
    for i in range(2): a(f'v_add_f32 v{ACC+i}, v{ACC+i}, v{ACC+2+i}')
    lane_fields(a, 4, [(0, 3, 32), (4, 2, 8)], 5)
    a(f'v_add_u32 v4, {sB}, v4')
    for i in range(2): a(f'v_add_f32_dpp v{ACC+i}, v{ACC+i}, v{ACC+i} row_ror:8 row_mask:0xf bank_mask:0xf')
    a(f'ds_write_b64 v4, v[{ACC}:{ACC+1}]')
    a('v_lshlrev_b32 v4, 2, v0')
    a(f's_lshr_b32 {sT1}, s2, 3')
    a(f's_mov_b32 {sB}, {hx(LOG2E/math.sqrt(128.0))}')
    a(f's_cmp_eq_u32 {sT1}, 2'); a(f's_cselect_b32 {sB}, 1.0, {sB}')
    a(f's_cmp_ge_u32 {sT1}, 3'); a(f's_cselect_b32 {sB}, {hx(-LOG2E)}, {sB}')
    a(f's_cmp_eq_u32 {sT1}, 5'); a(f's_cselect_b32 {sB}, {hx(-1.0/LOG2E)}, {sB}')
    a(f's_mov_b32 {sC}, 0')
    a(f's_cmp_eq_u32 {sT1}, 1'); a(f's_cselect_b32 {sC}, 1.0, {sC}')
    a(f's_cmp_eq_u32 {sT1}, 4'); a(f's_cselect_b32 {sC}, 1.0, {sC}')
    a.raw('s_waitcnt vmcnt(8) lgkmcnt(0)'); a.lg = []
    a.raw('s_barrier')
    lab = a.newlabel('modskip')
    a(f's_cmp_lg_u32 {sW}, 0')
    a.raw(f's_cbranch_scc1 {lab}')
    save = list(a.vm)
    for i in range(4): a(f'ds_read_b32 v{ACC+i}, v4 offset:{256*i}')
    a(f's_lshl_b32 {sT1}, s2, 8')
    a(f's_add_u32 {sT1}, {sT1}, {WS_MOD}')
    a(f'v_add_f32 v8, v8, v9'); a('v_add_f32 v10, v10, v11'); a('v_add_f32 v8, v8, v10')
    a('v_cvt_pk_bf16_f32 v8, v8, v8'); a(f'v_and_b32 v8, {sMASK}, v8')
    a(f'v_add_f32 v8, {sC}, v8')
    a('v_cvt_pk_bf16_f32 v8, v8, v8'); a(f'v_and_b32 v8, {sMASK}, v8')
    a(f'v_mul_f32 v8, {sB}, v8')
    a(f'buffer_store_dword v8, v4, {srd("WS")}, {sT1} offen {SC}')
    a(f's_lshl_b32 {sT1}, s2, 2'); a('s_cmp_ge_u32 s2, 16'); a(f's_cselect_b32 {sT0}, 64, 0'); a(f's_add_u32 {sT1}, {sT1}, {sT0}')
    a('v_mov_b32 v9, 1')
    a('s_mov_b64 exec, 1')
    a.wait_all()
    a(f'buffer_store_dword v9, v0, {srd("DBG")}, {sT1} offen {SC}')
    a('s_mov_b64 exec, -1')
    a.label(lab)
    a.vm = save
    a.vm_maybe()
    for i in range(8, 16):
        for t in x_load(i): a(t)

def spin(a, srdn, soff, vaddr, vdst, nl, head=None):
    loop, out = a.newlabel('poll'), a.newlabel('pollout')
    set_exec(a, nl)
    a.raw('s_mov_b32 s98, 0x400000')
    a.label(loop)
    a.raw(f'buffer_load_dword v{vdst}, v{vaddr}, {srd(srdn)}, {soff} offen {SC}')
    a.raw('s_sub_u32 s98, s98, 1')
    a.raw(f's_cbranch_scc1 {out}')
    a.raw('s_waitcnt vmcnt(0)')
    a.raw(f'v_cmp_eq_u32 vcc, 0, v{vdst}')
    a.raw('s_nop 0')
    a.raw(f's_cbranch_vccnz {loop}')
    a.label(out)
    a.raw('s_waitcnt vmcnt(0)')
    a.raw('s_mov_b64 exec, -1')

def handoff(a, tag, sig, wait):
    if tag is not None: a.wait_tag(tag)
    a.wait_all(vm=False)
    a.raw('s_barrier')
    l0, l1 = a.newlabel('ho'), a.newlabel('ho')
    if sig:
        nl, vaddr, soff = sig
        a(f's_cmp_lg_u32 {sW}, 0')
        a.raw(f's_cbranch_scc1 {l0}')
        a.raw(f's_mov_b64 exec, {hex((1 << nl) - 1)}')
        a.raw(f'buffer_store_dword v{vONE}, v{vaddr}, {srd("WS")}, {soff} offen {SC}')
        a.raw('s_mov_b64 exec, -1')
        a.label(l0)
        a.vm_maybe()
    if wait:
        nl, soff = wait
        a(f's_cmp_lg_u32 {sW}, 1')
        a.raw(f's_cbranch_scc1 {l1}')
        spin(a, 'WS', soff, vL4, vPOLL, nl)
        a.label(l1)
        a.raw('s_barrier')

vW4 = 2
vKD = 6
vVD = 10
vTRA, vTRB, vTRV = 11, 12, 13
vK = 14
vH = 22
vL = 26
vT = 28
vS = 32
vP = 96
vO = 128
vSIG, vPOLL, vONE, vL4 = 22, 23, 24, 25
sSIG, sWAIT, sN, sL = 's64', 's65', 's99', 's3'
aQ = 0
aF = 64

def slot_addr(sig):
    return (vTRA, 16384 * (sig + 2)) if sig < 2 else (vTRB, 16384 * (sig - 2))
def slot_lds(sig): return L_A + 16384 * sig

def butterfly16(a, r, t):
    for i in range(8): a(f'v_permlane32_swap_b32 v{r+i}, v{r+i+8}')
    for i in range(8): a(f'v_add_f32 v{r+i}, v{r+i}, v{r+i+8}')
    for i in range(4): a(f'v_permlane16_swap_b32 v{r+i}, v{r+i+4}')
    for i in range(4): a(f'v_add_f32 v{r+i}, v{r+i}, v{r+i+4}')
    for sh in (8, 4, 2, 1):
        for i in range(4):
            a(f'v_add_f32_dpp v{r+i}, v{r+i}, v{r+i} row_ror:{sh} row_mask:0xf bank_mask:0xf')

def sbc(i):
    b = (sST + i) & ~1
    return f's[{b}:{b+1}]', ('op_sel_hi:[1,0]' if (sST + i) % 2 == 0 else 'op_sel:[0,1] op_sel_hi:[1,1]')

def wq_dma(k):
    sig = (k + 4) % 6
    out = [f's_add_u32 m0, {sC}, {slot_lds(sig)}']
    out += [dma(sA, vW4 + p, 'WQ', 1024 * p) for p in range(4)]
    out += [f's_add_u32 {sA}, {sA}, {16*8192}']
    return out

def kv_dma(t, which):
    buf = (L_A if t % 2 == 0 else L_B) + (0 if which == 'K' else 16384)
    unit = 2 * t + 1 if which == 'K' else 2 * t - 1
    def kk(a, u, em):
        em(f's_add_u32 {sT0}, {sD}, {u*8192}')
        for p in range(4): em(dma(sT0, vKD + p, 'K', 1024 * p))
    def vv(a, u, em):
        em(f's_add_u32 {sT0}, {sD}, {u*8192}')
        for p in range(4): em(dma(sT0, vVD, 'V', 1024 * p))
    tag = ('kv', t)
    if (t, which) in ((0, 'V'), (7, 'K')):
        def f(a):
            l1, l2 = a.newlabel('kv'), a.newlabel('kv')
            a(f's_add_u32 m0, {sC}, {buf}')
            a(f's_cmp_lt_u32 {sW}, 2')
            a.raw(f's_cbranch_scc1 {l1}')
            vv(a, -1 if t == 0 else 14, a.raw)
            a.raw(f's_branch {l2}')
            a.label(l1)
            kk(a, 0 if t == 0 else 15, a.raw)
            a.label(l2)
            a.fake_vm(4, tag)
        return [f]
    out = [f's_add_u32 m0, {sC}, {buf}']
    (kk if which == 'K' else vv)(None, unit, out.append)
    return out

def k_off(u):
    if u == 0: return L_A + 16384 - L_B
    t = (u - 1) // 2
    return (L_A if t % 2 == 0 else L_B) + 8192 * ((u - 1) % 2) - L_B
def v_off(u):
    if u == 15: return 8192
    t = (u + 1) // 2
    return (L_A if t % 2 == 0 else L_B) + 16384 + 8192 * ((u + 1) % 2) - L_B

WO_SIG = [2, 3, 4, 5, -2, -1]
def wo_slot(n):
    m = n % 12
    return WO_SIG[m // 2], 2048 * (m % 2)
def wo_dma(n2):
    sig, _ = wo_slot(2 * n2)
    c, k = divmod(2 * n2, 32)
    out = [f's_add_u32 m0, {sC}, {slot_lds(sig)}', f's_add_u32 {sT1}, {sB}, {k*16*1024 + c*128}']
    out += [dma(sT1, vW4 + p, 'WO', 1024 * p) for p in range(4)]
    return out

def phase_main_setup(a):
    a.comment('address set-up')
    a(f's_lshl_b32 {sC}, {sW}, 12')
    lane_fields(a, vW4, [(0, 2, 16), (2, 2, 8192), (4, 2, 64)], vT + 1)
    for p in range(1, 4): a(f'v_add_u32 v{vW4+p}, {p*(4*8192-1024)}, v{vW4}')
    a(f's_lshl_b32 {sA}, {sG}, 10')
    a(f's_lshl_b32 {sT1}, {sW}, 8')
    a(f's_add_u32 {sA}, {sA}, {sT1}')
    a(f's_lshl_b32 {sD}, {sG}, 19')
    a(f's_add_u32 {sD}, {sD}, {1536*256}')
    a(f's_add_u32 {sD}, {sD}, {sC}')
    lane_fields(a, vVD, [(0, 2, 16), (2, 2, 256), (4, 2, 64)], vT + 1)
    a(f'v_lshrrev_b32 v{vT+1}, 4, v0')
    a(f'v_and_b32 v{vT+2}, 15, v0')
    a(f'v_xor_b32 v{vT+2}, v{vT+2}, v{vT+1}')
    a(f'v_lshlrev_b32 v{vT+2}, 4, v{vT+2}')
    a(f'v_lshl_add_u32 v{vKD}, v{vT+1}, 8, v{vT+2}')
    for p in range(1, 4): a(f'v_xor_b32 v{vKD+p}, {64*p}, v{vKD}')
    tr_pattern(a, vTRV, vT + 1, 2048)
    a(f's_add_u32 {sT0}, {sC}, {L_B}')
    a(f'v_add_u32 v{vTRA}, {sT0}, v{vTRV}')
    a(f'v_add_u32 v{vTRB}, 0x10000, v{vTRA}')
    a(f'v_add_u32 v{vTRV}, {L_B}, v{vTRV}')
    lane_fields(a, vT + 1, [(0, 2, 1), (3, 1, 4), (2, 1, 8), (4, 1, 16)], vT + 2)
    a(f'v_and_b32 v{vT+2}, 15, v{vT+1}')
    a(f'v_lshrrev_b32 v{vT+3}, 5, v0')
    a(f'v_xor_b32 v{vT+2}, v{vT+2}, v{vT+3}')
    a(f'v_lshlrev_b32 v{vT+2}, 4, v{vT+2}')
    a(f'v_lshl_add_u32 v{vK}, v{vT+1}, 8, v{vT+2}')
    a(f'v_add_u32 v{vK}, {L_B}, v{vK}')
    for s in range(1, 8): a(f'v_xor_b32 v{vK+s}, {32*s}, v{vK}')
    a(f'v_and_b32 v{vT+1}, 31, v0')
    a(f'v_xor_b32 v{vT+1}, v{vT+1}, v{vT+3}')
    a(f'v_lshlrev_b32 v{vT+1}, 4, v{vT+1}')
    a(f'v_lshl_add_u32 v{vH}, v{vT+3}, 9, v{vT+1}')
    for s in range(1, 4): a(f'v_xor_b32 v{vH+s}, {32*s}, v{vH}')

def phase_ln1_stats(a):
    a.comment('LN1 statistics')
    D = 128; R = 32
    for i in range(16):
        for r in range(4):
            a(f'v_lshlrev_b32 v{D+8*i+2*r}, 16, v{64+4*i+r}')
            a(f'v_and_b32 v{D+8*i+2*r+1}, {sMASK}, v{64+4*i+r}')
        d = D + 8 * i; t = 48 + 4 * (i % 2)
        a(f'v_pk_add_f32 v[{t}:{t+1}], v[{d}:{d+1}], v[{d+2}:{d+3}]')
        a(f'v_pk_add_f32 v[{t+2}:{t+3}], v[{d+4}:{d+5}], v[{d+6}:{d+7}]')
        a(f'v_pk_add_f32 v[{t}:{t+1}], v[{t}:{t+1}], v[{t+2}:{t+3}]')
        a(f'v_add_f32 v{R+i}, v{t}, v{t+1}')
    butterfly16(a, R, None)
    for i in range(4): a(f'v_mul_f32 v{R+i}, {hx(-1.0/512)}, v{R+i}')
    for q in range(4):
        for i in range(4): a(f'v_readlane_b32 s{sST+i+4*q}, v{R+i}, {16*q}')
    for i in range(16):
        d = D + 8 * i; t = 48 + 2 * (i % 2); so, md = sbc(i)
        for r in range(4): a(f'v_pk_add_f32 v[{d+2*r}:{d+2*r+1}], v[{d+2*r}:{d+2*r+1}], {so} {md}')
        a(f'v_pk_mul_f32 v[{t}:{t+1}], v[{d}:{d+1}], v[{d}:{d+1}]')
        for r in range(1, 4):
            a(f'v_pk_fma_f32 v[{t}:{t+1}], v[{d+2*r}:{d+2*r+1}], v[{d+2*r}:{d+2*r+1}], v[{t}:{t+1}]')
        a(f'v_add_f32 v{R+i}, v{t}, v{t+1}')
        if i % 2 == 0 and i // 2 < 6:
            for x in wq_dma(i // 2): a(x, ('wq', i // 2))
    butterfly16(a, R, None)
    a(f'v_mov_b32 v48, {hx(1e-5)}')
    for i in range(4): a(f'v_fmamk_f32 v{R+i}, v{R+i}, {hx(1.0/512)}, v48')
    for i in range(4): a(f'v_rsq_f32 v{R+i}, v{R+i}')
    for q in range(4):
        for i in range(4): a(f'v_readlane_b32 s{sST+i+4*q}, v{R+i}, {16*q}')
    for i in range(16):
        d = D + 8 * i; so, md = sbc(i)
        for r in range(4): a(f'v_pk_mul_f32 v[{d+2*r}:{d+2*r+1}], v[{d+2*r}:{d+2*r+1}], {so} {md}')
    a(f's_lshr_b32 {sT0}, {sW}, 1')
    a(f's_lshl_b32 {sT0}, {sT0}, 15')
    a(f's_and_b32 {sT1}, {sW}, 1')
    a(f's_lshl_b32 {sT1}, {sT1}, 8')
    a(f's_add_u32 {sT0}, {sT0}, {sT1}')
    lane_fields(a, 32, [(0, 6, 512), (0, 3, 16)], 33, add=sT0)
    for i in range(1, 8): a(f'v_xor_b32 v{32+i}, {16*i}, v32')

def phase_ln1_modload(a):
    a(f'v_lshlrev_b32 v{vT+1}, 5, v0')
    for vec in range(2):
        for hf in range(2):
            b = 40 + 8 * vec + 4 * hf
            a(f'buffer_load_dwordx4 v[{b}:{b+3}], v{vT+1}, {srd("WS")}, 0 offen offset:{WS_MOD + 2048*vec + 16*hf} {SC}')

def phase_ln1_apply(a):
    a.comment('h = xn*A + B -> LDS')
    D = 128
    for i in range(16):
        d = D + 8 * i; t = 64 + 4 * i
        for r in range(4):
            a(f'v_pk_fma_f32 v[{d+2*r}:{d+2*r+1}], v[{d+2*r}:{d+2*r+1}], v[{48+2*r}:{49+2*r}], v[{40+2*r}:{41+2*r}]')
        for r in range(4): a(f'v_cvt_pk_bf16_f32 v{t+r}, v{d+2*r}, v{d+2*r+1}')
        a(f'ds_write_b128 v{32+(i&7)}, v[{t}:{t+3}] offset:{128*(i>>3)}')

def mf(d, A, B, first):
    return f'v_mfma_f32_32x32x16_bf16 {d}, {A}, {B}, {"0" if first else d}'

def o_convert(j, qt):
    o = vO + 16 * (2 * j + qt); out = []
    for hf in range(2):
        t = vS + 8 * ((2 * j + qt) % 4) + 4 * hf
        sel = 'op_sel_hi:[1,0]' if qt == 0 else 'op_sel:[0,1] op_sel_hi:[1,1]'
        for r in range(4):
            b = o + 8 * hf + 2 * r
            out.append(f'v_pk_mul_f32 v[{b}:{b+1}], v[{b}:{b+1}], v[{vL}:{vL+1}] {sel}')
        for r in range(4):
            b = o + 8 * hf + 2 * r
            out.append(f'v_cvt_pk_bf16_f32 v{t+r}, v{b}, v{b+1}')
        out.append(f'ds_write_b128 v{vH+qt}, v[{t}:{t+3}] offset:{1024*(2*j+hf)}')
    return out

def l_total():
    out = []
    for qt in range(2): out.append(f'v_mov_b32 v{vT+qt}, v{vL+qt}')
    for qt in range(2): out.append(f'v_permlane32_swap_b32 v{vL+qt}, v{vT+qt}')
    for qt in range(2): out.append(f'v_add_f32 v{vL+qt}, v{vL+qt}, v{vT+qt}')
    return out

def phase_main(a, slow_label, join_label):
    S = Sched()
    aA = lambda k, j: aF + 24 * (k % 2) + 4 * j
    aB = lambda k, qt: aF + 24 * (k % 2) + 16 + 4 * qt
    def q_reads(k, g0):
        reg, base = slot_addr((k + 4) % 6)
        S.at(g0, lambda a, k=k: a.wait_tag(('wq', k)))
        for qt in range(2):
            S.at(g0 + qt, f'ds_read_b128 {ar(aB(k,qt),4)}, v{vH+(k&3)} offset:{32768*qt + 1024*k}', ('qr', k))
        for j in range(4):
            for rr in range(2):
                S.at(g0 + min(2 * j + rr, 6), f'ds_read_b64_tr_b16 {ar(aA(k,j)+2*rr,2)}, v{reg} offset:{base + 256*j + 1024*rr}', ('qr', k))
    S.at(0, lambda a: (a.wait_all(vm=False), a.raw('s_barrier')))
    q_reads(0, -100)
    for k in range(32):
        g0 = 8 * k
        for j in range(4):
            for qt in range(2):
                S.mfma(mf(vr(vO + 16 * (2 * j + qt), 16), ar(aA(k, j), 4), ar(aB(k, qt), 4), k == 0))
        if k + 1 < 32: q_reads(k + 1, g0 + 1)
        nxt = None
        if k + 6 < 32: nxt = (wq_dma(k + 6), ('wq', k + 6))
        elif k == 26: nxt = (kv_dma(0, 'K'), ('kv', 0))
        elif k == 27: nxt = (kv_dma(0, 'V'), ('kv', 0))
        if nxt:
            S.group(g0 + 2, nxt[0], nxt[1], pre=lambda a, k=k: a.wait_lds_tag(('qr', k)))
    G = 256
    ring = [0]
    NF = 10
    def newfrag():
        r = aF + 48 + 4 * (ring[0] % NF); ring[0] += 1; return r
    LA = 8
    sreg = lambda u, qt: vS + 32 * (u % 2) + 16 * qt
    preg = lambda u, qt, sp: vP + 16 * (u % 2) + 8 * qt + 4 * sp
    last_read = {}; first_read = {}
    def note(t, g):
        last_read[t] = max(last_read.get(t, -1), g); first_read[t] = min(first_read.get(t, 10**9), g)
    reads = []
    def qk(u):
        t = 0 if u == 0 else (u - 1) // 2
        for s in range(8):
            f = newfrag(); g = len(S.m)
            reads.append((g, t, [f'ds_read_b128 {ar(f,4)}, v{vK+s} offset:{k_off(u)}']))
            for qt in range(2):
                S.mfma(mf(vr(sreg(u, qt), 16), ar(f, 4), ar(aQ + 32 * qt + 4 * s, 4), s == 0))
    def pv(u):
        t = 7 if u == 15 else (u + 1) // 2
        for j in range(4):
            for sp in range(2):
                f = newfrag(); g = len(S.m)
                reads.append((g, t, [f'ds_read_b64_tr_b16 {ar(f+2*rr,2)}, v{vTRV} offset:{v_off(u) + 4096*sp + 256*j + 1024*rr}' for rr in range(2)]))
                for qt in range(2):
                    S.mfma(mf(vr(vO + 16 * (2 * j + qt), 16), ar(f, 4), vr(preg(u, qt, sp), 4), u == 0 and sp == 0))
    qk(0)
    slot_g = {}
    for u in range(16):
        slot_g[u] = len(S.m)
        if u < 15: qk(u + 1)
        if u >= 1: pv(u - 1)
    slot_g[16] = len(S.m)
    pv(15)
    Gend = len(S.m)
    BD = 3
    prev_t = -1; hold = 0
    for g, t, txt in reads:
        gi = g - LA
        if t != prev_t:
            gb = (G - 4) if t == 0 else gi + BD
            def bar(a, t=t):
                a.wait_tag(('kv', t)); a.wait_all(vm=False); a.raw('s_barrier')
            S.at(gb, bar)
            hold = gb
            if t + 1 <= 7:
                S.group(gb + 6, kv_dma(t + 1, 'K') + kv_dma(t + 1, 'V'), ('kv', t + 1), stride=2)
            if t in (5, 6):
                for n2 in (2 * t - 10, 2 * t - 9): S.group(slot_g[2 * t + 1], wo_dma(n2), ('wo', n2), stride=2)
            prev_t = t
        for i, x in enumerate(txt): S.at(max(gi + i, hold), x)
    for s in range(8):
        for qt in range(2):
            o = vO + 16 * (2 * (s // 2) + qt) + 8 * (s % 2)
            g = G + 2 * s + qt - (0 if s == 0 else 1)
            tt = vP + 4 * ((2 * s + qt) % 4)
            for r in range(4): S.at(g, f'v_cvt_pk_bf16_f32 v{tt+r}, v{o+2*r}, v{o+2*r+1}')
            for r in range(4): S.at(g, f'v_accvgpr_write_b32 a{aQ+32*qt+4*s+r}, v{tt+r}')
    for u in range(16):
        g0, g1 = slot_g[u], slot_g[u + 1]
        n = g1 - g0
        st = 2 if u == 0 else 0
        if u == 15: g0 -= 12; n += 12
        for e in range(32):
            qt, r = divmod(e, 16); reg = sreg(u, qt) + r
            ge = g0 + st + (e * (n - st - 1)) // 32
            S.at(ge, f'v_exp_f32 v{reg}, v{reg}')
            if u == 0 and r == 1: S.at(ge + 1, f'v_add_f32 v{vL+qt}, v{reg-1}, v{reg}')
            elif not (u == 0 and r == 0): S.at(ge + 1, f'v_add_f32 v{vL+qt}, v{vL+qt}, v{reg}')
            if r % 2 == 1:
                S.at(max(ge + 1, slot_g[u]), f'v_cvt_pk_bf16_f32 v{preg(u,qt,r//8) + (r%8)//2}, v{reg-1}, v{reg}')
    gw = slot_g[9]
    def wo_setup(a):
        lane_fields(a, vW4, [(0, 2, 16), (2, 2, 1024), (4, 1, 64), (5, 1, 4096)], vT + 1)
    S.at(gw, wo_setup)
    for p in range(1, 4): S.at(gw + 1 + p, f'v_add_u32 v{vW4+p}, {p*(8*1024-1024)}, v{vW4}')
    S.at(gw + 5, f's_lshl_b32 {sB}, {sG}, 19'); S.at(gw + 5, f's_lshl_b32 {sT1}, {sW}, 8'); S.at(gw + 6, f's_add_u32 {sB}, {sB}, {sT1}')
    S.at(gw + 7, f'v_bfe_u32 v{vT}, v0, 5, 1'); S.at(gw + 8, f'v_lshlrev_b32 v{vT}, 10, v{vT}')
    S.at(gw + 9, f'v_sub_u32 v{vTRA}, v{vTRA}, v{vT}'); S.at(gw + 10, f'v_sub_u32 v{vTRB}, v{vTRB}, v{vT}')
    S.at(gw + 11, f's_lshl_b32 {sT1}, {sW}, 13'); S.at(gw + 11, f'v_lshlrev_b32 v{vH+2}, 4, v0')
    S.at(gw + 12, f'v_add_u32 v{vH}, {sT1}, v{vH+2}'); S.at(gw + 13, f'v_add_u32 v{vH+1}, {L_A}, v{vH}')
    S.at(gw + 14, f'v_add_u32 v{vH+3}, {L_A}, v{vH+2}')
    S.at(slot_g[4] - 2, f'v_lshlrev_b32 v{vT+2}, 2, v0'); S.at(slot_g[4] - 1, f'v_and_b32 v{vT+2}, 0x7f, v{vT+2}')
    S.at(slot_g[4] - 1, f'v_add_u32 v{vT+2}, 128, v{vT+2}')
    S.at(slot_g[4], f'buffer_load_dword v{vT+3}, v{vT+2}, {srd("DBG")}, 0 offen {SC}')
    def chk2(a):
        a(f'v_cmp_eq_u32 vcc, 0, v{vT+3}')
        a('s_cbranch_vccnz L_mod2')
        a.label('L_mod2j')
    S.at(slot_g[6], chk2)
    def pf_wo(a):
        rows = 8 if OPT['r2'] else 4
        a(f's_mul_i32 {sT1}, s80, {rows*1024}'); a(f's_lshl_b32 {sT2}, {sG}, 19'); a(f's_add_u32 {sT1}, {sT1}, {sT2}')
        touch(a, 'WO', [(0, 6, 128)], rows * 8, sT1, vT, vT + 1)
    S.at(slot_g[1], pf_wo)
    def pf_mlp(n, i):
        def f(a):
            a(f's_mul_i32 {sT1}, {sN}, {112*128}'); a(f's_add_u32 {sT1}, {sT1}, {56*128*i}')
            touch(a, n, [(0, 6, 128)], 56, sT1, vT, vT + 1)
        return f
    for q, (n, i) in enumerate((('W1', 0), ('W1', 1), ('W2', 0), ('W2', 1))): S.at(slot_g[3 + 2 * q] + 20, pf_mlp(n, i))
    g = slot_g[16]
    for i, x in enumerate(l_total()): S.at(g + 1 + i // 2, x)
    def check(a):
        a(f's_mov_b32 {sT0}, {hx(2.0**40)}')
        a(f'v_mov_b32 v{vT+2}, {hx(2.0**-40)}')
        for qt in range(2): a(f'v_med3_f32 v{vT+qt}, v{vL+qt}, v{vT+2}, {sT0}')
        a(f'v_cmp_neq_f32 vcc, v{vT}, v{vL}')
        a(f'v_cmp_neq_f32 s[96:97], v{vT+1}, v{vL+1}')
        for qt in range(2): a(f'v_rcp_f32 v{vL+qt}, v{vL+qt}')
        a('s_or_b64 vcc, vcc, s[96:97]')
        a.raw(f's_cbranch_vccnz {slow_label}')
    S.at(g + 4, check)
    for j in range(4):
        for qt in range(2):
            ins = o_convert(j, qt)
            gs = g + 4 * j + 6 + 2 * qt
            for i, x in enumerate(ins): S.at(min(gs + i // 9, Gend), x)
    for nm, gg in (('q16', 128), ('qend', 256), ('a4', slot_g[4]), ('a8', slot_g[8]), ('a12', slot_g[12]), ('a16', slot_g[16])):
        S.at(gg, lambda a, nm=nm: stamp(a, nm))
    S.emit(a, 'qproj+attn')
    a.label(join_label)
    S = Sched()
    vA = lambda n, j: 32 + 8 * (n % 4) + 4 * j
    aB2 = lambda k, qt: 128 * qt + 4 * k
    acc = lambda c, j, qt: 128 + 64 * c + 16 * (2 * j + qt)
    def a_reads(n, g0):
        sig, o = wo_slot(n); reg, base = slot_addr(sig)
        if n % 2 == 0: S.at(g0, lambda a, n=n: a.wait_tag(('wo', n // 2)))
        for j in range(2):
            for rr in range(2):
                S.at(g0 + 2 * j + rr, f'ds_read_b64_tr_b16 {vr(vA(n,j)+2*rr,2)}, v{reg} offset:{base + o + 256*j + 512*rr}', ('ar', n))
    def b_reads(k, g0):
        for qt in range(2):
            S.at(g0 + 2 * qt, f'ds_read_b128 {ar(aB2(k,qt),4)}, v{vH+2+qt} offset:{1024*k}')
    S.at(0, lambda a: (a.wait_all(vm=False), a.raw('s_barrier')))
    b_reads(0, -100); a_reads(0, -100); b_reads(1, -100); a_reads(1, -100)
    for n2 in (4, 5):
        S.group(1, wo_dma(n2), ('wo', n2))
    for n in range(64):
        c, k = divmod(n, 32); g0 = 4 * n
        for j in range(2):
            for qt in range(2):
                S.mfma(mf(vr(acc(c, j, qt), 16), vr(vA(n, j), 4), ar(aB2(k, qt), 4), k == 0))
        if n + 2 < 32: b_reads(n + 2, g0 + 1)
        if n + 2 < 64: a_reads(n + 2, g0 + 1)
        if n % 2 == 0 and n // 2 + 6 < 32:
            S.group(g0 + 3, wo_dma(n // 2 + 6), ('wo', n // 2 + 6), pre=lambda a, n=n: a.wait_lds_tag(('ar', n + 1)))
    def st_setup(a):
        lane_fields(a, vT, [(3, 2, 65536), (5, 1, 128), (0, 3, 16)], vT + 1)
        a(f's_lshl_b32 {sT2}, {sRB}, 19'); a(f's_lshl_b32 {sT0}, {sG}, 13'); a(f's_add_u32 {sT2}, {sT2}, {sT0}')
        a(f's_lshl_b32 {sT0}, {sW}, 11'); a(f's_add_u32 {sT2}, {sT2}, {sT0}'); a(f's_add_u32 {sT2}, {sT2}, {WS_P1}')
        a(f's_add_u32 {sT3}, {sT2}, 0x40000')
    S.at(100, st_setup)
    for i, x in enumerate(red_pre()): S.at(212 + 2 * i, x)
    S.at(136, f'v_mov_b32 v{vONE}, 1'); S.at(137, f'v_lshlrev_b32 v{vL4}, 2, v0')
    S.at(254, lambda a: (a.wait_all(vm=False), a.raw('s_barrier')))
    for c in range(2):
        i = 0
        for j in range(2):
            for qt in range(2):
                for hf in range(2):
                    o = acc(c, j, qt) + 8 * hf; t = 64 + 4 * i
                    gs = 128 + 4 + 9 * i if c == 0 else 256
                    for r in range(4): S.at(gs + (r if c == 0 else 0), f'v_cvt_pk_bf16_f32 v{t+r}, v{o+2*r}, v{o+2*r+1}')
                    S.at(gs + (4 if c == 0 else 0), f'buffer_store_dwordx4 v[{t}:{t+3}], v{vT}, {srd("WS")}, {sT3 if qt else sT2} offen offset:{1024*c + 512*j + 256*hf} {SC}', 'p1')
                    i += 1
    for nm, gg in (('wo0', 1), ('wo32', 128), ('wo64', 256)):
        S.at(gg, lambda a, nm=nm: stamp(a, nm))
    S.emit(a, 'wo')

def slow_path(a, slow_label, join_label):
    a.label(slow_label)
    a.fence()
    vM = vT; vAD = 96; vF = 100; vPP = 104
    a(f's_sub_u32 {sT2}, {sD}, {sC}')
    a(f's_lshl_b32 {sT3}, {sW}, 13')
    lane_fields(a, vAD, [(0, 2, 256), (3, 1, 1024), (2, 1, 2048), (4, 1, 4096), (5, 1, 16)], vAD + 1)
    tr_pattern(a, vAD + 1, vAD + 2, 2048)
    a(f'v_add_u32 v{vAD+1}, {sT3}, v{vAD+1}')
    for qt in range(2):
        a(f'v_mov_b32 v{vM+qt}, 0xff800000'); a(f'v_mov_b32 v{vL+qt}, 0')
    for r in range(128): a(f'v_mov_b32 v{vO+r}, 0')
    a(f's_mov_b32 s98, 0')
    loop = a.newlabel('slowloop')
    a.fence()
    a.label(loop)
    for hf in range(2):
        a(f's_add_u32 m0, {sT3}, {4096*hf}')
        a(f's_add_u32 {sT0}, {sT2}, {4096*hf}')
        for p in range(4): a(dma(sT0, vVD, 'V', 1024 * p))
    for s in range(8):
        a(f'buffer_load_dwordx4 {ar(aF+4*s,4)}, v{vAD}, {srd("K")}, {sT2} offen offset:{32*s}')
    for s in range(8):
        for qt in range(2):
            a(mf(vr(vS + 16 * qt, 16), ar(aF + 4 * s, 4), ar(aQ + 32 * qt + 4 * s, 4), s == 0))
    for qt in range(2):
        b = vS + 16 * qt; t = vF
        a(f'v_max3_f32 v{t}, v{b}, v{b+1}, v{vM+qt}')
        for r in range(2, 16, 2): a(f'v_max3_f32 v{t}, v{b+r}, v{b+r+1}, v{t}')
        a(f'v_mov_b32 v{t+1}, v{t}')
        a(f'v_permlane32_swap_b32 v{t}, v{t+1}')
        a(f'v_max_f32 v{t}, v{t}, v{t+1}')
        a(f'v_sub_f32 v{t+1}, v{vM+qt}, v{t}')
        a(f'v_exp_f32 v{t+1}, v{t+1}')
        a(f'v_mov_b32 v{vM+qt}, v{t}')
        a(f'v_mul_f32 v{vL+qt}, v{vL+qt}, v{t+1}')
        for j in range(4):
            for r in range(16):
                o = vO + 16 * (2 * j + qt) + r
                a(f'v_mul_f32 v{o}, v{o}, v{t+1}')
        for r in range(16): a(f'v_sub_f32 v{b+r}, v{b+r}, v{t}')
        for r in range(16): a(f'v_exp_f32 v{b+r}, v{b+r}')
        for r in range(16): a(f'v_add_f32 v{vL+qt}, v{vL+qt}, v{b+r}')
        for r in range(8): a(f'v_cvt_pk_bf16_f32 v{vPP+8*qt+r}, v{b+2*r}, v{b+2*r+1}')
    a.wait_all()
    for j in range(4):
        for sp in range(2):
            f = aF + 32 + 4 * (2 * j + sp)
            for rr in range(2):
                a(f'ds_read_b64_tr_b16 {ar(f+2*rr,2)}, v{vAD+1} offset:{4096*sp + 256*j + 1024*rr}')
    for j in range(4):
        for sp in range(2):
            f = aF + 32 + 4 * (2 * j + sp)
            for qt in range(2):
                a(mf(vr(vO + 16 * (2 * j + qt), 16), ar(f, 4), vr(vPP + 8 * qt + 4 * sp, 4), False))
    a(f's_add_u32 {sT2}, {sT2}, 8192')
    a.fence()
    a('s_add_u32 s98, s98, 1')
    a('s_cmp_lt_u32 s98, 16')
    a.raw(f's_cbranch_scc1 {loop}')
    for x in l_total(): a(x)
    for qt in range(2): a(f'v_rcp_f32 v{vL+qt}, v{vL+qt}')
    for j in range(4):
        for qt in range(2):
            for x in o_convert(j, qt): a(x)
    a.fence()
    a.raw(f's_branch {join_label}')

RX, RM = 128, 136
def red_pre():
    out = []
    def p0(a):
        lane_fields(a, 14, [(0, 3, 1024), (3, 3, 16)], 15)
        lane_fields(a, 15, [(3, 3, 32)], 16)
    out.append(p0)
    def p1(a):
        a(f's_lshl_b32 s66, {sL}, 13'); a(f's_lshl_b32 s67, {sW}, 8'); a('s_add_u32 s66, s66, s67')
        a(f's_lshl_b32 s67, {sW}, 9'); a(f's_add_u32 s67, s67, {WS_MOD + 4096}'); a('s_add_u32 s68, s67, 4096')
    out.append(p1)
    for i in range(2): out.append(f'buffer_load_dwordx4 v[{RX+4*i}:{RX+4*i+3}], v14, {srd("X")}, s66 offen offset:{128*i}')
    for vec in range(3):
        for i in range(2):
            for hf in range(2):
                b = RM + 16 * vec + 8 * i + 4 * hf
                out.append(f'buffer_load_dwordx4 v[{b}:{b+3}], v15, {srd("WS")}, {"s68" if vec == 2 else "s67"} offen offset:{2048*(vec%2) + 256*i + 16*hf} {SC}')
    return out

def allred8(a, r, t):
    a(f'v_add_f32_dpp v{r}, v{r}, v{r} row_ror:8 row_mask:0xf bank_mask:0xf')
    a(f'v_mov_b32 v{t}, v{r}'); a(f'v_permlane16_swap_b32 v{r}, v{t}'); a(f'v_add_f32 v{r}, v{r}, v{t}')
    a(f'v_mov_b32 v{t}, v{r}'); a(f'v_permlane32_swap_b32 v{r}, v{t}'); a(f'v_add_f32 v{r}, v{r}, v{t}')

def phase_red(a, lds_tmp):
    a.comment('sum of the 8 partial projections')
    P = 192; ACC = 64; T = 80
    a('v_lshlrev_b32 v4, 4, v0')
    a(f's_lshl_b32 {sT0}, {sL}, 16')
    a(f's_lshl_b32 {sT1}, {sW}, 11')
    a(f's_add_u32 {sT0}, {sT0}, {sT1}')
    a(f's_add_u32 {sT0}, {sT0}, {WS_P1}')
    for g in range(8):
        for i in range(2):
            b = P + 8 * g + 4 * i
            a(f'buffer_load_dwordx4 v[{b}:{b+3}], v4, {srd("WS")}, {sT0} offen offset:{1024*i} {SC}')
        if g < 7: a(f's_add_u32 {sT0}, {sT0}, 8192')
    a('v_mov_b32 v5, 0x3f80'); a('v_mov_b32 v6, 0x3f800000')
    for r in range(8):
        a(f'v_lshlrev_b32 v{T+2*r}, 16, v{RX+r}'); a(f'v_and_b32 v{T+2*r+1}, {sMASK}, v{RX+r}')
    lane_fields(a, 7, [(0, 3, 32)], 2, add=lds_tmp)
    a(f's_lshl_b32 {sT1}, {sW}, 3')
    a(f'v_add_u32 v2, {sT1}, v7')
    for r in range(8):
        a(f'v_lshlrev_b32 v{ACC+2*r}, 16, v{P+r}'); a(f'v_and_b32 v{ACC+2*r+1}, {sMASK}, v{P+r}')
    for g in range(1, 8):
        for r in range(8):
            a(f'v_dot2c_f32_bf16 v{ACC+2*r}, v{P+8*g+r}, v5'); a(f'v_dot2c_f32_bf16 v{ACC+2*r+1}, v{P+8*g+r}, v6')
    for r in range(8):
        a(f'v_pk_fma_f32 v[{ACC+2*r}:{ACC+2*r+1}], v[{ACC+2*r}:{ACC+2*r+1}], v[{RM+2*r}:{RM+1+2*r}], v[{T+2*r}:{T+2*r+1}]')
    stamp(a, 'sum')
    for r in range(4): a(f'v_pk_add_f32 v[{T+2*r}:{T+2*r+1}], v[{ACC+2*r}:{ACC+2*r+1}], v[{ACC+8+2*r}:{ACC+9+2*r}]')
    for r in range(2): a(f'v_pk_add_f32 v[{T+2*r}:{T+2*r+1}], v[{T+2*r}:{T+2*r+1}], v[{T+4+2*r}:{T+5+2*r}]')
    a(f'v_pk_add_f32 v[{T}:{T+1}], v[{T}:{T+1}], v[{T+2}:{T+3}]')
    a(f'v_add_f32 v{T}, v{T}, v{T+1}')
    for r in range(8): a(f'v_cvt_pk_bf16_f32 v{8+r}, v{ACC+2*r}, v{ACC+2*r+1}')
    allred8(a, T, T + 1)
    a(f'v_mul_f32 v{T}, {hx(-1.0/128)}, v{T}')
    a(f's_lshl_b32 {sT0}, {sL}, 13'); a(f's_lshl_b32 {sT1}, {sW}, 11'); a(f's_add_u32 {sT0}, {sT0}, {sT1}'); a(f's_add_u32 {sT0}, {sT0}, {WS_X1}')
    for r in range(8): a(f'v_pk_add_f32 v[{ACC+2*r}:{ACC+2*r+1}], v[{ACC+2*r}:{ACC+2*r+1}], v[{T}:{T+1}] op_sel_hi:[1,0]')
    for i in range(2): a(f'buffer_store_dwordx4 v[{8+4*i}:{11+4*i}], v4, {srd("WS")}, {sT0} offen offset:{1024*i} {SC}', 'x1')
    for h in range(2): a(f'v_pk_mul_f32 v[{T+2+2*h}:{T+3+2*h}], v[{ACC+2*h}:{ACC+2*h+1}], v[{ACC+2*h}:{ACC+2*h+1}]')
    for r in range(2, 8):
        h = r % 2
        a(f'v_pk_fma_f32 v[{T+2+2*h}:{T+3+2*h}], v[{ACC+2*r}:{ACC+2*r+1}], v[{ACC+2*r}:{ACC+2*r+1}], v[{T+2+2*h}:{T+3+2*h}]')
    a(f'v_pk_add_f32 v[{T+2}:{T+3}], v[{T+2}:{T+3}], v[{T+4}:{T+5}]')
    a(f'v_add_f32 v{T+1}, v{T+2}, v{T+3}')
    allred8(a, T + 1, T + 2)
    a(f'ds_write_b64 v2, v[{T}:{T+1}]')
    a.wait_all(vm=False)
    a.raw('s_barrier')
    a(f'ds_read_b128 v[{T+4}:{T+7}], v7'); a(f'ds_read_b128 v[{T+8}:{T+11}], v7 offset:16')
    lane_fields(a, 2, [(3, 3, 512), (0, 3, 16)], 3)
    a(f's_lshr_b32 {sT0}, {sL}, 2'); a(f's_lshl_b32 {sT0}, {sT0}, 15')
    a(f's_and_b32 {sT1}, {sL}, 3'); a(f's_lshl_b32 {sT1}, {sT1}, 7'); a(f's_add_u32 {sT0}, {sT0}, {sT1}')
    a(f's_lshl_b32 {sT1}, {sW}, 13'); a(f's_add_u32 {sT0}, {sT0}, {sT1}'); a(f's_add_u32 {sT0}, {sT0}, {WS_H2}')
    a(f's_add_u32 {sT1}, {sT0}, 4096')
    a(f'v_pk_add_f32 v[{T+12}:{T+13}], v[{T+4}:{T+5}], v[{T+6}:{T+7}]')
    a(f'v_pk_add_f32 v[{T+14}:{T+15}], v[{T+8}:{T+9}], v[{T+10}:{T+11}]')
    a(f'v_pk_add_f32 v[{T+12}:{T+13}], v[{T+12}:{T+13}], v[{T+14}:{T+15}]')
    a(f'v_mul_f32 v{T+12}, {hx(0.25)}, v{T+12}')
    for w in range(4): a(f'v_sub_f32 v{T+4+2*w}, v{T+4+2*w}, v{T+12}')
    a(f'v_mul_f32 v{T+14}, v{T+4}, v{T+4}')
    for w in range(1, 4): a(f'v_fmac_f32 v{T+14}, v{T+4+2*w}, v{T+4+2*w}')
    a(f'v_fmamk_f32 v{T+13}, v{T+14}, {hx(128.0)}, v{T+13}')
    a(f'v_mov_b32 v{T+14}, {hx(1e-5)}')
    a(f'v_fmamk_f32 v{T+13}, v{T+13}, {hx(1.0/512)}, v{T+14}')
    a(f'v_rsq_f32 v{T+13}, v{T+13}')
    a(f'v_sub_f32 v{T+12}, v{T+12}, v{T}')
    a(f'v_mul_f32 v{T+12}, v{T+12}, v{T+13}')
    for r in range(8):
        a(f'v_pk_fma_f32 v[{ACC+2*r}:{ACC+2*r+1}], v[{ACC+2*r}:{ACC+2*r+1}], v[{T+12}:{T+13}], v[{T+12}:{T+13}] op_sel:[0,1,0] op_sel_hi:[1,1,0]')
    for r in range(8):
        a(f'v_pk_fma_f32 v[{ACC+2*r}:{ACC+2*r+1}], v[{ACC+2*r}:{ACC+2*r+1}], v[{RM+32+2*r}:{RM+33+2*r}], v[{RM+16+2*r}:{RM+17+2*r}]')
    for r in range(8): a(f'v_cvt_pk_bf16_f32 v{T+r}, v{ACC+2*r}, v{ACC+2*r+1}')
    for i in range(2): a(f'buffer_store_dwordx4 v[{T+4*i}:{T+4*i+3}], v2, {srd("WS")}, {sT1 if i else sT0} offen {SC}', 'h2')

def g1_ids(a):
    a(f's_and_b32 {sG}, s2, 7'); a(f's_lshr_b32 {sRB}, s2, 3')
    a(f's_cmp_ge_u32 {sRB}, 14'); a(f's_cselect_b32 {sA}, 1, 0')
    a(f's_mov_b32 s69, {sA}')
    a(f's_mul_i32 {sB}, {sA}, 14'); a(f's_sub_u32 {sB}, {sRB}, {sB}')
    a(f's_lshl_b32 {sA}, {sA}, 2'); a(f's_lshl_b32 {sT0}, {sG}, 3'); a(f's_add_u32 {sA}, {sA}, {sT0}')
    a(f's_add_u32 {sA}, {sA}, {sW}')

def g1_wload(a):
    a.comment('w1 slice -> LDS')
    lane_fields(a, 2, [(0, 2, 16), (2, 2, 3584), (4, 2, 64)], 6)
    for p in range(1, 4): a(f'v_add_u32 v{2+p}, {p*(4*3584-1024)}, v2')
    a(f's_lshl_b32 {sT0}, {sB}, 8')
    a(f's_mul_i32 {sT1}, {sW}, {16*3584}'); a(f's_add_u32 {sT0}, {sT0}, {sT1}')
    a(f's_lshl_b32 {sT1}, {sW}, 12')
    for i in range(8):
        a(f's_add_u32 m0, {sT1}, {16384*i}')
        for p in range(4): a(dma(sT0, 2 + p, 'W1', 1024 * p), ('w1', i))
        if i < 7: a(f's_add_u32 {sT0}, {sT0}, {64*3584}')

def g1_bload(a):
    a('v_lshlrev_b32 v6, 4, v0')
    a(f's_lshl_b32 {sT0}, {sA}, 15'); a(f's_add_u32 {sT0}, {sT0}, {WS_H2}')
    for k in range(32):
        if k and k % 4 == 0: a(f's_add_u32 {sT0}, {sT0}, 4096')
        a(f'buffer_load_dwordx4 {ar(4*k,4)}, v6, {srd("WS")}, {sT0} offen offset:{1024*(k%4)} {SC}')

def phase_g1(a):
    tr_pattern(a, 7, 8, 2048)
    a('v_add_u32 v8, 0x10000, v7')
    a(f's_mul_i32 {sT2}, {sA}, {112*1024}'); a(f's_lshl_b32 {sT0}, {sB}, 13'); a(f's_add_u32 {sT2}, {sT2}, {sT0}')
    a(f's_add_u32 {sT2}, {sT2}, {WS_H1}'); a(f's_add_u32 {sT3}, {sT2}, 4096')
    S = Sched()
    acc = lambda j: 128 + 16 * j
    NF = 8; ring = [0]; LA = 5
    done = {}
    for grp in ((0, 1), (2,), (3,)):
        for k in range(32):
            for j in grp:
                f = 32 + 4 * (ring[0] % NF); ring[0] += 1
                g = len(S.m)
                for rr in range(2):
                    S.at(g - LA, f'ds_read_b64_tr_b16 {vr(f+2*rr,2)}, v{7 + k//16} offset:{4096*(k%16) + 256*j + 1024*rr}')
                S.mfma(mf(vr(acc(j), 16), vr(f, 4), ar(4 * k, 4), k == 0))
        for j in grp: done[j] = len(S.m)
    def silu(j, g0, span):
        ins = []
        for hf in range(2):
            o = acc(j) + 8 * hf; t = 64 + 16 * (j % 2) + 8 * hf; p = 96 + 8 * (j % 2) + 4 * hf
            for r in range(8): ins.append(f'v_exp_f32 v{t+r}, v{o+r}')
            for r in range(8): ins.append(f'v_add_f32 v{t+r}, 1.0, v{t+r}')
            for r in range(8): ins.append(f'v_rcp_f32 v{t+r}, v{t+r}')
            for r in range(8): ins.append(f'v_mul_f32 v{t+r}, v{o+r}, v{t+r}')
            for r in range(4): ins.append(f'v_cvt_pk_bf16_f32 v{p+r}, v{t+2*r}, v{t+2*r+1}')
            s_ = 2 * j + hf
            ins.append(f'buffer_store_dwordx4 v[{p}:{p+3}], v6, {srd("WS")}, {sT3 if s_ >= 4 else sT2} offen offset:{1024*(s_%4)} {SC}')
        for i, x in enumerate(ins): S.at(g0 + (i * span) // len(ins), x, 'h1')
    S.at(127, lambda a: (a.wait_all(vm=False), a.raw('s_barrier')))
    silu(0, 66, 21); silu(1, 87, 21); silu(2, 108, 20); silu(3, 128, 0)
    for nm, gg in (('g0', 1), ('g64', 64), ('g128', 128)):
        S.at(gg, lambda a, nm=nm: stamp(a, nm))
    S.emit(a, 'gemm1')

vG2 = 16
sE, sF, sH, sI, sJ = 's70', 's71', 's72', 's73', 's74'
def g2_setup(a):
    lane_fields(a, vG2, [(0, 2, 16), (2, 2, 1024), (4, 1, 64), (5, 1, 4096)], vG2 + 1)
    for p in range(1, 4): a(f'v_add_u32 v{vG2+p}, {p*(8*1024-1024)}, v{vG2}')
    a(f's_and_b32 {sF}, {sRB}, 7')
    a(f's_lshr_b32 {sE}, {sRB}, 3'); a(f's_lshl_b32 {sT0}, {sG}, 2'); a(f's_add_u32 {sE}, {sE}, {sT0}')
    a(f's_mul_i32 {sH}, {sW}, {448*1024}'); a(f's_lshl_b32 {sT0}, {sF}, 7'); a(f's_add_u32 {sH}, {sH}, {sT0}')
    a(f's_lshl_b32 {sI}, {sW}, 13'); a(f's_add_u32 {sI}, {sI}, 0x20000')
    a(f's_lshl_b32 {sJ}, {sW}, 15')
def w2_dma(n2):
    m = n2 % 10
    out = [f's_add_u32 m0, {sI if m < 2 else sJ}, {4096*(m if m < 2 else m-2)}', f's_add_u32 {sT1}, {sH}, {n2*32*1024}']
    return out + [dma(sT1, vG2 + p, 'W2', 1024 * p) for p in range(4)]

def phase_g2(a):
    sA, sB = sE, sF
    a('v_lshlrev_b32 v6, 4, v0')
    a(f's_mul_i32 {sT2}, {sA}, {2*112*1024}'); a(f's_mul_i32 {sT0}, {sW}, {28*1024}'); a(f's_add_u32 {sT2}, {sT2}, {sT0}')
    a(f's_add_u32 {sT2}, {sT2}, {WS_H1}'); a(f's_add_u32 {sT3}, {sT2}, {112*1024}')
    aB = lambda k, qt: 8 * k + 4 * qt
    def b_load(k):
        out = []
        if k and k % 4 == 0: out += [f's_add_u32 {sT2}, {sT2}, 4096', f's_add_u32 {sT3}, {sT3}, 4096']
        for qt in range(2):
            out.append(f'buffer_load_dwordx4 {ar(aB(k,qt),4)}, v6, {srd("WS")}, {sT3 if qt else sT2} offen offset:{1024*(k%4)} {SC}')
        return out
    S = Sched()
    PF = 6
    for k in range(PF):
        for x in b_load(k): S.at(-100, x)
    def addr(a):
        tr_pattern(a, 7, 8, 1024)
        a(f'v_add_u32 v5, {sI}, v7'); a(f'v_add_u32 v7, {sJ}, v7')
    S.at(-100, addr)
    vA = lambda k, j: 32 + 8 * (k % 4) + 4 * j
    acc = lambda j, qt: 128 + 16 * (2 * j + qt)
    def a_reads(k, g0):
        if k % 2 == 0: S.at(g0, lambda a, k=k: a.wait_tag(('w2', k // 2)))
        for j in range(2):
            for rr in range(2):
                S.at(g0 + 2 * j + rr, f'ds_read_b64_tr_b16 {vr(vA(k,j)+2*rr,2)}, v{5 if k % 20 < 4 else 7} offset:{2048*(k % 20 if k % 20 < 4 else k % 20 - 4) + 256*j + 512*rr}', ('ar', k))
    a_reads(0, -100); a_reads(1, -100)
    for k in range(28):
        g0 = 4 * k
        for j in range(2):
            for qt in range(2):
                S.mfma(mf(vr(acc(j, qt), 16), vr(vA(k, j), 4), ar(aB(k, qt), 4), k == 0))
        if k + 2 < 28: a_reads(k + 2, g0 + 1)
        if k + PF < 28:
            for i, x in enumerate(b_load(k + PF)): S.at(g0 + 1 + i // 2, x)
        if k in (10, 12, 14, 16): S.group(g0 + 1, w2_dma(k // 2 + 5), ('w2', k // 2 + 5))
    def epi_loads(a):
        lane_fields(a, 8, [(0, 3, 128), (3, 3, 16)], 9)
        a(f's_lshl_b32 {sT0}, {sA}, 16'); a(f's_lshl_b32 {sT1}, {sW}, 14'); a(f's_add_u32 {sT0}, {sT0}, {sT1}')
        a(f's_lshl_b32 {sT1}, {sB}, 10'); a(f's_add_u32 {sT0}, {sT0}, {sT1}'); a(f's_add_u32 {sT0}, {sT0}, {WS_X1}')
        a(f'buffer_load_dwordx4 v[12:15], v8, {srd("WS")}, {sT0} offen {SC}')
        a(f's_add_u32 {sT0}, {sT0}, 8192')
        a(f'buffer_load_dwordx4 v[16:19], v8, {srd("WS")}, {sT0} offen {SC}')
        lane_fields(a, 9, [(0, 3, 32)], 10)
        a(f's_lshl_b32 {sT0}, {sB}, 8'); a(f's_add_u32 {sT0}, {sT0}, {WS_MOD + 2048*5}')
        for hf in range(2): a(f'buffer_load_dwordx4 v[{20+4*hf}:{23+4*hf}], v9, {srd("WS")}, {sT0} offen offset:{16*hf} {SC}')
    S.at(92, epi_loads)
    for nm, gg in (('g0', 1), ('g56', 56), ('g112', 112)):
        S.at(gg, lambda a, nm=nm: stamp(a, nm))
    S.emit(a, 'gemm2')
    OCT = 1152; HALF = 8 * OCT; WV = 2 * HALF
    lane_fields(a, 10, [(3, 2, OCT), (5, 1, 144), (0, 3, 16)], 11)
    a(f's_mul_i32 {sT0}, {sW}, {WV}'); a(f'v_add_u32 v10, {sT0}, v10')
    lane_fields(a, 11, [(0, 3, 144), (3, 3, 16)], 9)
    a(f's_mul_i32 {sT0}, {sW}, {2*OCT}'); a(f'v_add_u32 v11, {sT0}, v11')
    a.wait_all(vm=False)
    a.raw('s_barrier')
    for j in range(2):
        for qt in range(2):
            for hf in range(2):
                for e in range(2):
                    o = acc(j, qt) + 8 * hf + 4 * e
                    a(f'ds_write_b128 v10, v[{o}:{o+3}] offset:{e*HALF + 4*qt*OCT + (4*j + 2*hf)*144}')
    a(f'v_add_u32 v9, {2*WV}, v11')
    lane_fields(a, 8, [(3, 3, 1024), (0, 3, 16)], 28)
    a(f's_lshl_b32 {sT0}, {sA}, 16'); a(f's_lshl_b32 {sT1}, {sW}, 14'); a(f's_add_u32 {sT0}, {sT0}, {sT1}')
    a(f's_lshl_b32 {sT1}, {sB}, 7'); a(f's_add_u32 {sT0}, {sT0}, {sT1}'); a(f's_add_u32 {sT1}, {sT0}, 8192')
    for r in range(8):
        a(f'v_lshlrev_b32 v{96+2*r}, 16, v{12+r}'); a(f'v_and_b32 v{97+2*r}, {sMASK}, v{12+r}')
    a.wait_all(vm=False)
    a.raw('s_barrier')
    for i in range(2):
        for w in range(4):
            for e in range(2):
                b = 32 + 32 * i + 8 * w + 4 * e
                a(f'ds_read_b128 v[{b}:{b+3}], v{11 if w < 2 else 9} offset:{(w%2)*WV + e*HALF + i*OCT}')
    for i in range(2):
        b = 32 + 32 * i
        for r in range(4): a(f'v_pk_add_f32 v[{b+2*r}:{b+2*r+1}], v[{b+2*r}:{b+2*r+1}], v[{b+8+2*r}:{b+9+2*r}]')
        for r in range(4): a(f'v_pk_add_f32 v[{b+16+2*r}:{b+17+2*r}], v[{b+16+2*r}:{b+17+2*r}], v[{b+24+2*r}:{b+25+2*r}]')
        for r in range(4): a(f'v_pk_add_f32 v[{b+2*r}:{b+2*r+1}], v[{b+2*r}:{b+2*r+1}], v[{b+16+2*r}:{b+17+2*r}]')
        for r in range(4): a(f'v_pk_fma_f32 v[{b+2*r}:{b+2*r+1}], v[{b+2*r}:{b+2*r+1}], v[{20+2*r}:{21+2*r}], v[{96+8*i+2*r}:{97+8*i+2*r}]')
        for r in range(4): a(f'v_cvt_pk_bf16_f32 v{b+8+r}, v{b+2*r}, v{b+2*r+1}')
        a(f'buffer_store_dwordx4 v[{b+8}:{b+11}], v8, {srd("OUT")}, {sT1 if i else sT0} offen')

def kernel(name, body):
    a = Asm(); a.uid = kernel.uid
    body(a, 'L_end')
    kernel.uid = a.uid
    print(name, 'nop states', a.nnop, 'lines', len(a.lines))
    return f'.globl {name}\n.p2align 8\n.type {name},@function\n{name}:\n' + a.text()
kernel.uid = 0

def desc(name):
    return f""".p2align 6
.amdhsa_kernel {name}
  .amdhsa_next_free_vgpr 512
  .amdhsa_next_free_sgpr 102
  .amdhsa_accum_offset 256
  .amdhsa_group_segment_fixed_size 0
  .amdhsa_kernarg_size 104
  .amdhsa_user_sgpr_count 2
  .amdhsa_user_sgpr_kernarg_segment_ptr 1
  .amdhsa_system_sgpr_workgroup_id_x 1
.end_amdhsa_kernel
"""

def k_mega(a, end):
    prologue(a, ['WM', 'C', 'X', 'WS', 'DBG', 'WQ', 'K', 'V', 'WO', 'W1', 'W2', 'OUT'], 256, end)
    a(f's_lshr_b32 {sN}, s2, 3'); a(f's_lshl_b32 {sN}, {sN}, 2'); a(f's_add_u32 {sN}, {sN}, {sW}')
    x_setup(a)
    lprod, lj = a.newlabel('prod'), a.newlabel('prodj')
    a.wait_all()
    a('s_cmp_lt_u32 s2, 48')
    a.raw(f's_cbranch_scc1 {lprod}')
    a(f's_sub_u32 {sT0}, {sN}, 24'); a(f's_lshr_b32 {sT1}, {sT0}, 4'); a(f's_and_b32 {sT0}, {sT0}, 15')
    a(f's_mul_i32 {sT0}, {sT0}, {32*6144}'); a(f's_min_u32 {sT1}, {sT1}, 5'); a(f's_lshl_b32 {sT1}, {sT1}, 10'); a(f's_add_u32 {sT0}, {sT0}, {sT1}')
    a(f's_and_b32 {sT1}, s2, 7'); a(f's_lshl_b32 {sT1}, {sT1}, 7'); a(f's_add_u32 {sT0}, {sT0}, {sT1}')
    touch(a, 'WM', [(0, 5, 6144)], 32, sT0, 2, 3)
    for i in range(16):
        for t in x_load(i): a(t)
    a.label(lj)
    main_vm = list(a.vm)
    stamp(a, 'xissue')
    prefetch1(a)
    phase_main_setup(a)
    phase_ln1_stats(a); stamp(a, 'stats')
    lw = a.newlabel('mw')
    a(f'v_lshlrev_b32 v{vT+1}, 2, v0')
    a(f's_cmp_lg_u32 {sW}, 1')
    a.raw(f's_cbranch_scc1 {lw}')
    spin(a, 'DBG', '0', vT + 1, vT + 2, 16)
    a.label(lw)
    a.raw('s_barrier'); stamp(a, 'modok')
    phase_ln1_modload(a)
    phase_ln1_apply(a); stamp(a, 'apply')
    phase_main(a, 'L_slow', 'L_join')
    g1_ids(a)
    l1, l2 = a.newlabel('now1'), a.newlabel('now1j')
    a(f's_cmp_ge_u32 {sRB}, 28')
    a.raw(f's_cbranch_scc0 {l1}')
    a.raw('s_waitcnt vmcnt(0)')
    a.raw(f's_branch {l2}')
    a.label(l1)
    g1_wload(a)
    a.label(l2)
    g2_setup(a)
    a(f'v_lshlrev_b32 v{vSIG}, 8, v0')
    a(f's_and_b32 {sSIG}, {sL}, 0xf8'); a(f's_lshl_b32 {sSIG}, {sSIG}, 8'); a(f's_and_b32 {sT0}, {sL}, 7'); a(f's_lshl_b32 {sT0}, {sT0}, 2')
    a(f's_add_u32 {sSIG}, {sSIG}, {sT0}'); a(f's_add_u32 {sSIG}, {sSIG}, {WS_FLG}')
    a(f's_lshl_b32 {sWAIT}, {sL}, 8'); a(f's_add_u32 {sWAIT}, {sWAIT}, {WS_FLG}')
    a.wait_tag('p1'); stamp(a, 'p1done')
    handoff(a, 'p1', (8, vSIG, sSIG), (8, sWAIT)); stamp(a, 'syncA')
    phase_red(a, 0x20000)
    a(f'v_lshlrev_b32 v{vSIG}, 11, v0')
    a(f's_bfe_u32 {sSIG}, {sL}, 0x10004'); a(f's_mul_i32 {sSIG}, {sSIG}, {14*8}'); a(f's_lshr_b32 {sT0}, {sL}, 5'); a(f's_add_u32 {sSIG}, {sSIG}, {sT0}')
    a(f's_lshl_b32 {sSIG}, {sSIG}, 8'); a(f's_and_b32 {sT0}, {sL}, 15'); a(f's_lshl_b32 {sT0}, {sT0}, 2'); a(f's_add_u32 {sSIG}, {sSIG}, {sT0}')
    a(f's_add_u32 {sSIG}, {sSIG}, {WS_FLG + 64}')
    a(f's_lshl_b32 {sWAIT}, s2, 8'); a(f's_add_u32 {sWAIT}, {sWAIT}, {WS_FLG + 64}')
    stamp(a, 'red')
    handoff(a, 'h2', (14, vSIG, sSIG), None); stamp(a, 'h2done')
    for n2 in range(2):
        for x in w2_dma(n2): a(x, ('w2', n2))
    l1, l2 = a.newlabel('nog1'), a.newlabel('nog1j')
    a(f's_cmp_ge_u32 {sRB}, 28')
    a.raw(f's_cbranch_scc1 {l1}')
    lw = a.newlabel('bw')
    a(f's_cmp_lg_u32 {sW}, 1')
    a.raw(f's_cbranch_scc1 {lw}')
    spin(a, 'WS', sWAIT, vL4, vPOLL, 16)
    a.label(lw)
    a.raw('s_barrier'); stamp(a, 'syncB')
    g1_bload(a)
    phase_g1(a)
    for n2 in range(2, 10):
        for x in w2_dma(n2): a(x, ('w2', n2))
    a(f's_lshl_b32 {sSIG}, s69, 7'); a(f's_add_u32 {sSIG}, {sSIG}, {sG}'); a(f's_lshl_b32 {sSIG}, {sSIG}, 8')
    a(f's_lshl_b32 {sT0}, {sB}, 2'); a(f's_add_u32 {sSIG}, {sSIG}, {sT0}'); a(f's_add_u32 {sSIG}, {sSIG}, {WS_FLG + 128}')
    handoff(a, 'h1', (16, vSIG, sSIG), None)
    a.raw(f's_branch {l2}')
    a.label(l1)
    for n2 in range(2, 10):
        for x in w2_dma(n2): a.raw(x); a.raw('s_nop 0')
    a.raw('s_waitcnt vmcnt(32)')
    a.label(l2)
    stamp(a, 'h1done')
    a(f's_add_u32 {sWAIT}, {sWAIT}, 64')
    lw = a.newlabel('cw')
    a(f's_cmp_lg_u32 {sW}, 1')
    a.raw(f's_cbranch_scc1 {lw}')
    spin(a, 'WS', sWAIT, vL4, vPOLL, 14)
    a.label(lw)
    a.raw('s_barrier'); stamp(a, 'syncC')
    phase_g2(a)
    stamp_flush(a); a.label(end); a.raw('s_endpgm')
    a.label(lprod)
    a.vm = []; a.lg = []; a.hist = []
    phase_mod(a)
    a.raw(f's_branch {lj}')
    slow_path(a, 'L_slow', 'L_join')
    a.label('L_mod2')
    spin(a, 'DBG', '0', vT + 2, vT + 3, 32)
    a.raw('s_branch L_mod2j')

def prefetch1(a):
    a.comment('L2 warm-up: wq, K, V')
    nw = 64 if OPT['r2'] else 128
    if OPT['r2']:
        a(f's_lshr_b32 s80, s2, 4'); a('s_lshl_b32 s80, s80, 2'); a(f's_add_u32 s80, s80, {sW}')
    else: a(f's_mov_b32 s80, {sN}')
    rows = 512 // nw
    a(f's_mul_i32 {sT0}, s80, {rows*8192}'); a(f's_lshl_b32 {sT1}, {sG}, 10'); a(f's_add_u32 {sT0}, {sT0}, {sT1}')
    touch(a, 'WQ', [(3, 3, 8192), (0, 3, 128)], rows * 8, sT0, 3, 4)
    a(f's_mul_i32 {sT0}, s80, {rows*256}'); a(f's_lshl_b32 {sT1}, {sG}, 19'); a(f's_add_u32 {sT0}, {sT0}, {sT1}'); a(f's_add_u32 {sT0}, {sT0}, {1536*256}')
    touch(a, 'K', [(0, 6, 128)], rows * 2, sT0, 5, 4)
    touch(a, 'V', [(0, 6, 128)], rows * 2, sT0, 6, 4)

def main(out):
    ref = open(f'cdna_kernels/{NAME}.s.ref').read().splitlines()
    head = [l for l in ref if l.startswith(';') and '@launch' not in l]
    s = '\n'.join(head) + '\n'
    s += f'; @launch grid=(256,1,1) block=(256,1,1) lds={LDS_BYTES}\n'
    s += '.amdgcn_target "amdgcn-amd-amdhsa--gfx950"\n.text\n'
    s += kernel(NAME + '_kernel', k_mega)
    s += '.section .rodata,"a"\n'
    s += desc(NAME + '_kernel')
    open(out, 'w').write(s)
    if OPT['stamps']:
        import json; json.dump(stamp_names, open(out + '.stamps', 'w'))

if __name__ == '__main__':
    for o in sys.argv[2:]:
        k, v = o.split('='); OPT[k] = int(v)
    main(sys.argv[1] if len(sys.argv) > 1 else f'cdna_kernels/{NAME}.s')
```

```python
import sys, struct, math
from asmlib import Asm, Sched

NAME = 'adaLN_cond__sliding_block_cached__dense_activation_silu__prompt'
def f2u(x): return struct.unpack('<I', struct.pack('<f', x))[0]
def hx(x): return '0x%08x' % f2u(x)
LOG2E = 1.4426950408889634

SRD = dict(X=4, K=8, V=12, WQ=16, WO=20, W1=24, W2=28, C=32, WM=36, OUT=40, DBG=44, WS=48)
KOFF = dict(X=0, K=8, V=16, WQ=24, WO=32, W1=48, W2=56, C=64, WM=72, OUT=80, DBG=88, WS=96)
SIZE = dict(X=2048*512*2, K=8*2048*128*2, V=8*2048*128*2, WQ=512*4096*2, WO=4096*512*2, W1=512*1792*2,
            W2=1792*512*2, C=1024, WM=512*3072*2, OUT=2048*512*2, DBG=256, WS=1 << 28)
def srd(n): return f's[{SRD[n]}:{SRD[n]+3}]'
sW, sG, sRB = 's52', 's53', 's54'
sT0, sT1, sT2, sT3 = 's55', 's56', 's57', 's58'
sMASK = 's59'
sA, sB, sC, sD = 's60', 's61', 's62', 's63'
sST = 64

WS_MOD = 0
WS_FLG = 0x10000
WS_STAMP = 0x20000
WS_X1 = 0x200000
WS_H2 = 0x400000
WS_H1 = 0x600000
WS_P1 = 0x1000000
SC = 'sc1'

L_H0, L_B, L_A, L_W = 0, 32768, 65536, 98304
LDS_BYTES = 163840

def vr(b, n=1, k='v'): return f'{k}{b}' if n == 1 else f'{k}[{b}:{b+n-1}]'
def ar(b, n=1): return vr(b, n, 'a')

OPT = dict(stamps=0, r2=0, probe='', pwg=100, pmul=4)
stamp_names = []
def stamp(a, name):
    if OPT['probe']:
        pa, pb = OPT['probe'].split(':')
        if name == pa: a('s_memrealtime s[90:91]')
        if name == pb: a('s_memrealtime s[92:93]')
    if not OPT['stamps']: return
    i = len(stamp_names[-1]); stamp_names[-1].append(name)
    a('s_memrealtime s[100:101]')
    a(f'v_writelane_b32 v1, s100, {i}')
    a('s_memtime s[100:101]')
    a(f'v_writelane_b32 v1, s100, {32+i}')
def stamp_flush(a):
    if OPT['probe']:
        a.wait_all(); stamp(a, 'end')
        a('s_memrealtime s[94:95]'); a.wait_all()
        a(f's_cmp_lg_u32 s2, {OPT["pwg"]}'); a.raw('s_cbranch_scc1 L_end')
        a('s_sub_u32 s92, s92, s90'); a(f's_mul_i32 s92, s92, {OPT["pmul"]}'); a('s_min_u32 s92, s92, 100000')
        a.label('L_probe')
        a.raw('s_memrealtime s[90:91]'); a.raw('s_waitcnt lgkmcnt(0)'); a.raw('s_sub_u32 s90, s90, s94'); a.raw('s_cmp_lt_u32 s90, s92'); a.raw('s_cbranch_scc1 L_probe')
    if not OPT['stamps']: return
    a.wait_all()
    stamp(a, 'end')
    a(f's_lshl_b32 s100, s2, 10'); a(f's_lshl_b32 s101, {sW}, 8'); a('s_add_u32 s100, s100, s101')
    a(f's_add_u32 s100, s100, {WS_STAMP + 0x40000*(len(stamp_names)-1)}')
    a('v_lshlrev_b32 v0, 2, v0')
    a(f'buffer_store_dword v1, v0, {srd("WS")}, s100 offen')

def prologue(a, names, nwg, endlabel):
    a.raw(f's_cmp_ge_u32 s2, {nwg}')
    a.raw(f's_cbranch_scc1 {endlabel}')
    stamp_names.append([])
    if OPT['stamps']: a('s_memrealtime s[98:99]'); a('s_memtime s[96:97]')
    else: stamp(a, 'start')
    for n in names:
        a(f's_load_dwordx2 s[{SRD[n]}:{SRD[n]+1}], s[0:1], {KOFF[n]}')
    for n in names:
        a(f's_mov_b32 s{SRD[n]+2}, {SIZE[n]}')
        a(f's_mov_b32 s{SRD[n]+3}, 0x20000')
    a('v_lshrrev_b32 v1, 6, v0')
    if OPT['r2']:
        a(f's_and_b32 {sG}, s2, 3'); a(f's_lshl_b32 {sG}, {sG}, 1'); a(f's_bfe_u32 {sT0}, s2, 0x10003'); a(f's_add_u32 {sG}, {sG}, {sT0}')
        a(f's_bfe_u32 {sT0}, s2, 0x10002'); a(f's_lshl_b32 {sT0}, {sT0}, 4'); a(f's_lshr_b32 {sRB}, s2, 4'); a(f's_add_u32 {sRB}, {sRB}, {sT0}')
    else:
        a(f's_and_b32 {sG}, s2, 7')
        a(f's_lshr_b32 {sRB}, s2, 3')
    a(f's_lshl_b32 s3, {sRB}, 3'); a(f's_add_u32 s3, s3, {sG}')
    a(f'v_readfirstlane_b32 {sW}, v1')
    a('v_and_b32 v0, 63, v0')
    a(f's_mov_b32 {sMASK}, 0xffff0000')
    if OPT['stamps']:
        stamp_names[-1].append('start')
        a('v_writelane_b32 v1, s98, 0'); a('v_writelane_b32 v1, s96, 32')
        stamp(a, 'args')

def lane_fields(a, dst, spec, tmp, add=None):
    first = True
    for sh, nb, sc in spec:
        t = dst if first else tmp
        a(f'v_bfe_u32 v{t}, v0, {sh}, {nb}')
        if sc & (sc - 1) == 0:
            if first:
                if sc > 1: a(f'v_lshlrev_b32 v{t}, {sc.bit_length()-1}, v{t}')
            else: a(f'v_lshl_add_u32 v{dst}, v{t}, {sc.bit_length()-1}, v{dst}')
        else:
            a(f'v_mul_u32_u24 v{t}, {sc}, v{t}')
            if not first: a(f'v_add_u32 v{dst}, v{dst}, v{t}')
        first = False
    if add is not None: a(f'v_add_u32 v{dst}, {add}, v{dst}')

def tr_pattern(a, dst, tmp, hhmul):
    lane_fields(a, dst, [(5, 1, hhmul), (2, 2, 64), (4, 1, 32), (0, 1, 16), (1, 1, 8)], tmp)

def dma(soff, voff, srdn, imm):
    return f'buffer_load_dwordx4 v{voff}, {srd(srdn)}, {soff} offen offset:{imm} lds'

def x_load(i):
    out = []
    if i and i % 4 == 0: out.append(f's_add_u32 {sT2}, {sT2}, 4096')
    out.append(f'buffer_load_dwordx4 v[{64+4*i}:{67+4*i}], v{vT}, {srd("X")}, {sT2} offen offset:{1024*(i%4)}')
    return out

def x_setup(a):
    a(f's_lshl_b32 {sT2}, {sRB}, 16')
    a(f's_lshl_b32 {sT1}, {sW}, 14')
    a(f's_add_u32 {sT2}, {sT2}, {sT1}')
    a(f'v_lshlrev_b32 v{vT}, 4, v0')

def set_exec(a, nl):
    if nl < 32: a.raw(f's_mov_b64 exec, {hex((1 << nl) - 1)}')
    else: a.raw('s_mov_b32 exec_lo, -1'); a.raw(f's_mov_b32 exec_hi, {hex((1 << (nl - 32)) - 1)}')

def touch(a, n, spec, nl, soff, dst, tmp):
    lane_fields(a, tmp, spec, dst)
    if nl < 64: set_exec(a, nl)
    a.raw(f'buffer_load_dword a255, v{tmp}, {srd(n)}, {soff} offen'); a.fake_vm(1, None)
    if nl < 64: a('s_mov_b64 exec, -1')

def phase_mod(a):
    a.comment('mod GEMV')
    W = 128; SL = 32; SH = 48; ACC = 8
    a(f's_lshl_b32 {sA}, s2, 7')
    a(f's_mul_i32 {sT1}, {sW}, {128*6144}')
    a(f's_add_u32 {sA}, {sA}, {sT1}')
    lane_fields(a, 2, [(3, 3, 16 * 6144), (0, 3, 16)], 3)
    lane_fields(a, 3, [(3, 3, 32)], 4)
    a(f's_lshl_b32 {sB}, {sW}, 8')
    for i in range(2): a(f'buffer_load_dwordx4 v[{16+4*i}:{19+4*i}], v3, {srd("C")}, {sB} offen offset:{16*i}')
    for i in range(16):
        a(f'buffer_load_dwordx4 v[{W+4*i}:{W+4*i+3}], v2, {srd("WM")}, {sA} offen')
        if i < 15: a(f's_add_u32 {sA}, {sA}, 6144')
    for i in range(8): a(f'v_mov_b32 v{ACC+i}, 0')
    lab = a.newlabel('nz')
    a('s_cmp_ge_u32 s2, 16')
    a.raw(f's_cbranch_scc1 {lab}')
    a.raw(f's_lshl_b32 {sT0}, s2, 12'); a.raw(f's_lshl_b32 {sT1}, {sW}, 10'); a.raw(f's_add_u32 {sT0}, {sT0}, {sT1}')
    a.raw(f's_add_u32 {sT0}, {sT0}, {WS_FLG}')
    a.raw(f'buffer_store_dwordx4 v[{ACC}:{ACC+3}], v{vT}, {srd("WS")}, {sT0} offen {SC}')
    a.label(lab)
    a.vm_maybe()
    for r in range(8):
        a(f'v_lshlrev_b32 v{SH+2*r}, 16, v{16+r}'); a(f'v_and_b32 v{SH+2*r+1}, {sMASK}, v{16+r}')
    for i in range(16): a(f'v_mul_f32 v{SL+i}, {hx(-LOG2E)}, v{SH+i}')
    for i in range(16): a(f'v_exp_f32 v{SL+i}, v{SL+i}')
    for i in range(16): a(f'v_add_f32 v{SL+i}, 1.0, v{SL+i}')
    for i in range(16): a(f'v_rcp_f32 v{SL+i}, v{SL+i}')
    for i in range(16): a(f'v_mul_f32 v{SH+i}, v{SH+i}, v{SL+i}')
    for i in range(16): a(f'v_cvt_pk_bf16_f32 v{SL+i}, v{SH+i}, 0')
    for i in range(16): a(f'v_lshlrev_b32 v{SH+i}, 16, v{SL+i}')
    for i in range(16):
        for r in range(4):
            a(f'v_dot2c_f32_bf16 v{ACC+2*r}, v{W+4*i+r}, v{SL+i}')
            a(f'v_dot2c_f32_bf16 v{ACC+2*r+1}, v{W+4*i+r}, v{SH+i}')
        if i < 8:
            for t in x_load(i): a(t)
    for i in range(4): a(f'v_permlane32_swap_b32 v{ACC+i}, v{ACC+4+i}')
    for i in range(4): a(f'v_add_f32 v{ACC+i}, v{ACC+i}, v{ACC+4+i}')
    for i in range(2): a(f'v_permlane16_swap_b32 v{ACC+i}, v{ACC+2+i}')
    for i in range(2): a(f'v_add_f32 v{ACC+i}, v{ACC+i}, v{ACC+2+i}')
    lane_fields(a, 4, [(0, 3, 32), (4, 2, 8)], 5)
    a(f'v_add_u32 v4, {sB}, v4')
    for i in range(2): a(f'v_add_f32_dpp v{ACC+i}, v{ACC+i}, v{ACC+i} row_ror:8 row_mask:0xf bank_mask:0xf')
    a(f'ds_write_b64 v4, v[{ACC}:{ACC+1}]')
    a('v_lshlrev_b32 v4, 2, v0')
    a(f's_lshr_b32 {sT1}, s2, 3')
    a(f's_mov_b32 {sB}, {hx(LOG2E/math.sqrt(128.0))}')
    a(f's_cmp_eq_u32 {sT1}, 2'); a(f's_cselect_b32 {sB}, 1.0, {sB}')
    a(f's_cmp_ge_u32 {sT1}, 3'); a(f's_cselect_b32 {sB}, {hx(-LOG2E)}, {sB}')
    a(f's_cmp_eq_u32 {sT1}, 5'); a(f's_cselect_b32 {sB}, {hx(-1.0/LOG2E)}, {sB}')
    a(f's_mov_b32 {sC}, 0')
    a(f's_cmp_eq_u32 {sT1}, 1'); a(f's_cselect_b32 {sC}, 1.0, {sC}')
    a(f's_cmp_eq_u32 {sT1}, 4'); a(f's_cselect_b32 {sC}, 1.0, {sC}')
    a.raw('s_waitcnt vmcnt(8) lgkmcnt(0)'); a.lg = []
    a.raw('s_barrier')
    lab = a.newlabel('modskip')
    a(f's_cmp_lg_u32 {sW}, 0')
    a.raw(f's_cbranch_scc1 {lab}')
    save = list(a.vm)
    for i in range(4): a(f'ds_read_b32 v{ACC+i}, v4 offset:{256*i}')
    a(f's_lshl_b32 {sT1}, s2, 8')
    a(f's_add_u32 {sT1}, {sT1}, {WS_MOD}')
    a(f'v_add_f32 v8, v8, v9'); a('v_add_f32 v10, v10, v11'); a('v_add_f32 v8, v8, v10')
    a('v_cvt_pk_bf16_f32 v8, v8, v8'); a(f'v_and_b32 v8, {sMASK}, v8')
    a(f'v_add_f32 v8, {sC}, v8')
    a('v_cvt_pk_bf16_f32 v8, v8, v8'); a(f'v_and_b32 v8, {sMASK}, v8')
    a(f'v_mul_f32 v8, {sB}, v8')
    a(f'buffer_store_dword v8, v4, {srd("WS")}, {sT1} offen {SC}')
    a(f's_lshl_b32 {sT1}, s2, 2'); a('s_cmp_ge_u32 s2, 16'); a(f's_cselect_b32 {sT0}, 64, 0'); a(f's_add_u32 {sT1}, {sT1}, {sT0}')
    a('v_mov_b32 v9, 1')
    a('s_mov_b64 exec, 1')
    a.wait_all()
    a(f'buffer_store_dword v9, v0, {srd("DBG")}, {sT1} offen {SC}')
    a('s_mov_b64 exec, -1')
    a.label(lab)
    a.vm = save
    a.vm_maybe()
    for i in range(8, 16):
        for t in x_load(i): a(t)

def spin(a, srdn, soff, vaddr, vdst, nl, head=None):
    loop, out = a.newlabel('poll'), a.newlabel('pollout')
    set_exec(a, nl)
    a.raw('s_mov_b32 s98, 0x400000')
    a.label(loop)
    a.raw(f'buffer_load_dword v{vdst}, v{vaddr}, {srd(srdn)}, {soff} offen {SC}')
    a.raw('s_sub_u32 s98, s98, 1')
    a.raw(f's_cbranch_scc1 {out}')
    a.raw('s_waitcnt vmcnt(0)')
    a.raw(f'v_cmp_eq_u32 vcc, 0, v{vdst}')
    a.raw('s_nop 0')
    a.raw(f's_cbranch_vccnz {loop}')
    a.label(out)
    a.raw('s_waitcnt vmcnt(0)')
    a.raw('s_mov_b64 exec, -1')

def handoff(a, tag, sig, wait):
    if tag is not None: a.wait_tag(tag)
    a.wait_all(vm=False)
    a.raw('s_barrier')
    l0, l1 = a.newlabel('ho'), a.newlabel('ho')
    if sig:
        nl, vaddr, soff = sig
        a(f's_cmp_lg_u32 {sW}, 0')
        a.raw(f's_cbranch_scc1 {l0}')
        a.raw(f's_mov_b64 exec, {hex((1 << nl) - 1)}')
        a.raw(f'buffer_store_dword v{vONE}, v{vaddr}, {srd("WS")}, {soff} offen {SC}')
        a.raw('s_mov_b64 exec, -1')
        a.label(l0)
        a.vm_maybe()
    if wait:
        nl, soff = wait
        a(f's_cmp_lg_u32 {sW}, 1')
        a.raw(f's_cbranch_scc1 {l1}')
        spin(a, 'WS', soff, vL4, vPOLL, nl)
        a.label(l1)
        a.raw('s_barrier')

vW4 = 2
vKD = 6
vVD = 10
vTRA, vTRB, vTRV = 11, 12, 13
vK = 14
vH = 22
vL = 26
vT = 28
vS = 32
vP = 96
vO = 128
vSIG, vPOLL, vONE, vL4 = 22, 23, 24, 25
sSIG, sWAIT, sN, sL = 's64', 's65', 's99', 's3'
aQ = 0
aF = 64

def slot_addr(sig):
    return (vTRA, 16384 * (sig + 2)) if sig < 2 else (vTRB, 16384 * (sig - 2))
def slot_lds(sig): return L_A + 16384 * sig

def butterfly16(a, r, t):
    for i in range(8): a(f'v_permlane32_swap_b32 v{r+i}, v{r+i+8}')
    for i in range(8): a(f'v_add_f32 v{r+i}, v{r+i}, v{r+i+8}')
    for i in range(4): a(f'v_permlane16_swap_b32 v{r+i}, v{r+i+4}')
    for i in range(4): a(f'v_add_f32 v{r+i}, v{r+i}, v{r+i+4}')
    for sh in (8, 4, 2, 1):
        for i in range(4):
            a(f'v_add_f32_dpp v{r+i}, v{r+i}, v{r+i} row_ror:{sh} row_mask:0xf bank_mask:0xf')

def sbc(i):
    b = (sST + i) & ~1
    return f's[{b}:{b+1}]', ('op_sel_hi:[1,0]' if (sST + i) % 2 == 0 else 'op_sel:[0,1] op_sel_hi:[1,1]')

def wq_dma(k):
    sig = (k + 4) % 6
    out = [f's_add_u32 m0, {sC}, {slot_lds(sig)}']
    out += [dma(sA, vW4 + p, 'WQ', 1024 * p) for p in range(4)]
    out += [f's_add_u32 {sA}, {sA}, {16*8192}']
    return out

def kv_dma(t, which):
    buf = (L_A if t % 2 == 0 else L_B) + (0 if which == 'K' else 16384)
    unit = 2 * t + 1 if which == 'K' else 2 * t - 1
    def kk(a, u, em):
        em(f's_add_u32 {sT0}, {sD}, {u*8192}')
        for p in range(4): em(dma(sT0, vKD + p, 'K', 1024 * p))
    def vv(a, u, em):
        em(f's_add_u32 {sT0}, {sD}, {u*8192}')
        for p in range(4): em(dma(sT0, vVD, 'V', 1024 * p))
    tag = ('kv', t)
    if (t, which) in ((0, 'V'), (7, 'K')):
        def f(a):
            l1, l2 = a.newlabel('kv'), a.newlabel('kv')
            a(f's_add_u32 m0, {sC}, {buf}')
            a(f's_cmp_lt_u32 {sW}, 2')
            a.raw(f's_cbranch_scc1 {l1}')
            vv(a, -1 if t == 0 else 14, a.raw)
            a.raw(f's_branch {l2}')
            a.label(l1)
            kk(a, 0 if t == 0 else 15, a.raw)
            a.label(l2)
            a.fake_vm(4, tag)
        return [f]
    out = [f's_add_u32 m0, {sC}, {buf}']
    (kk if which == 'K' else vv)(None, unit, out.append)
    return out

def k_off(u):
    if u == 0: return L_A + 16384 - L_B
    t = (u - 1) // 2
    return (L_A if t % 2 == 0 else L_B) + 8192 * ((u - 1) % 2) - L_B
def v_off(u):
    if u == 15: return 8192
    t = (u + 1) // 2
    return (L_A if t % 2 == 0 else L_B) + 16384 + 8192 * ((u + 1) % 2) - L_B

WO_SIG = [2, 3, 4, 5, -2, -1]
def wo_slot(n):
    m = n % 12
    return WO_SIG[m // 2], 2048 * (m % 2)
def wo_dma(n2):
    sig, _ = wo_slot(2 * n2)
    c, k = divmod(2 * n2, 32)
    out = [f's_add_u32 m0, {sC}, {slot_lds(sig)}', f's_add_u32 {sT1}, {sB}, {k*16*1024 + c*128}']
    out += [dma(sT1, vW4 + p, 'WO', 1024 * p) for p in range(4)]
    return out

def phase_main_setup(a):
    a.comment('address set-up')
    a(f's_lshl_b32 {sC}, {sW}, 12')
    lane_fields(a, vW4, [(0, 2, 16), (2, 2, 8192), (4, 2, 64)], vT + 1)
    for p in range(1, 4): a(f'v_add_u32 v{vW4+p}, {p*(4*8192-1024)}, v{vW4}')
    a(f's_lshl_b32 {sA}, {sG}, 10')
    a(f's_lshl_b32 {sT1}, {sW}, 8')
    a(f's_add_u32 {sA}, {sA}, {sT1}')
    a(f's_lshl_b32 {sD}, {sG}, 19')
    a(f's_add_u32 {sD}, {sD}, {1536*256}')
    a(f's_add_u32 {sD}, {sD}, {sC}')
    lane_fields(a, vVD, [(0, 2, 16), (2, 2, 256), (4, 2, 64)], vT + 1)
    a(f'v_lshrrev_b32 v{vT+1}, 4, v0')
    a(f'v_and_b32 v{vT+2}, 15, v0')
    a(f'v_xor_b32 v{vT+2}, v{vT+2}, v{vT+1}')
    a(f'v_lshlrev_b32 v{vT+2}, 4, v{vT+2}')
    a(f'v_lshl_add_u32 v{vKD}, v{vT+1}, 8, v{vT+2}')
    for p in range(1, 4): a(f'v_xor_b32 v{vKD+p}, {64*p}, v{vKD}')
    tr_pattern(a, vTRV, vT + 1, 2048)
    a(f's_add_u32 {sT0}, {sC}, {L_B}')
    a(f'v_add_u32 v{vTRA}, {sT0}, v{vTRV}')
    a(f'v_add_u32 v{vTRB}, 0x10000, v{vTRA}')
    a(f'v_add_u32 v{vTRV}, {L_B}, v{vTRV}')
    lane_fields(a, vT + 1, [(0, 2, 1), (3, 1, 4), (2, 1, 8), (4, 1, 16)], vT + 2)
    a(f'v_and_b32 v{vT+2}, 15, v{vT+1}')
    a(f'v_lshrrev_b32 v{vT+3}, 5, v0')
    a(f'v_xor_b32 v{vT+2}, v{vT+2}, v{vT+3}')
    a(f'v_lshlrev_b32 v{vT+2}, 4, v{vT+2}')
    a(f'v_lshl_add_u32 v{vK}, v{vT+1}, 8, v{vT+2}')
    a(f'v_add_u32 v{vK}, {L_B}, v{vK}')
    for s in range(1, 8): a(f'v_xor_b32 v{vK+s}, {32*s}, v{vK}')
    a(f'v_and_b32 v{vT+1}, 31, v0')
    a(f'v_xor_b32 v{vT+1}, v{vT+1}, v{vT+3}')
    a(f'v_lshlrev_b32 v{vT+1}, 4, v{vT+1}')
    a(f'v_lshl_add_u32 v{vH}, v{vT+3}, 9, v{vT+1}')
    for s in range(1, 4): a(f'v_xor_b32 v{vH+s}, {32*s}, v{vH}')

def phase_ln1_stats(a):
    a.comment('LN1 statistics')
    D = 128; R = 32
    for i in range(16):
        for r in range(4):
            a(f'v_lshlrev_b32 v{D+8*i+2*r}, 16, v{64+4*i+r}')
            a(f'v_and_b32 v{D+8*i+2*r+1}, {sMASK}, v{64+4*i+r}')
        d = D + 8 * i; t = 48 + 4 * (i % 2)
        a(f'v_pk_add_f32 v[{t}:{t+1}], v[{d}:{d+1}], v[{d+2}:{d+3}]')
        a(f'v_pk_add_f32 v[{t+2}:{t+3}], v[{d+4}:{d+5}], v[{d+6}:{d+7}]')
        a(f'v_pk_add_f32 v[{t}:{t+1}], v[{t}:{t+1}], v[{t+2}:{t+3}]')
        a(f'v_add_f32 v{R+i}, v{t}, v{t+1}')
    butterfly16(a, R, None)
    for i in range(4): a(f'v_mul_f32 v{R+i}, {hx(-1.0/512)}, v{R+i}')
    for q in range(4):
        for i in range(4): a(f'v_readlane_b32 s{sST+i+4*q}, v{R+i}, {16*q}')
    for i in range(16):
        d = D + 8 * i; t = 48 + 2 * (i % 2); so, md = sbc(i)
        for r in range(4): a(f'v_pk_add_f32 v[{d+2*r}:{d+2*r+1}], v[{d+2*r}:{d+2*r+1}], {so} {md}')
        a(f'v_pk_mul_f32 v[{t}:{t+1}], v[{d}:{d+1}], v[{d}:{d+1}]')
        for r in range(1, 4):
            a(f'v_pk_fma_f32 v[{t}:{t+1}], v[{d+2*r}:{d+2*r+1}], v[{d+2*r}:{d+2*r+1}], v[{t}:{t+1}]')
        a(f'v_add_f32 v{R+i}, v{t}, v{t+1}')
        if i % 2 == 0 and i // 2 < 6:
            for x in wq_dma(i // 2): a(x, ('wq', i // 2))
    butterfly16(a, R, None)
    a(f'v_mov_b32 v48, {hx(1e-5)}')
    for i in range(4): a(f'v_fmamk_f32 v{R+i}, v{R+i}, {hx(1.0/512)}, v48')
    for i in range(4): a(f'v_rsq_f32 v{R+i}, v{R+i}')
    for q in range(4):
        for i in range(4): a(f'v_readlane_b32 s{sST+i+4*q}, v{R+i}, {16*q}')
    for i in range(16):
        d = D + 8 * i; so, md = sbc(i)
        for r in range(4): a(f'v_pk_mul_f32 v[{d+2*r}:{d+2*r+1}], v[{d+2*r}:{d+2*r+1}], {so} {md}')
    a(f's_lshr_b32 {sT0}, {sW}, 1')
    a(f's_lshl_b32 {sT0}, {sT0}, 15')
    a(f's_and_b32 {sT1}, {sW}, 1')
    a(f's_lshl_b32 {sT1}, {sT1}, 8')
    a(f's_add_u32 {sT0}, {sT0}, {sT1}')
    lane_fields(a, 32, [(0, 6, 512), (0, 3, 16)], 33, add=sT0)
    for i in range(1, 8): a(f'v_xor_b32 v{32+i}, {16*i}, v32')

def phase_ln1_modload(a):
    a(f'v_lshlrev_b32 v{vT+1}, 5, v0')
    for vec in range(2):
        for hf in range(2):
            b = 40 + 8 * vec + 4 * hf
            a(f'buffer_load_dwordx4 v[{b}:{b+3}], v{vT+1}, {srd("WS")}, 0 offen offset:{WS_MOD + 2048*vec + 16*hf} {SC}')

def phase_ln1_apply(a):
    a.comment('h = xn*A + B -> LDS')
    D = 128
    for i in range(16):
        d = D + 8 * i; t = 64 + 4 * i
        for r in range(4):
            a(f'v_pk_fma_f32 v[{d+2*r}:{d+2*r+1}], v[{d+2*r}:{d+2*r+1}], v[{48+2*r}:{49+2*r}], v[{40+2*r}:{41+2*r}]')
        for r in range(4): a(f'v_cvt_pk_bf16_f32 v{t+r}, v{d+2*r}, v{d+2*r+1}')
        a(f'ds_write_b128 v{32+(i&7)}, v[{t}:{t+3}] offset:{128*(i>>3)}')

def mf(d, A, B, first):
    return f'v_mfma_f32_32x32x16_bf16 {d}, {A}, {B}, {"0" if first else d}'

def o_convert(j, qt):
    o = vO + 16 * (2 * j + qt); out = []
    for hf in range(2):
        t = vS + 8 * ((2 * j + qt) % 4) + 4 * hf
        sel = 'op_sel_hi:[1,0]' if qt == 0 else 'op_sel:[0,1] op_sel_hi:[1,1]'
        for r in range(4):
            b = o + 8 * hf + 2 * r
            out.append(f'v_pk_mul_f32 v[{b}:{b+1}], v[{b}:{b+1}], v[{vL}:{vL+1}] {sel}')
        for r in range(4):
            b = o + 8 * hf + 2 * r
            out.append(f'v_cvt_pk_bf16_f32 v{t+r}, v{b}, v{b+1}')
        out.append(f'ds_write_b128 v{vH+qt}, v[{t}:{t+3}] offset:{1024*(2*j+hf)}')
    return out

def l_total():
    out = []
    for qt in range(2): out.append(f'v_mov_b32 v{vT+qt}, v{vL+qt}')
    for qt in range(2): out.append(f'v_permlane32_swap_b32 v{vL+qt}, v{vT+qt}')
    for qt in range(2): out.append(f'v_add_f32 v{vL+qt}, v{vL+qt}, v{vT+qt}')
    return out

def phase_main(a, slow_label, join_label):
    S = Sched()
    aA = lambda k, j: aF + 24 * (k % 2) + 4 * j
    aB = lambda k, qt: aF + 24 * (k % 2) + 16 + 4 * qt
    def q_reads(k, g0):
        reg, base = slot_addr((k + 4) % 6)
        S.at(g0, lambda a, k=k: a.wait_tag(('wq', k)))
        for qt in range(2):
            S.at(g0 + qt, f'ds_read_b128 {ar(aB(k,qt),4)}, v{vH+(k&3)} offset:{32768*qt + 1024*k}', ('qr', k))
        for j in range(4):
            for rr in range(2):
                S.at(g0 + min(2 * j + rr, 6), f'ds_read_b64_tr_b16 {ar(aA(k,j)+2*rr,2)}, v{reg} offset:{base + 256*j + 1024*rr}', ('qr', k))
    S.at(0, lambda a: (a.wait_all(vm=False), a.raw('s_barrier')))
    q_reads(0, -100)
    for k in range(32):
        g0 = 8 * k
        for j in range(4):
            for qt in range(2):
                S.mfma(mf(vr(vO + 16 * (2 * j + qt), 16), ar(aA(k, j), 4), ar(aB(k, qt), 4), k == 0))
        if k + 1 < 32: q_reads(k + 1, g0 + 1)
        nxt = None
        if k + 6 < 32: nxt = (wq_dma(k + 6), ('wq', k + 6))
        elif k == 26: nxt = (kv_dma(0, 'K'), ('kv', 0))
        elif k == 27: nxt = (kv_dma(0, 'V'), ('kv', 0))
        if nxt:
            S.group(g0 + 2, nxt[0], nxt[1], pre=lambda a, k=k: a.wait_lds_tag(('qr', k)))
    G = 256
    ring = [0]
    NF = 10
    def newfrag():
        r = aF + 48 + 4 * (ring[0] % NF); ring[0] += 1; return r
    LA = 8
    sreg = lambda u, qt: vS + 32 * (u % 2) + 16 * qt
    preg = lambda u, qt, sp: vP + 16 * (u % 2) + 8 * qt + 4 * sp
    last_read = {}; first_read = {}
    def note(t, g):
        last_read[t] = max(last_read.get(t, -1), g); first_read[t] = min(first_read.get(t, 10**9), g)
    reads = []
    def qk(u):
        t = 0 if u == 0 else (u - 1) // 2
        for s in range(8):
            f = newfrag(); g = len(S.m)
            reads.append((g, t, [f'ds_read_b128 {ar(f,4)}, v{vK+s} offset:{k_off(u)}']))
            for qt in range(2):
                S.mfma(mf(vr(sreg(u, qt), 16), ar(f, 4), ar(aQ + 32 * qt + 4 * s, 4), s == 0))
    def pv(u):
        t = 7 if u == 15 else (u + 1) // 2
        for j in range(4):
            for sp in range(2):
                f = newfrag(); g = len(S.m)
                reads.append((g, t, [f'ds_read_b64_tr_b16 {ar(f+2*rr,2)}, v{vTRV} offset:{v_off(u) + 4096*sp + 256*j + 1024*rr}' for rr in range(2)]))
                for qt in range(2):
                    S.mfma(mf(vr(vO + 16 * (2 * j + qt), 16), ar(f, 4), vr(preg(u, qt, sp), 4), u == 0 and sp == 0))
    qk(0)
    slot_g = {}
    for u in range(16):
        slot_g[u] = len(S.m)
        if u < 15: qk(u + 1)
        if u >= 1: pv(u - 1)
    slot_g[16] = len(S.m)
    pv(15)
    Gend = len(S.m)
    BD = 3
    prev_t = -1; hold = 0
    for g, t, txt in reads:
        gi = g - LA
        if t != prev_t:
            gb = (G - 4) if t == 0 else gi + BD
            def bar(a, t=t):
                a.wait_tag(('kv', t)); a.wait_all(vm=False); a.raw('s_barrier')
            S.at(gb, bar)
            hold = gb
            if t + 1 <= 7:
                S.group(gb + 6, kv_dma(t + 1, 'K') + kv_dma(t + 1, 'V'), ('kv', t + 1), stride=2)
            if t in (5, 6):
                for n2 in (2 * t - 10, 2 * t - 9): S.group(slot_g[2 * t + 1], wo_dma(n2), ('wo', n2), stride=2)
            prev_t = t
        for i, x in enumerate(txt): S.at(max(gi + i, hold), x)
    for s in range(8):
        for qt in range(2):
            o = vO + 16 * (2 * (s // 2) + qt) + 8 * (s % 2)
            g = G + 2 * s + qt - (0 if s == 0 else 1)
            tt = vP + 4 * ((2 * s + qt) % 4)
            for r in range(4): S.at(g, f'v_cvt_pk_bf16_f32 v{tt+r}, v{o+2*r}, v{o+2*r+1}')
            for r in range(4): S.at(g, f'v_accvgpr_write_b32 a{aQ+32*qt+4*s+r}, v{tt+r}')
    for u in range(16):
        g0, g1 = slot_g[u], slot_g[u + 1]
        n = g1 - g0
        st = 2 if u == 0 else 0
        if u == 15: g0 -= 12; n += 12
        for e in range(32):
            qt, r = divmod(e, 16); reg = sreg(u, qt) + r
            ge = g0 + st + (e * (n - st - 1)) // 32
            S.at(ge, f'v_exp_f32 v{reg}, v{reg}')
            if u == 0 and r == 1: S.at(ge + 1, f'v_add_f32 v{vL+qt}, v{reg-1}, v{reg}')
            elif not (u == 0 and r == 0): S.at(ge + 1, f'v_add_f32 v{vL+qt}, v{vL+qt}, v{reg}')
            if r % 2 == 1:
                S.at(max(ge + 1, slot_g[u]), f'v_cvt_pk_bf16_f32 v{preg(u,qt,r//8) + (r%8)//2}, v{reg-1}, v{reg}')
    gw = slot_g[9]
    def wo_setup(a):
        lane_fields(a, vW4, [(0, 2, 16), (2, 2, 1024), (4, 1, 64), (5, 1, 4096)], vT + 1)
    S.at(gw, wo_setup)
    for p in range(1, 4): S.at(gw + 1 + p, f'v_add_u32 v{vW4+p}, {p*(8*1024-1024)}, v{vW4}')
    S.at(gw + 5, f's_lshl_b32 {sB}, {sG}, 19'); S.at(gw + 5, f's_lshl_b32 {sT1}, {sW}, 8'); S.at(gw + 6, f's_add_u32 {sB}, {sB}, {sT1}')
    S.at(gw + 7, f'v_bfe_u32 v{vT}, v0, 5, 1'); S.at(gw + 8, f'v_lshlrev_b32 v{vT}, 10, v{vT}')
    S.at(gw + 9, f'v_sub_u32 v{vTRA}, v{vTRA}, v{vT}'); S.at(gw + 10, f'v_sub_u32 v{vTRB}, v{vTRB}, v{vT}')
    S.at(gw + 11, f's_lshl_b32 {sT1}, {sW}, 13'); S.at(gw + 11, f'v_lshlrev_b32 v{vH+2}, 4, v0')
    S.at(gw + 12, f'v_add_u32 v{vH}, {sT1}, v{vH+2}'); S.at(gw + 13, f'v_add_u32 v{vH+1}, {L_A}, v{vH}')
    S.at(gw + 14, f'v_add_u32 v{vH+3}, {L_A}, v{vH+2}')
    S.at(slot_g[4] - 2, f'v_lshlrev_b32 v{vT+2}, 2, v0'); S.at(slot_g[4] - 1, f'v_and_b32 v{vT+2}, 0x7f, v{vT+2}')
    S.at(slot_g[4] - 1, f'v_add_u32 v{vT+2}, 128, v{vT+2}')
    S.at(slot_g[4], f'buffer_load_dword v{vT+3}, v{vT+2}, {srd("DBG")}, 0 offen {SC}')
    def chk2(a):
        a(f'v_cmp_eq_u32 vcc, 0, v{vT+3}')
        a('s_cbranch_vccnz L_mod2')
        a.label('L_mod2j')
    S.at(slot_g[6], chk2)
    def pf_wo(a):
        rows = 8 if OPT['r2'] else 4
        a(f's_mul_i32 {sT1}, s80, {rows*1024}'); a(f's_lshl_b32 {sT2}, {sG}, 19'); a(f's_add_u32 {sT1}, {sT1}, {sT2}')
        touch(a, 'WO', [(0, 6, 128)], rows * 8, sT1, vT, vT + 1)
    S.at(slot_g[1], pf_wo)
    def pf_mlp(n, i):
        def f(a):
            a(f's_mul_i32 {sT1}, {sN}, {112*128}'); a(f's_add_u32 {sT1}, {sT1}, {56*128*i}')
            touch(a, n, [(0, 6, 128)], 56, sT1, vT, vT + 1)
        return f
    for q, (n, i) in enumerate((('W1', 0), ('W1', 1), ('W2', 0), ('W2', 1))): S.at(slot_g[3 + 2 * q] + 20, pf_mlp(n, i))
    g = slot_g[16]
    for i, x in enumerate(l_total()): S.at(g + 1 + i // 2, x)
    def check(a):
        a(f's_mov_b32 {sT0}, {hx(2.0**40)}')
        a(f'v_mov_b32 v{vT+2}, {hx(2.0**-40)}')
        for qt in range(2): a(f'v_med3_f32 v{vT+qt}, v{vL+qt}, v{vT+2}, {sT0}')
        a(f'v_cmp_neq_f32 vcc, v{vT}, v{vL}')
        a(f'v_cmp_neq_f32 s[96:97], v{vT+1}, v{vL+1}')
        for qt in range(2): a(f'v_rcp_f32 v{vL+qt}, v{vL+qt}')
        a('s_or_b64 vcc, vcc, s[96:97]')
        a.raw(f's_cbranch_vccnz {slow_label}')
    S.at(g + 4, check)
    for j in range(4):
        for qt in range(2):
            ins = o_convert(j, qt)
            gs = g + 4 * j + 6 + 2 * qt
            for i, x in enumerate(ins): S.at(min(gs + i // 9, Gend), x)
    for nm, gg in (('q16', 128), ('qend', 256), ('a4', slot_g[4]), ('a8', slot_g[8]), ('a12', slot_g[12]), ('a16', slot_g[16])):
        S.at(gg, lambda a, nm=nm: stamp(a, nm))
    S.emit(a, 'qproj+attn')
    a.label(join_label)
    S = Sched()
    vA = lambda n, j: 32 + 8 * (n % 4) + 4 * j
    aB2 = lambda k, qt: 128 * qt + 4 * k
    acc = lambda c, j, qt: 128 + 64 * c + 16 * (2 * j + qt)
    def a_reads(n, g0):
        sig, o = wo_slot(n); reg, base = slot_addr(sig)
        if n % 2 == 0: S.at(g0, lambda a, n=n: a.wait_tag(('wo', n // 2)))
        for j in range(2):
            for rr in range(2):
                S.at(g0 + 2 * j + rr, f'ds_read_b64_tr_b16 {vr(vA(n,j)+2*rr,2)}, v{reg} offset:{base + o + 256*j + 512*rr}', ('ar', n))
    def b_reads(k, g0):
        for qt in range(2):
            S.at(g0 + 2 * qt, f'ds_read_b128 {ar(aB2(k,qt),4)}, v{vH+2+qt} offset:{1024*k}')
    S.at(0, lambda a: (a.wait_all(vm=False), a.raw('s_barrier')))
    b_reads(0, -100); a_reads(0, -100); b_reads(1, -100); a_reads(1, -100)
    for n2 in (4, 5):
        S.group(1, wo_dma(n2), ('wo', n2))
    for n in range(64):
        c, k = divmod(n, 32); g0 = 4 * n
        for j in range(2):
            for qt in range(2):
                S.mfma(mf(vr(acc(c, j, qt), 16), vr(vA(n, j), 4), ar(aB2(k, qt), 4), k == 0))
        if n + 2 < 32: b_reads(n + 2, g0 + 1)
        if n + 2 < 64: a_reads(n + 2, g0 + 1)
        if n % 2 == 0 and n // 2 + 6 < 32:
            S.group(g0 + 3, wo_dma(n // 2 + 6), ('wo', n // 2 + 6), pre=lambda a, n=n: a.wait_lds_tag(('ar', n + 1)))
    def st_setup(a):
        lane_fields(a, vT, [(3, 2, 65536), (5, 1, 128), (0, 3, 16)], vT + 1)
        a(f's_lshl_b32 {sT2}, {sRB}, 19'); a(f's_lshl_b32 {sT0}, {sG}, 13'); a(f's_add_u32 {sT2}, {sT2}, {sT0}')
        a(f's_lshl_b32 {sT0}, {sW}, 11'); a(f's_add_u32 {sT2}, {sT2}, {sT0}'); a(f's_add_u32 {sT2}, {sT2}, {WS_P1}')
        a(f's_add_u32 {sT3}, {sT2}, 0x40000')
    S.at(100, st_setup)
    for i, x in enumerate(red_pre()): S.at(212 + 2 * i, x)
    S.at(136, f'v_mov_b32 v{vONE}, 1'); S.at(137, f'v_lshlrev_b32 v{vL4}, 2, v0')
    S.at(254, lambda a: (a.wait_all(vm=False), a.raw('s_barrier')))
    for c in range(2):
        i = 0
        for j in range(2):
            for qt in range(2):
                for hf in range(2):
                    o = acc(c, j, qt) + 8 * hf; t = 64 + 4 * i
                    gs = 128 + 4 + 9 * i if c == 0 else 256
                    for r in range(4): S.at(gs + (r if c == 0 else 0), f'v_cvt_pk_bf16_f32 v{t+r}, v{o+2*r}, v{o+2*r+1}')
                    S.at(gs + (4 if c == 0 else 0), f'buffer_store_dwordx4 v[{t}:{t+3}], v{vT}, {srd("WS")}, {sT3 if qt else sT2} offen offset:{1024*c + 512*j + 256*hf} {SC}', 'p1')
                    i += 1
    for nm, gg in (('wo0', 1), ('wo32', 128), ('wo64', 256)):
        S.at(gg, lambda a, nm=nm: stamp(a, nm))
    S.emit(a, 'wo')

def slow_path(a, slow_label, join_label):
    a.label(slow_label)
    a.fence()
    vM = vT; vAD = 96; vF = 100; vPP = 104
    a(f's_sub_u32 {sT2}, {sD}, {sC}')
    a(f's_lshl_b32 {sT3}, {sW}, 13')
    lane_fields(a, vAD, [(0, 2, 256), (3, 1, 1024), (2, 1, 2048), (4, 1, 4096), (5, 1, 16)], vAD + 1)
    tr_pattern(a, vAD + 1, vAD + 2, 2048)
    a(f'v_add_u32 v{vAD+1}, {sT3}, v{vAD+1}')
    for qt in range(2):
        a(f'v_mov_b32 v{vM+qt}, 0xff800000'); a(f'v_mov_b32 v{vL+qt}, 0')
    for r in range(128): a(f'v_mov_b32 v{vO+r}, 0')
    a(f's_mov_b32 s98, 0')
    loop = a.newlabel('slowloop')
    a.fence()
    a.label(loop)
    for hf in range(2):
        a(f's_add_u32 m0, {sT3}, {4096*hf}')
        a(f's_add_u32 {sT0}, {sT2}, {4096*hf}')
        for p in range(4): a(dma(sT0, vVD, 'V', 1024 * p))
    for s in range(8):
        a(f'buffer_load_dwordx4 {ar(aF+4*s,4)}, v{vAD}, {srd("K")}, {sT2} offen offset:{32*s}')
    for s in range(8):
        for qt in range(2):
            a(mf(vr(vS + 16 * qt, 16), ar(aF + 4 * s, 4), ar(aQ + 32 * qt + 4 * s, 4), s == 0))
    for qt in range(2):
        b = vS + 16 * qt; t = vF
        a(f'v_max3_f32 v{t}, v{b}, v{b+1}, v{vM+qt}')
        for r in range(2, 16, 2): a(f'v_max3_f32 v{t}, v{b+r}, v{b+r+1}, v{t}')
        a(f'v_mov_b32 v{t+1}, v{t}')
        a(f'v_permlane32_swap_b32 v{t}, v{t+1}')
        a(f'v_max_f32 v{t}, v{t}, v{t+1}')
        a(f'v_sub_f32 v{t+1}, v{vM+qt}, v{t}')
        a(f'v_exp_f32 v{t+1}, v{t+1}')
        a(f'v_mov_b32 v{vM+qt}, v{t}')
        a(f'v_mul_f32 v{vL+qt}, v{vL+qt}, v{t+1}')
        for j in range(4):
            for r in range(16):
                o = vO + 16 * (2 * j + qt) + r
                a(f'v_mul_f32 v{o}, v{o}, v{t+1}')
        for r in range(16): a(f'v_sub_f32 v{b+r}, v{b+r}, v{t}')
        for r in range(16): a(f'v_exp_f32 v{b+r}, v{b+r}')
        for r in range(16): a(f'v_add_f32 v{vL+qt}, v{vL+qt}, v{b+r}')
        for r in range(8): a(f'v_cvt_pk_bf16_f32 v{vPP+8*qt+r}, v{b+2*r}, v{b+2*r+1}')
    a.wait_all()
    for j in range(4):
        for sp in range(2):
            f = aF + 32 + 4 * (2 * j + sp)
            for rr in range(2):
                a(f'ds_read_b64_tr_b16 {ar(f+2*rr,2)}, v{vAD+1} offset:{4096*sp + 256*j + 1024*rr}')
    for j in range(4):
        for sp in range(2):
            f = aF + 32 + 4 * (2 * j + sp)
            for qt in range(2):
                a(mf(vr(vO + 16 * (2 * j + qt), 16), ar(f, 4), vr(vPP + 8 * qt + 4 * sp, 4), False))
    a(f's_add_u32 {sT2}, {sT2}, 8192')
    a.fence()
    a('s_add_u32 s98, s98, 1')
    a('s_cmp_lt_u32 s98, 16')
    a.raw(f's_cbranch_scc1 {loop}')
    for x in l_total(): a(x)
    for qt in range(2): a(f'v_rcp_f32 v{vL+qt}, v{vL+qt}')
    for j in range(4):
        for qt in range(2):
            for x in o_convert(j, qt): a(x)
    a.fence()
    a.raw(f's_branch {join_label}')

RX, RM = 128, 136
def red_pre():
    out = []
    def p0(a):
        lane_fields(a, 14, [(0, 3, 1024), (3, 3, 16)], 15)
        lane_fields(a, 15, [(3, 3, 32)], 16)
    out.append(p0)
    def p1(a):
        a(f's_lshl_b32 s66, {sL}, 13'); a(f's_lshl_b32 s67, {sW}, 8'); a('s_add_u32 s66, s66, s67')
        a(f's_lshl_b32 s67, {sW}, 9'); a(f's_add_u32 s67, s67, {WS_MOD + 4096}'); a('s_add_u32 s68, s67, 4096')
    out.append(p1)
    for i in range(2): out.append(f'buffer_load_dwordx4 v[{RX+4*i}:{RX+4*i+3}], v14, {srd("X")}, s66 offen offset:{128*i}')
    for vec in range(3):
        for i in range(2):
            for hf in range(2):
                b = RM + 16 * vec + 8 * i + 4 * hf
                out.append(f'buffer_load_dwordx4 v[{b}:{b+3}], v15, {srd("WS")}, {"s68" if vec == 2 else "s67"} offen offset:{2048*(vec%2) + 256*i + 16*hf} {SC}')
    return out

def allred8(a, r, t):
    a(f'v_add_f32_dpp v{r}, v{r}, v{r} row_ror:8 row_mask:0xf bank_mask:0xf')
    a(f'v_mov_b32 v{t}, v{r}'); a(f'v_permlane16_swap_b32 v{r}, v{t}'); a(f'v_add_f32 v{r}, v{r}, v{t}')
    a(f'v_mov_b32 v{t}, v{r}'); a(f'v_permlane32_swap_b32 v{r}, v{t}'); a(f'v_add_f32 v{r}, v{r}, v{t}')

def phase_red(a, lds_tmp):
    a.comment('sum of the 8 partial projections')
    P = 192; ACC = 64; T = 80
    a('v_lshlrev_b32 v4, 4, v0')
    a(f's_lshl_b32 {sT0}, {sL}, 16')
    a(f's_lshl_b32 {sT1}, {sW}, 11')
    a(f's_add_u32 {sT0}, {sT0}, {sT1}')
    a(f's_add_u32 {sT0}, {sT0}, {WS_P1}')
    for g in range(8):
        for i in range(2):
            b = P + 8 * g + 4 * i
            a(f'buffer_load_dwordx4 v[{b}:{b+3}], v4, {srd("WS")}, {sT0} offen offset:{1024*i} {SC}')
        if g < 7: a(f's_add_u32 {sT0}, {sT0}, 8192')
    a('v_mov_b32 v5, 0x3f80'); a('v_mov_b32 v6, 0x3f800000')
    for r in range(8):
        a(f'v_lshlrev_b32 v{T+2*r}, 16, v{RX+r}'); a(f'v_and_b32 v{T+2*r+1}, {sMASK}, v{RX+r}')
    lane_fields(a, 7, [(0, 3, 32)], 2, add=lds_tmp)
    a(f's_lshl_b32 {sT1}, {sW}, 3')
    a(f'v_add_u32 v2, {sT1}, v7')
    for r in range(8):
        a(f'v_lshlrev_b32 v{ACC+2*r}, 16, v{P+r}'); a(f'v_and_b32 v{ACC+2*r+1}, {sMASK}, v{P+r}')
    for g in range(1, 8):
        for r in range(8):
            a(f'v_dot2c_f32_bf16 v{ACC+2*r}, v{P+8*g+r}, v5'); a(f'v_dot2c_f32_bf16 v{ACC+2*r+1}, v{P+8*g+r}, v6')
    for r in range(8):
        a(f'v_pk_fma_f32 v[{ACC+2*r}:{ACC+2*r+1}], v[{ACC+2*r}:{ACC+2*r+1}], v[{RM+2*r}:{RM+1+2*r}], v[{T+2*r}:{T+2*r+1}]')
    stamp(a, 'sum')
    for r in range(4): a(f'v_pk_add_f32 v[{T+2*r}:{T+2*r+1}], v[{ACC+2*r}:{ACC+2*r+1}], v[{ACC+8+2*r}:{ACC+9+2*r}]')
    for r in range(2): a(f'v_pk_add_f32 v[{T+2*r}:{T+2*r+1}], v[{T+2*r}:{T+2*r+1}], v[{T+4+2*r}:{T+5+2*r}]')
    a(f'v_pk_add_f32 v[{T}:{T+1}], v[{T}:{T+1}], v[{T+2}:{T+3}]')
    a(f'v_add_f32 v{T}, v{T}, v{T+1}')
    for r in range(8): a(f'v_cvt_pk_bf16_f32 v{8+r}, v{ACC+2*r}, v{ACC+2*r+1}')
    allred8(a, T, T + 1)
    a(f'v_mul_f32 v{T}, {hx(-1.0/128)}, v{T}')
    a(f's_lshl_b32 {sT0}, {sL}, 13'); a(f's_lshl_b32 {sT1}, {sW}, 11'); a(f's_add_u32 {sT0}, {sT0}, {sT1}'); a(f's_add_u32 {sT0}, {sT0}, {WS_X1}')
    for r in range(8): a(f'v_pk_add_f32 v[{ACC+2*r}:{ACC+2*r+1}], v[{ACC+2*r}:{ACC+2*r+1}], v[{T}:{T+1}] op_sel_hi:[1,0]')
    for i in range(2): a(f'buffer_store_dwordx4 v[{8+4*i}:{11+4*i}], v4, {srd("WS")}, {sT0} offen offset:{1024*i} {SC}', 'x1')
    for h in range(2): a(f'v_pk_mul_f32 v[{T+2+2*h}:{T+3+2*h}], v[{ACC+2*h}:{ACC+2*h+1}], v[{ACC+2*h}:{ACC+2*h+1}]')
    for r in range(2, 8):
        h = r % 2
        a(f'v_pk_fma_f32 v[{T+2+2*h}:{T+3+2*h}], v[{ACC+2*r}:{ACC+2*r+1}], v[{ACC+2*r}:{ACC+2*r+1}], v[{T+2+2*h}:{T+3+2*h}]')
    a(f'v_pk_add_f32 v[{T+2}:{T+3}], v[{T+2}:{T+3}], v[{T+4}:{T+5}]')
    a(f'v_add_f32 v{T+1}, v{T+2}, v{T+3}')
    allred8(a, T + 1, T + 2)
    a(f'ds_write_b64 v2, v[{T}:{T+1}]')
    a.wait_all(vm=False)
    a.raw('s_barrier')
    a(f'ds_read_b128 v[{T+4}:{T+7}], v7'); a(f'ds_read_b128 v[{T+8}:{T+11}], v7 offset:16')
    lane_fields(a, 2, [(3, 3, 512), (0, 3, 16)], 3)
    a(f's_lshr_b32 {sT0}, {sL}, 2'); a(f's_lshl_b32 {sT0}, {sT0}, 15')
    a(f's_and_b32 {sT1}, {sL}, 3'); a(f's_lshl_b32 {sT1}, {sT1}, 7'); a(f's_add_u32 {sT0}, {sT0}, {sT1}')
    a(f's_lshl_b32 {sT1}, {sW}, 13'); a(f's_add_u32 {sT0}, {sT0}, {sT1}'); a(f's_add_u32 {sT0}, {sT0}, {WS_H2}')
    a(f's_add_u32 {sT1}, {sT0}, 4096')
    a(f'v_pk_add_f32 v[{T+12}:{T+13}], v[{T+4}:{T+5}], v[{T+6}:{T+7}]')
    a(f'v_pk_add_f32 v[{T+14}:{T+15}], v[{T+8}:{T+9}], v[{T+10}:{T+11}]')
    a(f'v_pk_add_f32 v[{T+12}:{T+13}], v[{T+12}:{T+13}], v[{T+14}:{T+15}]')
    a(f'v_mul_f32 v{T+12}, {hx(0.25)}, v{T+12}')
    for w in range(4): a(f'v_sub_f32 v{T+4+2*w}, v{T+4+2*w}, v{T+12}')
    a(f'v_mul_f32 v{T+14}, v{T+4}, v{T+4}')
    for w in range(1, 4): a(f'v_fmac_f32 v{T+14}, v{T+4+2*w}, v{T+4+2*w}')
    a(f'v_fmamk_f32 v{T+13}, v{T+14}, {hx(128.0)}, v{T+13}')
    a(f'v_mov_b32 v{T+14}, {hx(1e-5)}')
    a(f'v_fmamk_f32 v{T+13}, v{T+13}, {hx(1.0/512)}, v{T+14}')
    a(f'v_rsq_f32 v{T+13}, v{T+13}')
    a(f'v_sub_f32 v{T+12}, v{T+12}, v{T}')
    a(f'v_mul_f32 v{T+12}, v{T+12}, v{T+13}')
    for r in range(8):
        a(f'v_pk_fma_f32 v[{ACC+2*r}:{ACC+2*r+1}], v[{ACC+2*r}:{ACC+2*r+1}], v[{T+12}:{T+13}], v[{T+12}:{T+13}] op_sel:[0,1,0] op_sel_hi:[1,1,0]')
    for r in range(8):
        a(f'v_pk_fma_f32 v[{ACC+2*r}:{ACC+2*r+1}], v[{ACC+2*r}:{ACC+2*r+1}], v[{RM+32+2*r}:{RM+33+2*r}], v[{RM+16+2*r}:{RM+17+2*r}]')
    for r in range(8): a(f'v_cvt_pk_bf16_f32 v{T+r}, v{ACC+2*r}, v{ACC+2*r+1}')
    for i in range(2): a(f'buffer_store_dwordx4 v[{T+4*i}:{T+4*i+3}], v2, {srd("WS")}, {sT1 if i else sT0} offen {SC}', 'h2')

def g1_ids(a):
    a(f's_and_b32 {sG}, s2, 7'); a(f's_lshr_b32 {sRB}, s2, 3')
    a(f's_cmp_ge_u32 {sRB}, 14'); a(f's_cselect_b32 {sA}, 1, 0')
    a(f's_mov_b32 s69, {sA}')
    a(f's_mul_i32 {sB}, {sA}, 14'); a(f's_sub_u32 {sB}, {sRB}, {sB}')
    a(f's_lshl_b32 {sA}, {sA}, 2'); a(f's_lshl_b32 {sT0}, {sG}, 3'); a(f's_add_u32 {sA}, {sA}, {sT0}')
    a(f's_add_u32 {sA}, {sA}, {sW}')

def g1_wload(a):
    a.comment('w1 slice -> LDS')
    lane_fields(a, 2, [(0, 2, 16), (2, 2, 3584), (4, 2, 64)], 6)
    for p in range(1, 4): a(f'v_add_u32 v{2+p}, {p*(4*3584-1024)}, v2')
    a(f's_lshl_b32 {sT0}, {sB}, 8')
    a(f's_mul_i32 {sT1}, {sW}, {16*3584}'); a(f's_add_u32 {sT0}, {sT0}, {sT1}')
    a(f's_lshl_b32 {sT1}, {sW}, 12')
    for i in range(8):
        a(f's_add_u32 m0, {sT1}, {16384*i}')
        for p in range(4): a(dma(sT0, 2 + p, 'W1', 1024 * p), ('w1', i))
        if i < 7: a(f's_add_u32 {sT0}, {sT0}, {64*3584}')

def g1_bload(a):
    a('v_lshlrev_b32 v6, 4, v0')
    a(f's_lshl_b32 {sT0}, {sA}, 15'); a(f's_add_u32 {sT0}, {sT0}, {WS_H2}')
    for k in range(32):
        if k and k % 4 == 0: a(f's_add_u32 {sT0}, {sT0}, 4096')
        a(f'buffer_load_dwordx4 {ar(4*k,4)}, v6, {srd("WS")}, {sT0} offen offset:{1024*(k%4)} {SC}')

def phase_g1(a):
    tr_pattern(a, 7, 8, 2048)
    a('v_add_u32 v8, 0x10000, v7')
    a(f's_mul_i32 {sT2}, {sA}, {112*1024}'); a(f's_lshl_b32 {sT0}, {sB}, 13'); a(f's_add_u32 {sT2}, {sT2}, {sT0}')
    a(f's_add_u32 {sT2}, {sT2}, {WS_H1}'); a(f's_add_u32 {sT3}, {sT2}, 4096')
    S = Sched()
    acc = lambda j: 128 + 16 * j
    NF = 8; ring = [0]; LA = 5
    done = {}
    for grp in ((0, 1), (2,), (3,)):
        for k in range(32):
            for j in grp:
                f = 32 + 4 * (ring[0] % NF); ring[0] += 1
                g = len(S.m)
                for rr in range(2):
                    S.at(g - LA, f'ds_read_b64_tr_b16 {vr(f+2*rr,2)}, v{7 + k//16} offset:{4096*(k%16) + 256*j + 1024*rr}')
                S.mfma(mf(vr(acc(j), 16), vr(f, 4), ar(4 * k, 4), k == 0))
        for j in grp: done[j] = len(S.m)
    def silu(j, g0, span):
        ins = []
        for hf in range(2):
            o = acc(j) + 8 * hf; t = 64 + 16 * (j % 2) + 8 * hf; p = 96 + 8 * (j % 2) + 4 * hf
            for r in range(8): ins.append(f'v_exp_f32 v{t+r}, v{o+r}')
            for r in range(8): ins.append(f'v_add_f32 v{t+r}, 1.0, v{t+r}')
            for r in range(8): ins.append(f'v_rcp_f32 v{t+r}, v{t+r}')
            for r in range(8): ins.append(f'v_mul_f32 v{t+r}, v{o+r}, v{t+r}')
            for r in range(4): ins.append(f'v_cvt_pk_bf16_f32 v{p+r}, v{t+2*r}, v{t+2*r+1}')
            s_ = 2 * j + hf
            ins.append(f'buffer_store_dwordx4 v[{p}:{p+3}], v6, {srd("WS")}, {sT3 if s_ >= 4 else sT2} offen offset:{1024*(s_%4)} {SC}')
        for i, x in enumerate(ins): S.at(g0 + (i * span) // len(ins), x, 'h1')
    S.at(127, lambda a: (a.wait_all(vm=False), a.raw('s_barrier')))
    silu(0, 66, 21); silu(1, 87, 21); silu(2, 108, 20); silu(3, 128, 0)
    for nm, gg in (('g0', 1), ('g64', 64), ('g128', 128)):
        S.at(gg, lambda a, nm=nm: stamp(a, nm))
    S.emit(a, 'gemm1')

vG2 = 16
sE, sF, sH, sI, sJ = 's70', 's71', 's72', 's73', 's74'
def g2_setup(a):
    lane_fields(a, vG2, [(0, 2, 16), (2, 2, 1024), (4, 1, 64), (5, 1, 4096)], vG2 + 1)
    for p in range(1, 4): a(f'v_add_u32 v{vG2+p}, {p*(8*1024-1024)}, v{vG2}')
    a(f's_and_b32 {sF}, {sRB}, 7')
    a(f's_lshr_b32 {sE}, {sRB}, 3'); a(f's_lshl_b32 {sT0}, {sG}, 2'); a(f's_add_u32 {sE}, {sE}, {sT0}')
    a(f's_mul_i32 {sH}, {sW}, {448*1024}'); a(f's_lshl_b32 {sT0}, {sF}, 7'); a(f's_add_u32 {sH}, {sH}, {sT0}')
    a(f's_lshl_b32 {sI}, {sW}, 13'); a(f's_add_u32 {sI}, {sI}, 0x20000')
    a(f's_lshl_b32 {sJ}, {sW}, 15')
def w2_dma(n2):
    m = n2 % 10
    out = [f's_add_u32 m0, {sI if m < 2 else sJ}, {4096*(m if m < 2 else m-2)}', f's_add_u32 {sT1}, {sH}, {n2*32*1024}']
    return out + [dma(sT1, vG2 + p, 'W2', 1024 * p) for p in range(4)]

def phase_g2(a):
    sA, sB = sE, sF
    a('v_lshlrev_b32 v6, 4, v0')
    a(f's_mul_i32 {sT2}, {sA}, {2*112*1024}'); a(f's_mul_i32 {sT0}, {sW}, {28*1024}'); a(f's_add_u32 {sT2}, {sT2}, {sT0}')
    a(f's_add_u32 {sT2}, {sT2}, {WS_H1}'); a(f's_add_u32 {sT3}, {sT2}, {112*1024}')
    aB = lambda k, qt: 8 * k + 4 * qt
    def b_load(k):
        out = []
        if k and k % 4 == 0: out += [f's_add_u32 {sT2}, {sT2}, 4096', f's_add_u32 {sT3}, {sT3}, 4096']
        for qt in range(2):
            out.append(f'buffer_load_dwordx4 {ar(aB(k,qt),4)}, v6, {srd("WS")}, {sT3 if qt else sT2} offen offset:{1024*(k%4)} {SC}')
        return out
    S = Sched()
    PF = 6
    for k in range(PF):
        for x in b_load(k): S.at(-100, x)
    def addr(a):
        tr_pattern(a, 7, 8, 1024)
        a(f'v_add_u32 v5, {sI}, v7'); a(f'v_add_u32 v7, {sJ}, v7')
    S.at(-100, addr)
    vA = lambda k, j: 32 + 8 * (k % 4) + 4 * j
    acc = lambda j, qt: 128 + 16 * (2 * j + qt)
    def a_reads(k, g0):
        if k % 2 == 0: S.at(g0, lambda a, k=k: a.wait_tag(('w2', k // 2)))
        for j in range(2):
            for rr in range(2):
                S.at(g0 + 2 * j + rr, f'ds_read_b64_tr_b16 {vr(vA(k,j)+2*rr,2)}, v{5 if k % 20 < 4 else 7} offset:{2048*(k % 20 if k % 20 < 4 else k % 20 - 4) + 256*j + 512*rr}', ('ar', k))
    a_reads(0, -100); a_reads(1, -100)
    for k in range(28):
        g0 = 4 * k
        for j in range(2):
            for qt in range(2):
                S.mfma(mf(vr(acc(j, qt), 16), vr(vA(k, j), 4), ar(aB(k, qt), 4), k == 0))
        if k + 2 < 28: a_reads(k + 2, g0 + 1)
        if k + PF < 28:
            for i, x in enumerate(b_load(k + PF)): S.at(g0 + 1 + i // 2, x)
        if k in (10, 12, 14, 16): S.group(g0 + 1, w2_dma(k // 2 + 5), ('w2', k // 2 + 5))
    def epi_loads(a):
        lane_fields(a, 8, [(0, 3, 128), (3, 3, 16)], 9)
        a(f's_lshl_b32 {sT0}, {sA}, 16'); a(f's_lshl_b32 {sT1}, {sW}, 14'); a(f's_add_u32 {sT0}, {sT0}, {sT1}')
        a(f's_lshl_b32 {sT1}, {sB}, 10'); a(f's_add_u32 {sT0}, {sT0}, {sT1}'); a(f's_add_u32 {sT0}, {sT0}, {WS_X1}')
        a(f'buffer_load_dwordx4 v[12:15], v8, {srd("WS")}, {sT0} offen {SC}')
        a(f's_add_u32 {sT0}, {sT0}, 8192')
        a(f'buffer_load_dwordx4 v[16:19], v8, {srd("WS")}, {sT0} offen {SC}')
        lane_fields(a, 9, [(0, 3, 32)], 10)
        a(f's_lshl_b32 {sT0}, {sB}, 8'); a(f's_add_u32 {sT0}, {sT0}, {WS_MOD + 2048*5}')
        for hf in range(2): a(f'buffer_load_dwordx4 v[{20+4*hf}:{23+4*hf}], v9, {srd("WS")}, {sT0} offen offset:{16*hf} {SC}')
    S.at(92, epi_loads)
    for nm, gg in (('f0', 1), ('f56', 56), ('f112', 112)):
        S.at(gg, lambda a, nm=nm: stamp(a, nm))
    S.emit(a, 'gemm2')
    OCT = 1152; HALF = 8 * OCT; WV = 2 * HALF
    lane_fields(a, 10, [(3, 2, OCT), (5, 1, 144), (0, 3, 16)], 11)
    a(f's_mul_i32 {sT0}, {sW}, {WV}'); a(f'v_add_u32 v10, {sT0}, v10')
    lane_fields(a, 11, [(0, 3, 144), (3, 3, 16)], 9)
    a(f's_mul_i32 {sT0}, {sW}, {2*OCT}'); a(f'v_add_u32 v11, {sT0}, v11')
    a.wait_all(vm=False)
    a.raw('s_barrier')
    for j in range(2):
        for qt in range(2):
            for hf in range(2):
                for e in range(2):
                    o = acc(j, qt) + 8 * hf + 4 * e
                    a(f'ds_write_b128 v10, v[{o}:{o+3}] offset:{e*HALF + 4*qt*OCT + (4*j + 2*hf)*144}')
    a(f'v_add_u32 v9, {2*WV}, v11')
    lane_fields(a, 8, [(3, 3, 1024), (0, 3, 16)], 28)
    a(f's_lshl_b32 {sT0}, {sA}, 16'); a(f's_lshl_b32 {sT1}, {sW}, 14'); a(f's_add_u32 {sT0}, {sT0}, {sT1}')
    a(f's_lshl_b32 {sT1}, {sB}, 7'); a(f's_add_u32 {sT0}, {sT0}, {sT1}'); a(f's_add_u32 {sT1}, {sT0}, 8192')
    for r in range(8):
        a(f'v_lshlrev_b32 v{96+2*r}, 16, v{12+r}'); a(f'v_and_b32 v{97+2*r}, {sMASK}, v{12+r}')
    a.wait_all(vm=False)
    a.raw('s_barrier')
    for i in range(2):
        for w in range(4):
            for e in range(2):
                b = 32 + 32 * i + 8 * w + 4 * e
                a(f'ds_read_b128 v[{b}:{b+3}], v{11 if w < 2 else 9} offset:{(w%2)*WV + e*HALF + i*OCT}')
    for i in range(2):
        b = 32 + 32 * i
        for r in range(4): a(f'v_pk_add_f32 v[{b+2*r}:{b+2*r+1}], v[{b+2*r}:{b+2*r+1}], v[{b+8+2*r}:{b+9+2*r}]')
        for r in range(4): a(f'v_pk_add_f32 v[{b+16+2*r}:{b+17+2*r}], v[{b+16+2*r}:{b+17+2*r}], v[{b+24+2*r}:{b+25+2*r}]')
        for r in range(4): a(f'v_pk_add_f32 v[{b+2*r}:{b+2*r+1}], v[{b+2*r}:{b+2*r+1}], v[{b+16+2*r}:{b+17+2*r}]')
        for r in range(4): a(f'v_pk_fma_f32 v[{b+2*r}:{b+2*r+1}], v[{b+2*r}:{b+2*r+1}], v[{20+2*r}:{21+2*r}], v[{96+8*i+2*r}:{97+8*i+2*r}]')
        for r in range(4): a(f'v_cvt_pk_bf16_f32 v{b+8+r}, v{b+2*r}, v{b+2*r+1}')
        a(f'buffer_store_dwordx4 v[{b+8}:{b+11}], v8, {srd("OUT")}, {sT1 if i else sT0} offen')

def kernel(name, body):
    a = Asm(); a.uid = kernel.uid
    body(a, 'L_end')
    kernel.uid = a.uid
    print(name, 'nop states', a.nnop, 'lines', len(a.lines))
    return f'.globl {name}\n.p2align 8\n.type {name},@function\n{name}:\n' + a.text()
kernel.uid = 0

def desc(name):
    return f""".p2align 6
.amdhsa_kernel {name}
  .amdhsa_next_free_vgpr 512
  .amdhsa_next_free_sgpr 102
  .amdhsa_accum_offset 256
  .amdhsa_group_segment_fixed_size 0
  .amdhsa_kernarg_size 104
  .amdhsa_user_sgpr_count 2
  .amdhsa_user_sgpr_kernarg_segment_ptr 1
  .amdhsa_system_sgpr_workgroup_id_x 1
.end_amdhsa_kernel
"""

def k_mega(a, end):
    prologue(a, ['WM', 'C', 'X', 'WS', 'DBG', 'WQ', 'K', 'V', 'WO', 'W1', 'W2', 'OUT'], 256, end)
    a(f's_lshr_b32 {sN}, s2, 3'); a(f's_lshl_b32 {sN}, {sN}, 2'); a(f's_add_u32 {sN}, {sN}, {sW}')
    x_setup(a)
    lprod, lj = a.newlabel('prod'), a.newlabel('prodj')
    a.wait_all()
    a('s_cmp_lt_u32 s2, 48')
    a.raw(f's_cbranch_scc1 {lprod}')
    a(f's_sub_u32 {sT0}, {sN}, 24'); a(f's_lshr_b32 {sT1}, {sT0}, 4'); a(f's_and_b32 {sT0}, {sT0}, 15')
    a(f's_mul_i32 {sT0}, {sT0}, {32*6144}'); a(f's_min_u32 {sT1}, {sT1}, 5'); a(f's_lshl_b32 {sT1}, {sT1}, 10'); a(f's_add_u32 {sT0}, {sT0}, {sT1}')
    a(f's_and_b32 {sT1}, s2, 7'); a(f's_lshl_b32 {sT1}, {sT1}, 7'); a(f's_add_u32 {sT0}, {sT0}, {sT1}')
    touch(a, 'WM', [(0, 5, 6144)], 32, sT0, 2, 3)
    for i in range(16):
        for t in x_load(i): a(t)
    a.label(lj)
    main_vm = list(a.vm)
    stamp(a, 'xissue')
    prefetch1(a)
    phase_main_setup(a)
    phase_ln1_stats(a); stamp(a, 'stats')
    lw = a.newlabel('mw')
    a(f'v_lshlrev_b32 v{vT+1}, 2, v0')
    a(f's_cmp_lg_u32 {sW}, 1')
    a.raw(f's_cbranch_scc1 {lw}')
    spin(a, 'DBG', '0', vT + 1, vT + 2, 16)
    a.label(lw)
    a.raw('s_barrier'); stamp(a, 'modok')
    phase_ln1_modload(a)
    phase_ln1_apply(a); stamp(a, 'apply')
    phase_main(a, 'L_slow', 'L_join')
    g1_ids(a)
    l1, l2 = a.newlabel('now1'), a.newlabel('now1j')
    a(f's_cmp_ge_u32 {sRB}, 28')
    a.raw(f's_cbranch_scc0 {l1}')
    a.raw('s_waitcnt vmcnt(0)')
    a.raw(f's_branch {l2}')
    a.label(l1)
    g1_wload(a)
    a.label(l2)
    g2_setup(a)
    a(f'v_lshlrev_b32 v{vSIG}, 8, v0')
    a(f's_and_b32 {sSIG}, {sL}, 0xf8'); a(f's_lshl_b32 {sSIG}, {sSIG}, 8'); a(f's_and_b32 {sT0}, {sL}, 7'); a(f's_lshl_b32 {sT0}, {sT0}, 2')
    a(f's_add_u32 {sSIG}, {sSIG}, {sT0}'); a(f's_add_u32 {sSIG}, {sSIG}, {WS_FLG}')
    a(f's_lshl_b32 {sWAIT}, {sL}, 8'); a(f's_add_u32 {sWAIT}, {sWAIT}, {WS_FLG}')
    a.wait_tag('p1'); stamp(a, 'p1done')
    handoff(a, 'p1', (8, vSIG, sSIG), (8, sWAIT)); stamp(a, 'syncA')
    phase_red(a, 0x20000)
    a(f'v_lshlrev_b32 v{vSIG}, 11, v0')
    a(f's_bfe_u32 {sSIG}, {sL}, 0x10004'); a(f's_mul_i32 {sSIG}, {sSIG}, {14*8}'); a(f's_lshr_b32 {sT0}, {sL}, 5'); a(f's_add_u32 {sSIG}, {sSIG}, {sT0}')
    a(f's_lshl_b32 {sSIG}, {sSIG}, 8'); a(f's_and_b32 {sT0}, {sL}, 15'); a(f's_lshl_b32 {sT0}, {sT0}, 2'); a(f's_add_u32 {sSIG}, {sSIG}, {sT0}')
    a(f's_add_u32 {sSIG}, {sSIG}, {WS_FLG + 64}')
    a(f's_lshl_b32 {sWAIT}, s2, 8'); a(f's_add_u32 {sWAIT}, {sWAIT}, {WS_FLG + 64}')
    stamp(a, 'red')
    handoff(a, 'h2', (14, vSIG, sSIG), None); stamp(a, 'h2done')
    for n2 in range(2):
        for x in w2_dma(n2): a(x, ('w2', n2))
    l1, l2 = a.newlabel('nog1'), a.newlabel('nog1j')
    a(f's_cmp_ge_u32 {sRB}, 28')
    a.raw(f's_cbranch_scc1 {l1}')
    lw = a.newlabel('bw')
    a(f's_cmp_lg_u32 {sW}, 1')
    a.raw(f's_cbranch_scc1 {lw}')
    spin(a, 'WS', sWAIT, vL4, vPOLL, 16)
    a.label(lw)
    a.raw('s_barrier'); stamp(a, 'syncB')
    g1_bload(a)
    phase_g1(a)
    for n2 in range(2, 10):
        for x in w2_dma(n2): a(x, ('w2', n2))
    a(f's_lshl_b32 {sSIG}, s69, 7'); a(f's_add_u32 {sSIG}, {sSIG}, {sG}'); a(f's_lshl_b32 {sSIG}, {sSIG}, 8')
    a(f's_lshl_b32 {sT0}, {sB}, 2'); a(f's_add_u32 {sSIG}, {sSIG}, {sT0}'); a(f's_add_u32 {sSIG}, {sSIG}, {WS_FLG + 128}')
    handoff(a, 'h1', (16, vSIG, sSIG), None)
    a.raw(f's_branch {l2}')
    a.label(l1)
    for n2 in range(2, 10):
        for x in w2_dma(n2): a.raw(x); a.raw('s_nop 0')
    a.raw('s_waitcnt vmcnt(32)')
    a.label(l2)
    stamp(a, 'h1done')
    a(f's_add_u32 {sWAIT}, {sWAIT}, 64')
    lw = a.newlabel('cw')
    a(f's_cmp_lg_u32 {sW}, 1')
    a.raw(f's_cbranch_scc1 {lw}')
    spin(a, 'WS', sWAIT, vL4, vPOLL, 14)
    a.label(lw)
    a.raw('s_barrier'); stamp(a, 'syncC')
    phase_g2(a)
    stamp_flush(a); a.label(end); a.raw('s_endpgm')
    a.label(lprod)
    a.vm = []; a.lg = []; a.hist = []
    phase_mod(a)
    a.raw(f's_branch {lj}')
    slow_path(a, 'L_slow', 'L_join')
    a.label('L_mod2')
    spin(a, 'DBG', '0', vT + 2, vT + 3, 32)
    a.raw('s_branch L_mod2j')

def prefetch1(a):
    a.comment('L2 warm-up: wq, K, V')
    nw = 64 if OPT['r2'] else 128
    if OPT['r2']:
        a(f's_lshr_b32 s80, s2, 4'); a('s_lshl_b32 s80, s80, 2'); a(f's_add_u32 s80, s80, {sW}')
    else: a(f's_mov_b32 s80, {sN}')
    rows = 512 // nw
    a(f's_mul_i32 {sT0}, s80, {rows*8192}'); a(f's_lshl_b32 {sT1}, {sG}, 10'); a(f's_add_u32 {sT0}, {sT0}, {sT1}')
    touch(a, 'WQ', [(3, 3, 8192), (0, 3, 128)], rows * 8, sT0, 3, 4)
    a(f's_mul_i32 {sT0}, s80, {rows*256}'); a(f's_lshl_b32 {sT1}, {sG}, 19'); a(f's_add_u32 {sT0}, {sT0}, {sT1}'); a(f's_add_u32 {sT0}, {sT0}, {1536*256}')
    touch(a, 'K', [(0, 6, 128)], rows * 2, sT0, 5, 4)
    touch(a, 'V', [(0, 6, 128)], rows * 2, sT0, 6, 4)

def main(out):
    ref = open(f'cdna_kernels/{NAME}.s.ref').read().splitlines()
    head = [l for l in ref if l.startswith(';') and '@launch' not in l]
    s = '\n'.join(head) + '\n'
    s += f'; @launch grid=(256,1,1) block=(256,1,1) lds={LDS_BYTES}\n'
    s += '.amdgcn_target "amdgcn-amd-amdhsa--gfx950"\n.text\n'
    s += kernel(NAME + '_kernel', k_mega)
    s += '.section .rodata,"a"\n'
    s += desc(NAME + '_kernel')
    open(out, 'w').write(s)
    if OPT['stamps']:
        import json; json.dump(stamp_names, open(out + '.stamps', 'w'))

if __name__ == '__main__':
    for o in sys.argv[2:]:
        k, v = o.split('='); OPT[k] = v if k == 'probe' else int(v)
    main(sys.argv[1] if len(sys.argv) > 1 else f'cdna_kernels/{NAME}.s')
```

```python
import re

REG = re.compile(r'(?<![\w.])([vas])(?:(\d+)(?![\w\[])|\[(\d+):(\d+)\])')

def regs_of(tok):
    out = []
    t = tok.strip()
    if t in ('vcc', 'vcc_lo', 'vcc_hi'): return [('x', 'vcc')]
    if t in ('exec', 'exec_lo', 'exec_hi'): return [('x', 'exec')]
    if t == 'm0': return [('x', 'm0')]
    for m in REG.finditer(t):
        k = m.group(1)
        if m.group(2) is not None: out.append((k, int(m.group(2))))
        else: out += [(k, i) for i in range(int(m.group(3)), int(m.group(4)) + 1)]
    return out

def split_ops(rest):
    ops, depth, cur = [], 0, ''
    for ch in rest:
        if ch == '[': depth += 1
        if ch == ']': depth -= 1
        if ch == ',' and depth == 0:
            ops.append(cur.strip()); cur = ''
        else: cur += ch
    if cur.strip(): ops.append(cur.strip())
    return ops

TRANS = ('v_exp_f32', 'v_log_f32', 'v_rcp_f32', 'v_rsq_f32', 'v_sqrt_f32')

class Ins:
    def __init__(self, text, tag=None):
        self.text = text; self.tag = tag
        p = text.split(None, 1)
        self.op = op = p[0]
        ops = split_ops(p[1]) if len(p) > 1 else []
        if ops:
            last = ops[-1].split()
            mods = ' '.join(last[1:]); ops[-1] = last[0]
        else: mods = ''
        self.ops = ops; self.mods = mods
        R = [regs_of(o) for o in ops]
        flat = lambda L: [r for x in L for r in x]
        self.kind = 'salu'; self.w = []; self.r = []; self.srcC = []; self.passes = 0; self.data = []
        if op.startswith('v_mfma'):
            self.kind = 'mfma'; self.w = R[0]; self.r = flat(R[1:]); self.srcC = R[3]; self.ab = R[1] + R[2]
            self.passes = 8 if '32x32x16' in op else 4
        elif op.startswith('ds_read'):
            self.kind = 'lds'; self.w = R[0]; self.r = flat(R[1:])
        elif op.startswith('ds_write'):
            self.kind = 'lds'; self.r = flat(R)
        elif op.startswith('buffer_load'):
            self.kind = 'vmem'
            if ' lds' in (' ' + mods): self.r = flat(R) + [('x', 'm0')]; self.dma = True
            else: self.w = R[0]; self.r = flat(R[1:])
        elif op.startswith('global_load'):
            self.kind = 'vmem'; self.w = R[0]; self.r = flat(R[1:])
        elif op.startswith('buffer_store'):
            self.kind = 'vmem'; self.r = flat(R)
            if 'x4' in op or 'x3' in op: self.data = R[0]
        elif op.startswith('buffer_atomic'):
            self.kind = 'vmem'; self.r = flat(R)
            if 'sc0' in mods: self.w = R[0]
        elif op.startswith('s_load') or op in ('s_memtime', 's_memrealtime'):
            self.kind = 'smem'; self.w = R[0]; self.r = flat(R[1:])
        elif op.startswith('v_'):
            self.kind = 'valu'
            self.w = list(R[0]); self.r = flat(R[1:])
            if 'swap' in op: self.w = R[0] + R[1]; self.r = R[0] + R[1]
            if op.startswith(('v_fmac', 'v_dot2c', 'v_writelane')): self.r += R[0]
            if op.startswith(('v_add_co', 'v_sub_co', 'v_addc_co')): self.w += R[1]; self.r = flat(R[2:])
            if op.startswith('v_cmpx'): self.w += [('x', 'exec')]
        elif op.startswith('s_'):
            if op.startswith(('s_cmp', 's_bitcmp')): self.r = flat(R)
            elif op.startswith(('s_waitcnt', 's_barrier', 's_nop', 's_cbranch', 's_branch', 's_setprio', 's_sleep', 's_endpgm')): pass
            else:
                self.w = list(R[0]); self.r = flat(R[1:])
                if 'saveexec' in op: self.w += [('x', 'exec')]
        else:
            raise ValueError('unknown op ' + text)
        self.trans = op.startswith(TRANS)
        self.dpp = ('_dpp' in op) or ('row_' in mods) or ('quad_perm' in mods)
        self.perm = 'permlane' in op
        self.rdlane = op.startswith(('v_readlane', 'v_readfirstlane'))
        self.dot = op.startswith('v_dot')
    def states(self):
        if self.op == 's_nop': return int(self.ops[0]) + 1
        return 1
    def cost(self):
        if self.kind == 'mfma': return 8
        if self.trans or self.perm: return 8
        if self.op == 's_nop': return 4 * self.states()
        return 4

class Asm:
    def __init__(self):
        self.lines = []
        self.hist = []
        self.vm = []
        self.lg = []
        self.smem_pending = set()
        self.nnop = 0
        self.uid = 0
        self.seen = set(); self.waited = set()
    def label(self, name):
        self.lines.append(name + ':')
    def comment(self, t):
        self.lines.append('    ; ' + t)
    def newlabel(self, p):
        self.uid += 1
        return f'L_{p}_{self.uid}'
    def raw(self, text):
        i = Ins(text); self.lines.append('    ' + text); self.hist.append(i); self.hist = self.hist[-40:]
        return i
    def _wait(self, vm=None, lg=None):
        parts = []
        if vm is not None and vm < len(self.vm):
            assert vm <= 63
            parts.append(f'vmcnt({vm})'); self.vm = self.vm[len(self.vm) - vm:] if vm else []
        if lg is not None and (lg < len(self.lg) or (lg == 0 and self.smem_pending)):
            if self.smem_pending: lg = 0
            lg = min(lg, 15)
            parts.append(f'lgkmcnt({lg})'); self.lg = self.lg[len(self.lg) - lg:] if lg else []
            if lg == 0: self.smem_pending = set()
        if parts: self.raw('s_waitcnt ' + ' '.join(parts))
    def wait_tag(self, tag):
        assert tag in self.seen, ('wait for a tag that was never issued', tag)
        self.waited.add(tag)
        idx = [k for k, e in enumerate(self.vm) if e[1] == tag]
        if idx: self._wait(vm=min(63, len(self.vm) - 1 - idx[-1]))
    def wait_lds_tag(self, tag):
        idx = [k for k, e in enumerate(self.lg) if e[1] == tag]
        if idx: self._wait(lg=len(self.lg) - 1 - idx[-1])
    def wait_all(self, vm=True, lg=True):
        self._wait(vm=0 if vm else None, lg=0 if lg else None)
    def fence(self, nop=True):
        self.raw('s_waitcnt vmcnt(0) lgkmcnt(0)'); self.vm = []; self.lg = []; self.smem_pending = set()
        if nop: self.raw('s_nop 15'); self.raw('s_nop 3')
    def vm_maybe(self):
        pass
    def fake_vm(self, n, tag):
        self.vm += [(set(), tag)] * n
    def _hazard(self, i):
        need = 0
        dist = 0
        R, W = set(i.r), set(i.w)
        vR = {r for r in R if r[0] in 'va'}; vW = {r for r in W if r[0] in 'va'}
        sR = {r for r in R if r[0] == 's' or r == ('x', 'vcc')}
        if i.op.startswith('v_cndmask') or i.op.startswith('v_addc'): sR |= {('x', 'vcc')} if 'vcc' in i.text else set()
        for p in reversed(self.hist):
            pw = set(p.w); req = 0
            if p.kind == 'mfma':
                big = 12 if p.passes == 8 else 8
                if i.kind == 'mfma':
                    if pw & set(i.ab): req = big
                    elif pw & set(i.srcC):
                        req = 0 if (p.w == i.srcC and p.passes == i.passes) else (10 if p.passes == 8 else 6)
                    elif pw & vW: req = big
                elif pw & (vR | vW): req = big
                if i.kind == 'valu' and set(p.srcC) & vW: req = max(req, 7 if p.passes == 8 else 3)
            elif p.kind == 'valu':
                pv = {r for r in pw if r[0] in 'va'}; ps = {r for r in pw if r[0] == 's' or r == ('x', 'vcc')}
                if i.kind == 'mfma' and pv & vR: req = 3 if p.dot else 2
                if i.kind == 'valu':
                    if (i.dpp or i.perm) and pv & vR: req = max(req, 2)
                    if i.rdlane and pv & vR: req = max(req, 1)
                    if p.trans and not i.trans and pv & (vR | vW): req = max(req, 1)
                    if p.dot and pv & (vR | vW):
                        same = p.op == i.op and not (pv & set(regs_of(i.ops[1]) + regs_of(i.ops[2])))
                        req = max(req, 0 if same else 3)
                    if ps & sR: req = max(req, 4 if i.op.startswith(('v_readlane', 'v_writelane')) else 2)
                    if ('x', 'exec') in pw: req = max(req, 5)
                if p.dot and i.kind in ('vmem', 'lds') and pv & vR: req = max(req, 3)
                if i.kind == 'vmem' and ps & sR: req = max(req, 5)
                if i.kind == 'mfma' and ('x', 'exec') in pw: req = max(req, 4)
                if i.kind == 'salu' and ps & sR: req = max(req, 1)
                if i.op.startswith('s_cbranch_vcc') and ('x', 'vcc') in pw: req = max(req, 1)
            elif p.kind == 'salu':
                if ('x', 'm0') in pw and ('x', 'm0') in R: req = 1
            elif p.kind == 'vmem':
                if p.data and set(p.data) & vW: req = 2
            need = max(need, req - dist)
            dist += p.states()
            if dist > 24: break
        return need
    def __call__(self, text, tag=None):
        i = Ins(text, tag)
        touched = set(i.r) | set(i.w)
        vmn = None
        for k, (regs, _) in enumerate(self.vm):
            if regs & touched: vmn = len(self.vm) - 1 - k
        lgn = None
        for k, (regs, _) in enumerate(self.lg):
            if regs & touched: lgn = len(self.lg) - 1 - k
        if self.smem_pending & touched: lgn = 0
        if vmn is not None: vmn = min(vmn, 63)
        self._wait(vm=vmn, lg=lgn)
        n = self._hazard(i)
        if n > 0:
            self.nnop += n
            while n > 0:
                k = min(n, 16); self.raw(f's_nop {k-1}'); n -= k
        if i.kind == 'vmem' and len(self.vm) >= 63:
            self._wait(vm=62)
        self.lines.append('    ' + text); self.hist.append(i); self.hist = self.hist[-40:]
        if i.kind == 'vmem':
            assert tag is None or tag not in self.waited, ('issued after its wait', tag)
            self.vm.append((set(i.w), tag)); self.seen.add(tag)
        elif i.kind == 'lds': self.lg.append((set(i.w), tag))
        elif i.kind == 'smem': self.smem_pending |= set(i.w)
        return i
    def text(self):
        return '\n'.join(self.lines) + '\n'

class Sched:
    def __init__(self):
        self.m = []
        self.gaps = {}
    def mfma(self, text):
        self.m.append(text); return len(self.m) - 1
    def at(self, g, item, tag=None):
        self.gaps.setdefault(max(g, 0), []).append((item, tag))
    def group(self, g, items, tag=None, stride=1, pre=None):
        g = max(g, getattr(self, 'gend', -10**9))
        if pre: self.at(g, pre)
        for i, x in enumerate(items): self.at(g + stride * i, x, tag)
        self.gend = g + stride * (len(items) - 1)
    def emit(self, a, report=None):
        n = len(self.m); last = max([n] + list(self.gaps.keys()))
        costs = []
        for g in range(last + 1):
            k0 = len(a.lines)
            for item, tag in self.gaps.get(g, []):
                if callable(item): item(a)
                else: a(item, tag)
            if g < n: a(self.m[g])
            c = sum(Ins(t.strip()).cost() for t in a.lines[k0:] if not t.strip().startswith(';') and not t.endswith(':'))
            costs.append(c)
        if report:
            over = sum(max(0, c - 32) for c in costs)
            print(f'{report}: {n} mfma, gaps>32: {sum(c > 32 for c in costs)}, excess {over}, total {sum(costs)}')
        return costs

class Sched2:
    def __init__(self, cap):
        self.cap = cap; self.m = []; self.sc = {}; self.mem_ = {}; self.va = {}; self.used = {}; self.solo = set()
        self.blk = {}; self.gend = -10**9
    def mfma(self, text):
        self.m.append(text); return len(self.m) - 1
    def _inside(self, g): return 0 < g < len(self.m)
    def free(self, g): return self.cap - self.used.get(g, 0)
    def scal(self, g, item, tag=None, force=False):
        g = max(g, 0)
        ok = lambda h: not (self.sc.get(h) or h in self.solo)
        while not force and self._inside(g) and not ok(g): g += 1
        if not force and self.cap == 2 and self._inside(g) and not self.used.get(g):
            for h in (g + 1, g + 2):
                if self._inside(h) and ok(h) and self.used.get(h): g = h; break
        self.sc.setdefault(g, []).append((item, tag)); return g
    def mem(self, g, item, tag=None, force=False):
        g = max(g, 0); i = Ins(item); vm = i.kind == 'vmem' or i.op.startswith('ds_write')
        need = min(self.cap, 3) if vm else 1
        while not force and self._inside(g):
            ok = self.free(g) >= need
            if self.cap == 2:
                ok = ok and not self.mem_.get(g)
                if vm: ok = ok and not self.sc.get(g)
            if ok: break
            g += 1
        if vm and self.cap == 2: self.solo.add(g)
        self.used[g] = self.used.get(g, 0) + need
        self.mem_.setdefault(g, []).append((item, tag)); return g
    def valu(self, g, item, force=False, limit=None):
        g = max(g, 0); i = Ins(item); need = 2 if (i.trans or i.perm) else 1
        g1 = g
        while not force and self._inside(g1) and self.free(g1) < need:
            g1 += 1
            if limit is not None and g1 > limit: g1 = g; break
        self.used[g1] = self.used.get(g1, 0) + need
        self.va.setdefault(g1, []).append((item, None)); return g1
    def block(self, g, fn):
        self.blk.setdefault(max(g, 0), []).append(fn); return g
    def put(self, g, item, tag=None):
        if callable(item): return self.scal(g, item)
        k = Ins(item).kind
        if k == 'salu': return self.scal(g, item, tag)
        if k == 'valu': return self.valu(g, item)
        return self.mem(g, item, tag)
    def chain(self, g, items, tag=None, stride=0):
        rank = lambda x: 0 if callable(x) or Ins(x).kind == 'salu' else (2 if Ins(x).kind == 'valu' else 1)
        prev = None
        for x in items:
            if prev is not None and rank(x) < rank(prev): g += 1
            g = self.put(g, x, tag); prev = x
            last = g
            if rank(x) == 1: g += stride
        return last
    def group(self, g, items, tag=None, stride=0):
        self.par = 1 - getattr(self, 'par', 0); so = ('s82', 's83')[self.par]
        rest = []
        for x in items:
            if not callable(x) and x.startswith('s_add_u32 {so}'):
                g = max(g, self.scal(max(getattr(self, 'gend2', 0) + 1, g - 12, 1), x.replace('{so}', so)))
            else: rest.append(x if callable(x) else x.replace('{so}', so))
        g = max(g, self.gend + 1); self.gend2 = self.gend
        self.gend = self.chain(g, rest, tag, stride); return self.gend
    def emit(self, a, report=None):
        n = len(self.m); keys = set(self.sc) | set(self.mem_) | set(self.va) | set(self.blk)
        last = max([n] + list(keys)); est = 0; per = 16 if self.cap == 2 else 32
        xfree = lambda g: not self.sc.get(g) and g not in self.solo
        for g in range(last + 1):
            k0 = len(a.lines)
            ordered = self._inside(g)
            if ordered:
                if xfree(g):
                    h = g
                    while True:
                        a.prewait(self.m[h]); h += 1
                        if h >= n or xfree(h) or h - g > 3: break
                    a.flush_prewait()
                else:
                    a.prewait(self.m[g]); a.flush_prewait()
            for lst in (self.sc, self.mem_, self.va):
                for item, tag in lst.get(g, []):
                    if callable(item): item(a)
                    else: a(item, tag)
            for fn in self.blk.get(g, []): fn(a)
            if g < n: a(self.m[g])
            ins = [Ins(t.strip()) for t in a.lines[k0:] if not t.strip().startswith(';') and not t.endswith(':')]
            c = 0; first = True
            for i in ins:
                if i.kind == 'mfma': continue
                w = i.cost() if i.kind != 'vmem' else 8
                if first and i.kind not in ('salu', 'smem'): c += 4
                c += w; first = False
            est += max(per, c + 4) if ordered else c
        if report: print(f'{report}: {n} mfma, ideal {n*per}, estimate {est}')

def _prewait(self, text):
    i = Ins(text); touched = set(i.r) | set(i.w)
    pw = getattr(self, '_pw', [None, None])
    for k, (regs, _) in enumerate(self.vm):
        if regs & touched:
            v = min(63, len(self.vm) - 1 - k); pw[0] = v if pw[0] is None else min(pw[0], v)
    for k, (regs, _) in enumerate(self.lg):
        if regs & touched:
            v = len(self.lg) - 1 - k; pw[1] = v if pw[1] is None else min(pw[1], v)
    self._pw = pw
def _flush(self):
    pw = getattr(self, '_pw', [None, None]); self._pw = [None, None]
    self._wait(vm=pw[0], lg=pw[1])
Asm.prewait = _prewait
Asm.flush_prewait = _flush
```

```python
import sys, struct, math
from asmlib import Asm, Sched2

NAME = 'adaLN_cond__sliding_block_cached__dense_activation_silu__prompt'
def f2u(x): return struct.unpack('<I', struct.pack('<f', x))[0]
def hx(x): return '0x%08x' % f2u(x)
LOG2E = 1.4426950408889634

SRD = dict(X=4, K=8, V=12, WQ=16, WO=20, W1=24, W2=28, C=32, WM=36, OUT=40, DBG=44, WS=48)
KOFF = dict(X=0, K=8, V=16, WQ=24, WO=32, W1=48, W2=56, C=64, WM=72, OUT=80, DBG=88, WS=96)
SIZE = dict(X=2048*512*2, K=8*2048*128*2, V=8*2048*128*2, WQ=512*4096*2, WO=4096*512*2, W1=512*1792*2,
            W2=1792*512*2, C=1024, WM=512*3072*2, OUT=2048*512*2, DBG=256, WS=1 << 28)
def srd(n): return f's[{SRD[n]}:{SRD[n]+3}]'
sW, sG, sRB = 's52', 's53', 's54'
sT0, sT1, sT2, sT3 = 's55', 's56', 's57', 's58'
sMASK = 's59'
sA, sB, sC, sD = 's60', 's61', 's62', 's63'
sST = 64
sN = 's99'
sBAD = 's[64:65]'
sP = 66
sSIG, sWAIT, sLD = 's70', 's71', 's72'
sRH, sR32, sFS = 's73', 's74', 's75'
sE, sF, sH = 's76', 's77', 's78'
sW1, sRD, sH1 = 's79', 's80', 's81'

WS_MOD = 0
WS_FLG = 0x10000
WS_STAMP = 0x20000
WS_X1 = 0x200000
WS_H2 = 0x400000
WS_H1 = 0x600000
WS_P1 = 0x1000000
SC = 'sc1'
F_A0, F_A1, F_B, F_C0, F_C1 = 0, 32, 64, 128, 192

L_B, L_A = 32768, 65536
LDS_BYTES = 163840
def slot_lds(sig): return L_A + 16384 * sig

def vr(b, n=1, k='v'): return f'{k}{b}' if n == 1 else f'{k}[{b}:{b+n-1}]'
def ar(b, n=1): return vr(b, n, 'a')

OPT = dict(stamps=0, probe='', pwg=100, pmul=4, st0=16)
stamp_names = []
def stamp(a, name):
    if OPT['probe']:
        pa, pb = OPT['probe'].split(':')
        if name == pa: a('s_memrealtime s[100:101]')
        if name == pb: a('s_memrealtime s[96:97]')
    if not OPT['stamps']: return
    if name.startswith('m_') != (OPT['stamps'] == 2) and name not in ('args', 'xissue', 'stats', 'modok', 'apply', 'end', 'q16'): return
    i = len(stamp_names[-1]); stamp_names[-1].append(name)
    a('s_memrealtime s[100:101]')
    a(f'v_writelane_b32 v1, s100, {i}')
    a('s_memtime s[100:101]')
    a(f'v_writelane_b32 v1, s100, {32+i}')
def stamp_flush(a):
    if OPT['probe']:
        a.wait_all(); stamp(a, 'end')
        a('s_memrealtime s[94:95]'); a.wait_all()
        a(f's_cmp_lg_u32 s2, {OPT["pwg"]}'); a.raw('s_cbranch_scc1 L_end')
        a('s_sub_u32 s92, s96, s100'); a(f's_mul_i32 s92, s92, {OPT["pmul"]}'); a('s_min_u32 s92, s92, 100000')
        a.label('L_probe')
        a.raw('s_memrealtime s[90:91]'); a.raw('s_waitcnt lgkmcnt(0)'); a.raw('s_sub_u32 s90, s90, s94'); a.raw('s_cmp_lt_u32 s90, s92'); a.raw('s_cbranch_scc1 L_probe')
    if not OPT['stamps']: return
    a.wait_all()
    stamp(a, 'end')
    a(f's_lshl_b32 s100, s2, 10'); a(f's_lshl_b32 s101, {sW}, 8'); a('s_add_u32 s100, s100, s101')
    a(f's_add_u32 s100, s100, {WS_STAMP}')
    a('v_lshlrev_b32 v0, 2, v0')
    a(f'buffer_store_dword v1, v0, {srd("WS")}, s100 offen')

class Collect:
    def __init__(self): self.l = []
    def __call__(self, t, tag=None): self.l.append(t)
def collect(fn, *args, **kw):
    c = Collect(); fn(c, *args, **kw); return c.l

def lane_fields(a, dst, spec, tmp, add=None):
    first = True
    for sh, nb, sc in spec:
        t = dst if first else tmp
        src = t
        if sh == 0 and nb == 6: src = 0
        elif sh == 0: a(f'v_and_b32 v{t}, {(1 << nb) - 1}, v0')
        elif sh + nb == 6: a(f'v_lshrrev_b32 v{t}, {sh}, v0')
        else: a(f'v_bfe_u32 v{t}, v0, {sh}, {nb}')
        if sc & (sc - 1) == 0:
            if first:
                if sc > 1 or src != t: a(f'v_lshlrev_b32 v{t}, {sc.bit_length()-1}, v{src}')
            else: a(f'v_lshl_add_u32 v{dst}, v{src}, {sc.bit_length()-1}, v{dst}')
        else:
            a(f'v_mul_u32_u24 v{t}, {sc}, v{src}')
            if not first: a(f'v_add_u32 v{dst}, v{dst}, v{t}')
        first = False
    if add is not None: a(f'v_add_u32 v{dst}, {add}, v{dst}')

def dma(soff, voff, srdn, imm, fl=''):
    return f'buffer_load_dwordx4 v{voff}, {srd(srdn)}, {soff} offen offset:{imm} {fl + " " if fl else ""}lds'
def barrier(a):
    a.wait_all(vm=False); a.raw('s_barrier')
def set_exec(a, nl):
    if nl < 32: a.raw(f's_mov_b64 exec, {hex((1 << nl) - 1)}')
    else: a.raw('s_mov_b32 exec_lo, -1'); a.raw(f's_mov_b32 exec_hi, {hex((1 << (nl - 32)) - 1)}')
def touch(a, n, vaddr, nl, soff):
    if nl < 64: set_exec(a, nl)
    a.raw(f'buffer_load_dword v28, v{vaddr}, {srd(n)}, {soff} offen'); a.fake_vm(1, None)
    if nl < 64: a.raw('s_mov_b64 exec, -1')

def spin(a, srdn, soff, vaddr, vdst, nl, imm=0):
    loop, out = a.newlabel('poll'), a.newlabel('pollout')
    set_exec(a, nl)
    a.raw('s_mov_b32 s98, 0x200000')
    a.label(loop)
    a.raw(f'buffer_load_dword v{vdst}, v{vaddr}, {srd(srdn)}, {soff} offen offset:{imm} {SC}')
    a.raw('s_sub_u32 s98, s98, 1')
    a.raw(f's_cbranch_scc1 {out}')
    a.raw('s_waitcnt vmcnt(0)')
    a.raw(f'v_cmp_eq_u32 vcc, 0, v{vdst}')
    a.raw('s_nop 0')
    a.raw(f's_cbranch_vccnz {loop}')
    a.label(out)
    a.raw('s_waitcnt vmcnt(0)')
    a.raw('s_mov_b64 exec, -1')
def signal(a, tag, nl, imm):
    a.wait_tag(tag); barrier(a)
    l0 = a.newlabel('sig')
    a(f's_cmp_lg_u32 {sW}, 0')
    a.raw(f's_cbranch_scc1 {l0}')
    set_exec(a, nl)
    a.raw(f'buffer_store_dword v{vONE}, v{vSIG}, {srd("WS")}, {sSIG} offen offset:{imm} {SC}')
    a.raw('s_mov_b64 exec, -1')
    a.label(l0)
def await_flags(a, nl, imm, srdn='WS', soff=None):
    l1 = a.newlabel('aw')
    a(f's_cmp_lg_u32 {sW}, 1')
    a.raw(f's_cbranch_scc1 {l1}')
    spin(a, srdn, soff or sWAIT, vL4, vPOLL, nl, imm)
    a.label(l1)
    barrier(a)

vW4, vKD, vVD = 2, 6, 10
vTRA, vTRB, vTV, vK, vH = 12, 14, 16, 18, 22
vT = 24
vSIG, vPOLL, vONE, vL4 = 28, 29, 30, 31
vQ, vS, vP, vR, vO = 32, 96, 112, 120, 128
aK, aV, aL, aONE, aX = 0, 64, 128, 144, 160

def m16(d, A, B, first): return f'v_mfma_f32_16x16x32_bf16 {d}, {A}, {B}, {"0" if first else d}'
def m32(d, A, B, first): return f'v_mfma_f32_32x32x16_bf16 {d}, {A}, {B}, {"0" if first else d}'

XR = 64
def x_load(i):
    return [f's_add_u32 {sT3}, {sT3}, 1024', f's_and_b32 {sT3}, {sT3}, 0x3c00', f's_add_u32 {sT0}, {sT2}, {sT3}',
            f'buffer_load_dwordx4 v[{XR+4*i}:{XR+4*i+3}], v{vT}, {srd("X")}, {sT0} offen']

def phase_mod(a):
    a.comment('mod = silu(c) @ w_mod, 64 columns per producer')
    W = 128; SL = 32; SH = 48; ACC = 8
    a(f's_lshl_b32 {sA}, s2, 7')
    a(f's_mul_i32 {sT1}, {sW}, {128*6144}')
    a(f's_add_u32 {sA}, {sA}, {sT1}')
    lane_fields(a, 2, [(3, 3, 16 * 6144), (0, 3, 16)], 3)
    lane_fields(a, 3, [(3, 3, 32)], 4)
    a(f's_lshl_b32 {sB}, {sW}, 8')
    for i in range(2): a(f'buffer_load_dwordx4 v[{16+4*i}:{19+4*i}], v3, {srd("C")}, {sB} offen offset:{16*i}')
    def wl(i):
        a(f'buffer_load_dwordx4 v[{W+4*i}:{W+4*i+3}], v2, {srd("WM")}, {sA} offen')
        if i < 15: a(f's_add_u32 {sA}, {sA}, 6144')
    for i in range(8): wl(i)
    for i in range(8): a(f'v_mov_b32 v{ACC+i}, 0')
    for r in range(8):
        a(f'v_lshlrev_b32 v{SH+2*r}, 16, v{16+r}'); a(f'v_and_b32 v{SH+2*r+1}, {sMASK}, v{16+r}')
    for i in range(8, 16): wl(i)
    stamp(a, 'm_issued')
    lab = a.newlabel('nz')
    a('s_cmp_ge_u32 s2, 16')
    a.raw(f's_cbranch_scc1 {lab}')
    a.raw(f's_lshl_b32 {sT0}, s2, 12'); a.raw(f's_lshl_b32 {sT1}, {sW}, 10'); a.raw(f's_add_u32 {sT0}, {sT0}, {sT1}')
    a.raw(f's_add_u32 {sT0}, {sT0}, {WS_FLG}')
    a.raw(f'buffer_store_dwordx4 v[{ACC}:{ACC+3}], v{vT}, {srd("WS")}, {sT0} offen {SC}')
    a.label(lab)
    for i in range(16): a(f'v_mul_f32 v{SL+i}, {hx(-LOG2E)}, v{SH+i}')
    for i in range(16): a(f'v_exp_f32 v{SL+i}, v{SL+i}')
    for i in range(16): a(f'v_add_f32 v{SL+i}, 1.0, v{SL+i}')
    for i in range(16): a(f'v_rcp_f32 v{SL+i}, v{SL+i}')
    for i in range(16): a(f'v_mul_f32 v{SH+i}, v{SH+i}, v{SL+i}')
    for i in range(16): a(f'v_cvt_pk_bf16_f32 v{SL+i}, v{SH+i}, 0')
    for i in range(16): a(f'v_lshlrev_b32 v{SH+i}, 16, v{SL+i}')
    stamp(a, 'm_silu')
    for i in range(16):
        for r in range(4):
            a(f'v_dot2c_f32_bf16 v{ACC+2*r}, v{W+4*i+r}, v{SL+i}')
            a(f'v_dot2c_f32_bf16 v{ACC+2*r+1}, v{W+4*i+r}, v{SH+i}')
    stamp(a, 'm_dot16')
    for i in range(4): a(f'v_permlane32_swap_b32 v{ACC+i}, v{ACC+4+i}')
    for i in range(4): a(f'v_add_f32 v{ACC+i}, v{ACC+i}, v{ACC+4+i}')
    for i in range(2): a(f'v_permlane16_swap_b32 v{ACC+i}, v{ACC+2+i}')
    for i in range(2): a(f'v_add_f32 v{ACC+i}, v{ACC+i}, v{ACC+2+i}')
    lane_fields(a, 4, [(0, 3, 32), (4, 2, 8)], 5)
    a(f'v_add_u32 v4, {sB}, v4')
    for i in range(2): a(f'v_add_f32_dpp v{ACC+i}, v{ACC+i}, v{ACC+i} row_ror:8 row_mask:0xf bank_mask:0xf')
    a(f'ds_write_b64 v4, v[{ACC}:{ACC+1}]')
    a(f's_lshr_b32 {sT1}, s2, 3')
    a(f's_mov_b32 {sB}, {hx(LOG2E/math.sqrt(128.0))}')
    a(f's_cmp_eq_u32 {sT1}, 2'); a(f's_cselect_b32 {sB}, 1.0, {sB}')
    a(f's_cmp_ge_u32 {sT1}, 3'); a(f's_cselect_b32 {sB}, {hx(-LOG2E)}, {sB}')
    a(f's_cmp_eq_u32 {sT1}, 5'); a(f's_cselect_b32 {sB}, {hx(-1.0/LOG2E)}, {sB}')
    a(f's_mov_b32 {sC}, 0')
    a(f's_cmp_eq_u32 {sT1}, 1'); a(f's_cselect_b32 {sC}, 1.0, {sC}')
    a(f's_cmp_eq_u32 {sT1}, 4'); a(f's_cselect_b32 {sC}, 1.0, {sC}')
    a.fence(nop=False)
    a.raw('s_barrier')
    stamp(a, 'm_bar')
    lab = a.newlabel('modskip')
    a(f's_cmp_lg_u32 {sW}, 0')
    a.raw(f's_cbranch_scc1 {lab}')
    for i in range(4): a(f'ds_read_b32 v{ACC+i}, v{vL4} offset:{256*i}')
    a(f's_lshl_b32 {sT1}, s2, 8')
    a(f's_add_u32 {sT1}, {sT1}, {WS_MOD}')
    a(f'v_add_f32 v8, v8, v9'); a('v_add_f32 v10, v10, v11'); a('v_add_f32 v8, v8, v10')
    a('v_cvt_pk_bf16_f32 v8, v8, v8'); a(f'v_and_b32 v8, {sMASK}, v8')
    a(f'v_add_f32 v8, {sC}, v8')
    a('v_cvt_pk_bf16_f32 v8, v8, v8'); a(f'v_and_b32 v8, {sMASK}, v8')
    a(f'v_mul_f32 v8, {sB}, v8')
    a(f'buffer_store_dword v8, v{vL4}, {srd("WS")}, {sT1} offen {SC}')
    stamp(a, 'm_st')
    a.label(lab)
    a.vm = []
    for i in range(8):
        for t in x_load(i): a(t)
    lab = a.newlabel('modskip')
    a(f's_cmp_lg_u32 {sW}, 0')
    a.raw(f's_cbranch_scc1 {lab}')
    a(f's_lshl_b32 {sT1}, s2, 2'); a('s_cmp_ge_u32 s2, 16'); a(f's_cselect_b32 {sT0}, 64, 0'); a(f's_add_u32 {sT1}, {sT1}, {sT0}')
    a.raw('s_mov_b64 exec, 1')
    a.raw('s_waitcnt vmcnt(8)')
    a.raw(f'buffer_store_dword v{vONE}, v0, {srd("DBG")}, {sT1} offen {SC}')
    a.raw('s_mov_b64 exec, -1')
    stamp(a, 'm_stdone')
    a.label(lab)

def butterfly16(a, rs):
    for r in rs:
        for i in range(8): a(f'v_permlane32_swap_b32 v{r+i}, v{r+i+8}')
        for i in range(8): a(f'v_add_f32 v{r+i}, v{r+i}, v{r+i+8}')
    for r in rs:
        for i in range(4): a(f'v_permlane16_swap_b32 v{r+i}, v{r+i+4}')
        for i in range(4): a(f'v_add_f32 v{r+i}, v{r+i}, v{r+i+4}')
    for sh in (8, 4, 2, 1):
        for r in rs:
            for i in range(4):
                a(f'v_add_f32_dpp v{r+i}, v{r+i}, v{r+i} row_ror:{sh} row_mask:0xf bank_mask:0xf')

def wq_sig(n): return (n + 4) % 6
def wq_dma(n, so='{so}'):
    c, k = divmod(n, 16)
    return [f's_add_u32 m0, {sC}, {slot_lds(wq_sig(n))}', f's_add_u32 {so}, {sA}, {k*32*8192 + c*128}'] + \
           [dma(so, vW4 + p, 'WQ', 1024 * p) for p in range(4)]
def wo_sig(n):
    return 2 + n % 4 if n < 6 or n >= 28 else n % 6
def wo_dma(n, so='{so}'):
    c, k = divmod(n, 16)
    return [f's_add_u32 m0, {sC}, {slot_lds(wo_sig(n))}', f's_add_u32 {so}, {sB}, {k*32*1024 + c*128}'] + \
           [dma(so, vW4 + p, 'WO', 1024 * p) for p in range(4)]
def kv_buf(t): return L_B if t % 2 == 0 else L_A
def kv_dma(t, which, so='{so}'):
    out = [f's_add_u32 m0, {sC}, {kv_buf(t) + (0 if which == "K" else 16384)}', f's_add_u32 {so}, {sD}, {t*16384}']
    return out + [dma(so, vKD + p if which == 'K' else vVD + p % 2, which, 1024 * p) for p in range(4)]
def w_read(dst, sig, t, r):
    reg, base = (vTRA, 16384 * sig) if sig < 4 else (vTRB, 16384 * (sig - 4))
    return f'ds_read_b64_tr_b16 {dst}, v{reg + t % 2} offset:{base + 2048*r + 256*(t//2)}'
def w64_offsets(a, dst, tmp, pitch, kq_rows, prow):
    lane_fields(a, dst, [(2, 2, pitch), (4, 1, 64), (5, 1, kq_rows * pitch)], tmp)
    a(f'v_lshrrev_b32 v{tmp}, 4, v0'); a(f'v_and_b32 v{tmp}, 2, v{tmp}'); a(f'v_xor_b32 v{tmp}, v{tmp}, v0')
    a(f'v_and_b32 v{tmp}, 3, v{tmp}'); a(f'v_lshl_add_u32 v{dst}, v{tmp}, 4, v{dst}')
    for p in range(1, 4): a(f'v_add_u32 v{dst+p}, {prow(p)*pitch - 1024*p}, v{dst}')

def main_setup(a):
    a.comment('address set-up')
    t = vT + 1
    a(f's_lshl_b32 {sC}, {sW}, 12')
    w64_offsets(a, vW4, t, 8192, 8, lambda p: 16 * (p & 1) + 4 * (p >> 1))
    a(f's_lshl_b32 {sA}, {sG}, 10'); a(f's_lshl_b32 {sT1}, {sW}, 8'); a(f's_add_u32 {sA}, {sA}, {sT1}')
    a(f's_lshl_b32 {sB}, {sG}, 19'); a(f's_add_u32 {sD}, {sB}, {1536*256}'); a(f's_add_u32 {sD}, {sD}, {sC}')
    a(f's_add_u32 {sB}, {sB}, {sT1}')
    lane_fields(a, vVD, [(0, 2, 16), (2, 2, 256), (4, 2, 64)], t)
    a(f'v_xor_b32 v{vVD+1}, 32, v{vVD}')
    a(f'v_lshrrev_b32 v{t}, 4, v0')
    a(f'v_and_b32 v{t+1}, 15, v0')
    a(f'v_xor_b32 v{t+2}, v{t+1}, v{t}')
    a(f'v_lshlrev_b32 v{t+2}, 4, v{t+2}')
    a(f'v_lshl_add_u32 v{vKD}, v{t}, 8, v{t+2}')
    for p in range(1, 4): a(f'v_xor_b32 v{vKD+p}, {64*p}, v{vKD}')
    a(f'v_mov_b32 v{vH}, v{vKD}'); a(f'v_mov_b32 v{vH+1}, v{vKD+1}')
    lane_fields(a, t + 2, [(5, 1, 1), (4, 1, 2)], t)
    a(f'v_xor_b32 v{t+2}, v{t+2}, v{t+1}')
    a(f'v_lshlrev_b32 v{t+2}, 4, v{t+2}')
    a(f'v_lshl_add_u32 v{vK}, v{t+1}, 8, v{t+2}')
    a(f'v_add_u32 v{vK}, {L_B}, v{vK}')
    for s in range(1, 4): a(f'v_xor_b32 v{vK+s}, {64*s}, v{vK}')
    lane_fields(a, t + 1, [(2, 2, 64), (4, 1, 32), (0, 2, 8)], t)
    a(f'v_lshrrev_b32 v{t}, 4, v0')
    a(f'v_lshl_add_u32 v{vTV}, v{t}, 10, v{t+1}'); a(f'v_add_u32 v{vTV}, {L_B}, v{vTV}'); a(f'v_xor_b32 v{vTV+1}, 32, v{vTV}')
    a(f's_add_u32 {sT1}, {sC}, {L_A}')
    a(f'v_lshl_add_u32 v{vTRA}, v{t}, 9, v{t+1}'); a(f'v_add_u32 v{vTRA}, {sT1}, v{vTRA}'); a(f'v_xor_b32 v{vTRA+1}, 32, v{vTRA}')
    for b in range(2): a(f'v_add_u32 v{vTRB+b}, 0x10000, v{vTRA+b}')

def ln1_stats(a):
    a.comment('LN1 statistics (rows are held in rotated order)')
    D = 128; R = 32; R2 = 48
    a(f'v_mov_b32 v{vT+1}, 0x3f803f80')
    for i in range(32): a(f'v_mov_b32 v{R+i}, 0')
    for i in range(16):
        for r in range(4):
            a(f'v_dot2c_f32_bf16 v{R+i}, v{XR+4*i+r}, v{vT+1}')
            a(f'v_dot2c_f32_bf16 v{R2+i}, v{XR+4*i+r}, v{XR+4*i+r}')
        for r in range(4):
            a(f'v_lshlrev_b32 v{D+8*i+2*r}, 16, v{XR+4*i+r}')
            a(f'v_and_b32 v{D+8*i+2*r+1}, {sMASK}, v{XR+4*i+r}')
    stamp(a, 'm_pass1')
    for n in range(2):
        for x in wq_dma(n, sT1): a(x, ('wq', n))
    butterfly16(a, [R, R2])
    a(f'v_mov_b32 v{vT+1}, {hx(1e-5)}')
    for i in range(4): a(f'v_mul_f32 v{R+i}, {hx(-1.0/512)}, v{R+i}')
    for i in range(4): a(f'v_mul_f32 v{R2+i}, {hx(1.0/512)}, v{R2+i}')
    for i in range(4): a(f'v_fma_f32 v{R2+i}, -v{R+i}, v{R+i}, v{R2+i}')
    for i in range(4): a(f'v_max_f32 v{R2+i}, 0, v{R2+i}')
    for i in range(4): a(f'v_add_f32 v{R2+i}, v{vT+1}, v{R2+i}')
    for i in range(4): a(f'v_rsq_f32 v{R2+i}, v{R2+i}')
    for i in range(4): a(f'v_mul_f32 v{R+i}, v{R+i}, v{R2+i}')
    for q in range(4):
        for i in range(4):
            a(f'v_readlane_b32 s{sST+2*(i+4*q)}, v{R2+i}, {16*q}'); a(f'v_readlane_b32 s{sST+2*(i+4*q)+1}, v{R+i}, {16*q}')
    for i in range(16):
        d = D + 8 * i; sp = f's[{sST+2*i}:{sST+2*i+1}]'
        for r in range(4):
            a(f'v_pk_fma_f32 v[{d+2*r}:{d+2*r+1}], v[{d+2*r}:{d+2*r+1}], {sp}, {sp} op_sel:[0,0,1] op_sel_hi:[1,0,1]')
    a(f's_lshl_b32 {sT0}, {sW}, 14')
    lane_fields(a, 48, [(0, 6, 256), (0, 3, 16)], 49, add=sT0)
    a(f's_lshl_b32 {sT0}, {sG}, 5')
    for i in range(16):
        a(f's_add_u32 {sT0}, {sT0}, 16'); a(f's_and_b32 {sT0}, {sT0}, 0xf0'); a(f'v_xor_b32 v{32+i}, {sT0}, v48')
    for n in range(2, 4):
        for x in wq_dma(n, sT1): a(x, ('wq', n))

def ln1_apply(a):
    a.comment('h = xn*A + B -> LDS')
    D = 128; M = 48
    a(f'v_lshlrev_b32 v{vT+1}, 5, v0')
    for vec in range(2):
        for hf in range(2):
            b = M + 8 * vec + 4 * hf
            a(f'buffer_load_dwordx4 v[{b}:{b+3}], v{vT+1}, {srd("WS")}, 0 offen offset:{WS_MOD + 2048*vec + 16*hf} {SC}')
    for n in range(4, 6):
        for x in wq_dma(n, sT1): a(x, ('wq', n))
    for i in range(16):
        d = D + 8 * i; t = XR + 4 * (i % 8)
        for r in range(4):
            a(f'v_pk_fma_f32 v[{d+2*r}:{d+2*r+1}], v[{d+2*r}:{d+2*r+1}], v[{M+8+2*r}:{M+9+2*r}], v[{M+2*r}:{M+1+2*r}]')
        for r in range(4): a(f'v_cvt_pk_bf16_f32 v{t+r}, v{d+2*r}, v{d+2*r+1}')
        a(f'ds_write_b128 v{32+i}, v[{t}:{t+3}]')

class Proj:
    LA = 14
    def __init__(self, S, name, sig, ring, last, bread, npre=0):
        self.S, self.name, self.sig, self.bread, self.npre = S, name, sig, bread, npre
        self.g0 = len(S.m); self.use = {}; self.reg = {}; self.done = {}
        acc = self.acc = lambda c, t, qt: vO + 64 * c + 16 * qt + 4 * t
        for n in range(32):
            for t in range(4):
                if n < npre: self.reg[n, t] = ('a', aX + 16 * n + 4 * t)
                elif n >= last[2]: self.reg[n, t] = (last[0], last[1] + 16 * (n - last[2]) + 4 * t)
                else: self.reg[n, t] = ('v', ring + 4 * ((4 * n + t) % 8))
        def mm(n, t, qt):
            c, k = divmod(n, 16); kind, r = self.reg[n, t]
            g = S.mfma(m16(vr(acc(c, t, qt), 4), vr(r, 4, kind), ar(16 * k + 4 * qt, 4), k == 0))
            self.use.setdefault((n, t), g); self.done[c, qt] = g
        for n in range(30):
            for t in range(4):
                for qt in range(4): mm(n, t, qt)
        for qt in range(4):
            for t in range(4):
                for n in (30, 31): mm(n, t, qt)
    def step(self, n): return self.g0 + 16 * n
    def a_reads(self, n, t):
        kind, r = self.reg[n, t]
        return [w_read(vr(r + 2 * rr, 2, kind), self.sig(n), t, rr) for rr in range(2)]
    def head(self, a):
        for qt in range(4): a(self.bread(0, qt))
        if not self.npre:
            a.wait_tag((self.name, 0))
            for t in range(4):
                for x in self.a_reads(0, t): a(x, ('ar', 0))
    def place(self, streams, stride=lambda n: 2):
        S = self.S; rel = {}; need = {}; slack = []
        for n in range(32):
            if 0 < n < 16:
                for qt in range(4): S.mem(self.step(n - 1) + 4 * qt, self.bread(n, qt))
            rel[n] = self.step(n)
            if n >= max(1, self.npre):
                g = g1 = self.step(n) - self.LA if n < 30 else self.step(28) + 16 * (n - 30) - 4
                if self.npre and n >= 28: g = g1 = self.step(n - 28) + 2
                for t in range(4):
                    if n < 30 or self.npre: g = max(g, g1 + 4 * t)
                    for x in self.a_reads(n, t): g = S.mem(g, x, ('ar', n))
                    assert g <= self.use[n, t] - 6, (self.name, n, t, g, self.use[n, t])
                S.scal(g1, lambda a, n=n: a.wait_tag((self.name, n)), force=True)
                rel[n] = g + 5; need[n] = g1
        for n in sorted(streams, key=lambda n: rel[n]):
            for i, (items, tag) in enumerate(streams[n]):
                pre = [lambda a, n=n: a.wait_lds_tag(('ar', n))] if i == 0 else []
                ge = S.group(max(rel[n], self.g0 + 1), pre + items, tag, stride=stride(n))
                if tag[0] == self.name: slack.append(need[tag[1]] - ge)
        print(self.name, 'DMA slack (gaps)', slack)

def o_convert(qt, packed):
    out = []
    for ap in range(4):
        o = vO + 32 * qt + 8 * ap; t = vS + 4 * ((4 * qt + ap) % 4) if packed else vQ + 16 * ap + 4 * qt
        if packed:
            rp = vR + (qt & ~1); sel = 'op_sel_hi:[1,0]' if qt % 2 == 0 else 'op_sel:[0,1] op_sel_hi:[1,1]'
            for r in range(4): out.append(f'v_pk_mul_f32 v[{o+2*r}:{o+2*r+1}], v[{o+2*r}:{o+2*r+1}], v[{rp}:{rp+1}] {sel}')
        else:
            t = vT
            for r in range(8): out.append(f'v_mul_f32 v{o+r}, v{o+r}, v{vR+qt}')
        for r in range(4): out.append(f'v_cvt_pk_bf16_f32 v{t+r}, v{o+2*r}, v{o+2*r+1}')
        out.append(f'ds_write_b128 v{vH}, v[{t}:{t+3}] offset:{16384*qt + 1024*ap}')
    return out
def l_check(qt):
    return [f'v_accvgpr_read_b32 v{vR+qt}, a{aL+4*qt}',
            f'v_med3_f32 v124, v{vR+qt}, v125, v126',
            f'v_cmp_neq_f32 vcc, v124, v{vR+qt}',
            f'v_rcp_f32 v{vR+qt}, v{vR+qt}',
            f's_or_b64 {sBAD}, {sBAD}, vcc']

def phase_main(a):
    S = Sched2(2)
    hread = lambda k, qt: f'ds_read_b128 {ar(16*k + 4*qt, 4)}, v{vH + k % 2} offset:{16384*qt + 1024*k}'
    Pq = Proj(S, 'wq', wq_sig, 96, ('a', aX, 30), hread)
    G = len(S.m)
    sreg = lambda m: vS + 8 * (m % 2)
    preg = lambda m: vP + 4 * (m % 2)
    kreg = lambda u, kt, s: aK + 32 * (u % 2) + 16 * kt + 4 * s
    vreg = lambda u, t: aV + 32 * (u % 2) + 4 * t
    qk_g, pv_g, ms = {}, {}, {}
    def qk(m):
        u, qt = divmod(m, 4); qk_g[m] = len(S.m)
        for kt in range(2):
            for s in range(4):
                S.mfma(m16(vr(sreg(m) + 4 * kt, 4), ar(kreg(u, kt, s), 4), vr(vQ + 16 * s + 4 * qt, 4), s == 0))
    def pv(m):
        u, qt = divmod(m, 4); pv_g[m] = len(S.m)
        S.mfma(m16(ar(aL + 4 * qt, 4), ar(aONE, 4), vr(preg(m), 4), u == 0))
        for t in range(8):
            S.mfma(m16(vr(vO + 32 * qt + 4 * t, 4), ar(vreg(u, t), 4), vr(preg(m), 4), u == 0))
    qk(0)
    for m in range(64):
        ms[m] = len(S.m)
        if m < 63: qk(m + 1)
        if m >= 1: pv(m - 1)
    ms[64] = len(S.m)
    pv(63)
    Gend = len(S.m)
    for m in range(64):
        g0 = ms[m]; full = 0 < m < 63
        for e in range(8):
            g = g0 + 2 * e if full else (g0 + e if m == 63 else g0 + 1 + (7 * e) // 8)
            S.valu(g, f'v_exp_f32 v{sreg(m)+e}, v{sreg(m)+e}', force=True)
            if e % 2: S.valu(g + 1 if (full or e < 7) else g + (1 if m == 0 else 1), f'v_cvt_pk_bf16_f32 v{preg(m)+e//2}, v{sreg(m)+e-1}, v{sreg(m)+e}', force=True)
    st = {n: [(wq_dma(n + 6), ('wq', n + 6))] for n in range(26)}
    st[21].append((kv_dma(0, 'K'), ('kvK', 0)))
    st[25].append((kv_dma(0, 'V'), ('kv', 0)))
    S.scal(Pq.step(16) + 3, barrier)
    Pq.place(st, lambda n: 1 if n in (21, 22) else 2)
    def q_conv(c, qt, g):
        for ap in range(2):
            q = vQ + 16 * (2 * c + ap) + 4 * qt; o = Pq.acc(c, 2 * ap, qt)
            for r in range(4): g = S.valu(g, f'v_cvt_pk_bf16_f32 v{q+r}, v{o+2*r}, v{o+2*r+1}', limit=g + (99 if c == 0 else 1))
        for ap in range(2):
            q = vQ + 16 * (2 * c + ap) + 4 * qt
            for r in range(2): g = S.valu(g + 1, f'v_permlane16_swap_b32 v{q+r}, v{q+2+r}', limit=g + (99 if c == 0 else 1))
        return g
    g = Pq.step(16) + 6
    for qt in range(4): g = q_conv(0, qt, g)
    S.chain(Pq.step(26) + 2, [f'v_mov_b32 v{vT+2}, 0x3f803f80'] + [f'v_accvgpr_write_b32 a{aONE+r}, v{vT+2}' for r in range(4)])
    LA = 12
    def kv_bar(t, tag):
        def f(a): a.wait_tag((tag, t)); barrier(a)
        return f
    bar = {}
    for u in range(16):
        t = u // 2; base = kv_buf(t) - L_B + 8192 * (u % 2)
        if u == 0:
            bar[0] = S.scal(G - 34, kv_bar(0, 'kvK'))
            kp = [max(bar[0], G - 34 + 2 * i) for i in range(8)]
            gb = S.scal(G - 14, kv_bar(0, 'kv')); vp = [gb + (5 * i) // 4 for i in range(16)]
        else:
            kp = [ms[4*u-3] + o for o in ((7, 9, 11, 15) if u % 2 else (9, 11, 13, 15))] + [ms[4*u-2] + o for o in (1, 3, 7, 9)]
            vp = [ms[4*u-2] + o for o in (11, 15)] + [ms[m] + o for m in (4*u-1, 4*u) for o in (1, 3, 7, 9, 11, 15)] + [ms[4*u+1] + o for o in (1, 3)]
            if u % 2 == 0: bar[t] = S.scal(kp[0], kv_bar(t, 'kv'), force=True)
        for i in range(8):
            kt, s = divmod(i, 4)
            g = S.mem(kp[i], f'ds_read_b128 {ar(kreg(u,kt,s),4)}, v{vK+s} offset:{base + 4096*kt}')
            assert g <= qk_g[4 * u] + i - 6 and (u == 0 or g == kp[i]), ('K', u, i, g)
        for i in range(16):
            tt, r = divmod(i, 2)
            g = S.mem(vp[i], f'ds_read_b64_tr_b16 {ar(vreg(u,tt)+2*r,2)}, v{vTV + tt % 2} offset:{base + 16384 + 4096*r + 256*(tt//2)}')
            assert g <= pv_g[4 * u] + 1 + tt - 5 and (u == 0 or g == vp[i]), ('V', u, i, g, pv_g[4 * u])
    npre = 6
    g = S.chain(S.gend + 1, collect(w64_offsets, vW4, vT, 1024, 4, lambda p: 8 * p))
    assert g < G - 20, g
    S.chain(Pq.step(22), [f'v_lshlrev_b32 v{vH+1}, 4, v0', f'v_add_u32 v{vH}, {sC}, v{vH+1}', f'v_lshlrev_b32 v{vT+3}, 7, v0'])
    def pre_reads(n, g):
        g = S.scal(g, lambda a: a.wait_tag(('wo', n)))
        for t_ in range(4):
            for r in range(2): g = S.mem(g + 1, w_read(ar(aX + 16 * n + 4 * t_ + 2 * r, 2), wo_sig(n), t_, r), ('pr', n))
        return g
    plan = {1: ((), (0, 1, 2, 3)), 2: ((0,), (4,)), 3: ((1,), (5,)), 4: ((2,), (30,)), 5: ((3,), (31,)), 6: ((4,), (28,)), 7: ((5,), (29,))}
    for t in range(8):
        g = bar[t] + 1 if t else G + 12
        if t < 7:
            g = S.group(g, kv_dma(t + 1, 'K') + [x for x in kv_dma(t + 1, 'V') if not x.startswith('s_add_u32 {so}')], ('kv', t + 1), stride=2)
            assert g < bar[t + 1] - 25, ('kv', t, g, bar[t + 1])
        rd, ld = plan.get(t, ((), ()))
        for n in rd: g = pre_reads(n, g + 1)
        for n in ld:
            prev = [m for m in range(min(n, 6)) if wo_sig(m) == wo_sig(n)]
            pre = [lambda a, m=prev[-1]: a.wait_lds_tag(('pr', m))] if prev else []
            g = S.group(g + (5 if prev else 1), pre + wo_dma(n), ('wo', n), stride=2)
        print('interval', t, 'side work ends', g, 'next barrier', bar.get(t + 1))
    for qt in range(4): q_conv(1, qt, Pq.done[1, qt] + 4)
    def pf(n, mul, add, nl, extra=None):
        def f(a):
            a(f's_mul_i32 {sT2}, {sN}, {mul}'); a(f's_add_u32 {sT2}, {sT2}, {add}')
            touch(a, n, vT + 3, nl, sT2)
        return f
    S.block(ms[0], lambda a: a(f's_lshl_b32 {sT3}, {sG}, 19'))
    S.block(ms[1], pf('WO', 4096, sT3, 32))
    for q, (n, i) in enumerate((('W1', 0), ('W1', 1), ('W2', 0), ('W2', 1))): S.block(ms[22 + 8 * q] + 1, pf(n, 112 * 128, 56 * 128 * i, 56))
    g = S.chain(ms[12], [f'v_and_b32 v{vT+1}, 0x7f, v{vL4}', f'buffer_load_dword v{vPOLL}, v{vT+1}, {srd("DBG")}, 0 offen offset:128 {SC}'])
    def chk2(a):
        a(f'v_cmp_eq_u32 vcc, 0, v{vPOLL}'); a('s_cbranch_vccnz L_mod2'); a.label('L_mod2j')
    S.block(sorted(b for b in bar.values() if b > g)[1] + 1, chk2)
    S.chain(ms[50], [f'v_mov_b32 v125, {hx(2.0**-40)}', f'v_mov_b32 v126, {hx(2.0**40)}', f's_mov_b64 {sBAD}, 0'])
    g = S.chain(pv_g[60] + 5, l_check(0))
    ins = o_convert(0, False); gs = max(g + 1, ms[62] + 4)
    prev = gs
    for i, x in enumerate(ins):
        gi = max(prev, gs + (i * (Gend - gs - 1)) // len(ins))
        if x.startswith('ds_'): prev = S.mem(gi + 1, x, force=True)
        else: prev = S.valu(gi, x, force=True)
    for nm, gg in (('q16', Pq.step(16)), ('qend', G), ('a4', ms[16]), ('a8', ms[32]), ('a12', ms[48]), ('a16', Gend)):
        S.block(gg, lambda a, nm=nm: stamp(a, nm))
    barrier(a)
    Pq.head(a)
    S.emit(a, 'qproj+attn')
    for qt in range(1, 4):
        for x in l_check(qt) + o_convert(qt, True): a(x)
    a(f's_cmp_lg_u64 {sBAD}, 0')
    a.raw('s_cbranch_scc1 L_slow')
    a.label('L_join')
    S = Sched2(2)
    oread = lambda k, qt: f'ds_read_b128 {ar(16*k + 4*qt, 4)}, v{vH+1} offset:{16384*qt + 1024*k}'
    Po = Proj(S, 'wo', wo_sig, 96, ('v', 32, 28), oread, npre)
    st = {n: [(wo_dma(n + 6), ('wo', n + 6))] for n in range(6, 22)}
    st[0] = [(wo_dma(6), ('wo', 6)), (wo_dma(7), ('wo', 7))]
    for n in range(28, 32): st[n] = [(wo_dma(n - 20), ('wo', n - 20))]
    st[22] = [(red_dma(), 'rd')] + [(w1_dma(0, i), ('w1', 0)) for i in range(4)]
    S.scal(Po.step(16) + 3, barrier)
    Po.place(st)
    g = S.chain(2, collect(tail_setup))
    assert g < Po.step(16), g
    def p_store(c, qt, g, lim):
        for ap in range(2):
            o = Po.acc(c, 2 * ap, qt)
            for r in range(4): g = S.valu(g, f'v_cvt_pk_bf16_f32 v{o+r}, v{o+2*r}, v{o+2*r+1}', limit=g + lim)
            g = S.mem(g + 1, f'buffer_store_dwordx4 v[{o}:{o+3}], v{vT}, {srd("WS")}, s{sP+qt} offen offset:{1024*c + 512*ap} {SC}', ('p1', c))
        return g
    g = Po.step(OPT['st0']) + 6
    for qt in range(4): g = p_store(0, qt, g + 2, 99)
    g = S.block(min(g + 80, Po.step(30)), lambda a: signal(a, ('p1', 0), 8, F_A0))
    print('A0 signal at step', (g - Po.g0) / 16)
    S.mem(Po.step(28) + 12, f'buffer_load_dword v{vPOLL}, v{vT+1}, {srd("WS")}, {sWAIT} offen offset:{F_A0} {SC}')
    def early(a):
        lab = a.newlabel('early')
        a(f'v_cmp_eq_u32 vcc, 0, v{vPOLL}'); a(f's_cbranch_vccnz {lab}')
        for x in part_loads(0): a.raw(x)
        a.raw(f's_mov_b32 {sLD}, 1')
        a.label(lab)
    S.block(Po.step(30) + 8, early)
    S.scal(Po.step(27) + 8, barrier)
    for qt in range(4): p_store(1, qt, Po.done[1, qt] + 4, 1)
    for nm, gg in (('wo0', 1), ('wo32', Po.step(16)), ('wo64', len(S.m))):
        S.block(gg, lambda a, nm=nm: stamp(a, nm))
    barrier(a)
    Po.head(a)
    S.emit(a, 'wo')

def slow_path(a):
    a.label('L_slow')
    a.fence()
    vM = vT; vAD = 124; vF = 120; vTR = 125
    a(f's_sub_u32 {sT2}, {sD}, {sC}')
    lane_fields(a, vAD, [(0, 4, 256), (5, 1, 16), (4, 1, 32)], vTR)
    a(f's_sub_u32 {sT0}, {sC}, {L_B}')
    for b in range(2): a(f'v_add_u32 v{vTR+b}, {sT0}, v{vTV+b}')
    a('v_mov_b32 v120, 0')
    for qt in range(4): a(f'v_mov_b32 v{vM+qt}, 0xff800000')
    for r in range(16): a(f'v_accvgpr_write_b32 a{aL+r}, v120')
    for r in range(128): a(f'v_mov_b32 v{vO+r}, 0')
    a('s_mov_b32 s98, 0')
    loop = a.newlabel('slowloop')
    a.fence()
    a.label(loop)
    for hf in range(2):
        a(f's_add_u32 m0, {sC}, {16384*hf}')
        a(f's_add_u32 {sT0}, {sT2}, {4096*hf}')
        for p in range(4): a(dma(sT0, vVD + p % 2, 'V', 1024 * p))
    for kt in range(2):
        a(f's_add_u32 {sT0}, {sT2}, {4096*kt}')
        for s in range(4): a(f'buffer_load_dwordx4 {ar(aK+16*kt+4*s,4)}, v{vAD}, {srd("K")}, {sT0} offen offset:{64*s}')
    a.wait_all()
    for tt in range(8):
        for r in range(2):
            a(f'ds_read_b64_tr_b16 {ar(aV+4*tt+2*r,2)}, v{vTR + tt % 2} offset:{16384*r + 256*(tt//2)}')
    for qt in range(4):
        b = vS; t = vF
        for kt in range(2):
            for s in range(4): a(m16(vr(b + 4 * kt, 4), ar(aK + 16 * kt + 4 * s, 4), vr(vQ + 16 * s + 4 * qt, 4), s == 0))
        a(f'v_max3_f32 v{t}, v{b}, v{b+1}, v{vM+qt}')
        for r in range(2, 8, 2): a(f'v_max3_f32 v{t}, v{b+r}, v{b+r+1}, v{t}')
        for sw in ('16', '32'):
            a(f'v_mov_b32 v{t+1}, v{t}'); a(f'v_permlane{sw}_swap_b32 v{t}, v{t+1}'); a(f'v_max_f32 v{t}, v{t}, v{t+1}')
        a(f'v_sub_f32 v{t+1}, v{vM+qt}, v{t}')
        a(f'v_exp_f32 v{t+1}, v{t+1}')
        a(f'v_mov_b32 v{vM+qt}, v{t}')
        a(f'v_accvgpr_read_b32 v{t+2}, a{aL+4*qt}')
        a(f'v_mul_f32 v{t+2}, v{t+2}, v{t+1}')
        for r in range(4): a(f'v_accvgpr_write_b32 a{aL+4*qt+r}, v{t+2}')
        for r in range(32): a(f'v_mul_f32 v{vO+32*qt+r}, v{vO+32*qt+r}, v{t+1}')
        for r in range(8): a(f'v_sub_f32 v{b+r}, v{b+r}, v{t}')
        for r in range(8): a(f'v_exp_f32 v{b+r}, v{b+r}')
        for r in range(4): a(f'v_cvt_pk_bf16_f32 v{vP+r}, v{b+2*r}, v{b+2*r+1}')
        a(m16(ar(aL + 4 * qt, 4), ar(aONE, 4), vr(vP, 4), False))
        for tt in range(8): a(m16(vr(vO + 32 * qt + 4 * tt, 4), ar(aV + 4 * tt, 4), vr(vP, 4), False))
    a(f's_add_u32 {sT2}, {sT2}, 8192')
    a.fence()
    a('s_add_u32 s98, s98, 1')
    a('s_cmp_lt_u32 s98, 16')
    a.raw(f's_cbranch_scc1 {loop}')
    for qt in range(4):
        a(f'v_accvgpr_read_b32 v{vR+qt}, a{aL+4*qt}'); a(f'v_rcp_f32 v{vR+qt}, v{vR+qt}')
    for qt in range(4):
        for x in o_convert(qt, True): a(x)
    a.fence()
    a.raw('s_branch L_join')

vW1, vG2, vL16, vRX, vRM = 6, 16, 10, 11, 20
def tail_setup(a):
    t = vT + 2
    lane_fields(a, vT, [(3, 1, 65536), (4, 2, 128), (0, 3, 16)], t)
    a(f's_lshl_b32 s{sP}, {sRB}, 19'); a(f's_lshl_b32 {sT0}, {sG}, 13'); a(f's_add_u32 s{sP}, s{sP}, {sT0}')
    a(f's_lshl_b32 {sT2}, {sW}, 11'); a(f's_add_u32 {sT2}, {sT2}, {WS_P1}'); a(f's_add_u32 s{sP}, s{sP}, {sT2}')
    for q in range(1, 4): a(f's_add_u32 s{sP+q}, s{sP}, {131072*q}')
    a(f's_lshl_b32 {sRD}, s2, 16'); a(f's_add_u32 {sRD}, {sRD}, {sT2}')
    a(f's_mov_b32 {sLD}, 0')
    a(f'v_and_b32 v{vT+1}, 31, v{vL4}')
    a(f'v_lshlrev_b32 v{vL16}, 4, v0')
    a(f'v_lshlrev_b32 v{vSIG}, 8, v0')
    a(f's_lshl_b32 {sSIG}, {sRB}, 11'); a(f's_lshl_b32 {sT0}, {sG}, 2'); a(f's_add_u32 {sSIG}, {sSIG}, {sT0}'); a(f's_add_u32 {sSIG}, {sSIG}, {WS_FLG}')
    a(f's_lshl_b32 {sWAIT}, s2, 8'); a(f's_add_u32 {sWAIT}, {sWAIT}, {WS_FLG}')
    a(f's_mul_i32 {sRH}, {sRB}, 37'); a(f's_lshr_b32 {sRH}, {sRH}, 9')
    a(f's_mul_i32 {sFS}, {sRH}, 14'); a(f's_sub_u32 {sFS}, {sRB}, {sFS}')
    a(f's_lshl_b32 {sR32}, {sRH}, 2'); a(f's_lshl_b32 {sT0}, {sG}, 3'); a(f's_add_u32 {sR32}, {sR32}, {sT0}'); a(f's_add_u32 {sR32}, {sR32}, {sW}')
    a(f's_lshl_b32 {sW1}, {sFS}, 8'); a(f's_mul_i32 {sT0}, {sW}, {32*3584}'); a(f's_add_u32 {sW1}, {sW1}, {sT0}')
    lane_fields(a, vW1, [(0, 2, 16), (2, 2, 3584), (4, 1, 64), (5, 1, 4 * 3584)], t)
    for p in range(1, 4): a(f'v_add_u32 v{vW1+p}, {p*(8*3584-1024)}, v{vW1}')
    a(f's_and_b32 {sF}, {sRB}, 7'); a(f's_lshr_b32 {sE}, {sRB}, 3'); a(f's_lshl_b32 {sT0}, {sG}, 2'); a(f's_add_u32 {sE}, {sE}, {sT0}')
    a(f's_mul_i32 {sH}, {sW}, 7')
    lane_fields(a, vG2, [(0, 2, 16), (2, 2, 1024), (4, 1, 64), (5, 1, 4096)], t)
    for p in range(1, 4): a(f'v_add_u32 v{vG2+p}, {p*(8*1024-1024)}, v{vG2}')
    lane_fields(a, vRX, [(4, 2, 1024), (0, 4, 16)], t)
    lane_fields(a, vRM, [(5, 1, 2048), (0, 5, 16)], t)
def w1_dma(half, i, so='{so}'):
    return [f's_add_u32 m0, {sC}, {65536*half + 16384*i}', f's_add_u32 {so}, {sW1}, {128*3584*i + 128*half}'] + \
           [dma(so, vW1 + p, 'W1', 1024 * p) for p in range(4)]
def red_dma():
    return [f's_add_u32 m0, {sC}, {slot_lds(4)}', f's_lshl_b32 {sT1}, s2, 13', f's_lshl_b32 {sT0}, {sW}, 8', f's_add_u32 {sT1}, {sT1}, {sT0}',
            dma(sT1, vRX, 'X', 0), f's_add_u32 {sT1}, {sT1}, 3072', dma(sT1, vRX, 'X', 1024),
            f's_lshl_b32 {sT1}, {sW}, 9', f's_add_u32 {sT1}, {sT1}, {WS_MOD + 4096 - 2048}', dma(sT1, vRM, 'WS', 2048, SC),
            f's_add_u32 {sT1}, {sT1}, 3072', dma(sT1, vRM, 'WS', 3072, SC)]
PL = 128
def part_loads(c):
    out = []
    for g in range(8):
        out.append(f's_add_u32 {sT0}, {sRD}, {8192*g}')
        out.append(f'buffer_load_dwordx4 v[{PL+32*c+4*g}:{PL+32*c+4*g+3}], v{vL16}, {srd("WS")}, {sT0} offen offset:{1024*c} {SC}')
    return out

RX, RM, ACC, T = 64, 192, 80, 96
def red_operands(a):
    a.wait_tag('rd')
    lane_fields(a, 2, [(0, 3, 256), (5, 1, 64), (3, 2, 8)], 3)
    lane_fields(a, 3, [(5, 1, 128), (3, 2, 16)], 4)
    a(f's_add_u32 {sT0}, {sC}, {slot_lds(4)}')
    a(f'v_add_u32 v2, {sT0}, v2'); a(f'v_add_u32 v3, {sT0}, v3')
    for c in range(2):
        for hf in range(2): a(f'ds_read_b64 v[{T+4*c+2*hf}:{T+4*c+2*hf+1}], v2 offset:{128*c + 32*hf}')
    for vec in range(3):
        for c in range(2):
            for hf in range(2):
                b = RM + 16 * vec + 8 * c + 4 * hf
                a(f'ds_read_b128 v[{b}:{b+3}], v3 offset:{2048 + 512*vec + 256*c + 64*hf}')
    for r in range(8):
        a(f'v_lshlrev_b32 v{RX+2*r}, 16, v{T+r}'); a(f'v_and_b32 v{RX+2*r+1}, {sMASK}, v{T+r}')
    a('v_mov_b32 v4, 0x3f80'); a('v_mov_b32 v5, 0x3f800000')
def red_sum(a, c):
    P = PL + 32 * c; A = ACC + 8 * c
    for r in range(4):
        a(f'v_lshlrev_b32 v{A+2*r}, 16, v{P+r}'); a(f'v_and_b32 v{A+2*r+1}, {sMASK}, v{P+r}')
    for g in range(1, 8):
        for r in range(4):
            a(f'v_dot2c_f32_bf16 v{A+2*r}, v{P+4*g+r}, v4'); a(f'v_dot2c_f32_bf16 v{A+2*r+1}, v{P+4*g+r}, v5')
    for r in range(4 * c, 4 * c + 4):
        a(f'v_pk_fma_f32 v[{ACC+2*r}:{ACC+2*r+1}], v[{ACC+2*r}:{ACC+2*r+1}], v[{RM+2*r}:{RM+1+2*r}], v[{RX+2*r}:{RX+2*r+1}]')

def allred8(a, r, t):
    a(f'v_add_f32_dpp v{r}, v{r}, v{r} row_ror:8 row_mask:0xf bank_mask:0xf')
    a(f'v_mov_b32 v{t}, v{r}'); a(f'v_permlane16_swap_b32 v{r}, v{t}'); a(f'v_add_f32 v{r}, v{r}, v{t}')
    a(f'v_mov_b32 v{t}, v{r}'); a(f'v_permlane32_swap_b32 v{r}, v{t}'); a(f'v_add_f32 v{r}, v{r}, v{t}')

def red_addr(a):
    lane_fields(a, 3, [(0, 3, 32)], 2, add=slot_lds(5))
    a(f's_lshl_b32 {sT1}, {sW}, 3'); a(f'v_add_u32 v2, {sT1}, v3')
    lane_fields(a, 12, [(3, 3, 512), (0, 3, 16)], 13)
    a(f's_lshr_b32 s{sP}, s2, 2'); a(f's_lshl_b32 s{sP}, s{sP}, 15')
    a(f's_and_b32 {sT1}, s2, 3'); a(f's_lshl_b32 {sT1}, {sT1}, 7'); a(f's_add_u32 s{sP}, s{sP}, {sT1}')
    a(f's_lshl_b32 {sT1}, {sW}, 13'); a(f's_add_u32 s{sP}, s{sP}, {sT1}'); a(f's_add_u32 s{sP}, s{sP}, {WS_H2}')
    a(f's_add_u32 s{sP+1}, s{sP}, 4096')
    a(f's_lshl_b32 s{sP+2}, s2, 13'); a(f's_lshl_b32 {sT1}, {sW}, 11'); a(f's_add_u32 s{sP+2}, s{sP+2}, {sT1}'); a(f's_add_u32 s{sP+2}, s{sP+2}, {WS_X1}')
    a(f'v_lshlrev_b32 v{vSIG}, 11, v0')
    a(f's_bfe_u32 {sSIG}, s2, 0x10004'); a(f's_mul_i32 {sSIG}, {sSIG}, {14*8}'); a(f's_lshr_b32 {sT0}, s2, 5'); a(f's_add_u32 {sSIG}, {sSIG}, {sT0}')
    a(f's_lshl_b32 {sSIG}, {sSIG}, 8'); a(f's_and_b32 {sT0}, s2, 15'); a(f's_lshl_b32 {sT0}, {sT0}, 2'); a(f's_add_u32 {sSIG}, {sSIG}, {sT0}')
    a(f's_add_u32 {sSIG}, {sSIG}, {WS_FLG}')

def red_ln(a):
    X1 = 112
    for r in range(4): a(f'v_pk_add_f32 v[{T+2*r}:{T+2*r+1}], v[{ACC+2*r}:{ACC+2*r+1}], v[{ACC+8+2*r}:{ACC+9+2*r}]')
    for r in range(2): a(f'v_pk_add_f32 v[{T+2*r}:{T+2*r+1}], v[{T+2*r}:{T+2*r+1}], v[{T+4+2*r}:{T+5+2*r}]')
    a(f'v_pk_add_f32 v[{T}:{T+1}], v[{T}:{T+1}], v[{T+2}:{T+3}]')
    a(f'v_add_f32 v{T}, v{T}, v{T+1}')
    for r in range(8): a(f'v_cvt_pk_bf16_f32 v{X1+r}, v{ACC+2*r}, v{ACC+2*r+1}')
    allred8(a, T, T + 1)
    a(f'v_mul_f32 v{T}, {hx(-1.0/128)}, v{T}')
    for r in range(8): a(f'v_pk_add_f32 v[{ACC+2*r}:{ACC+2*r+1}], v[{ACC+2*r}:{ACC+2*r+1}], v[{T}:{T+1}] op_sel_hi:[1,0]')
    for h in range(2): a(f'v_pk_mul_f32 v[{T+2+2*h}:{T+3+2*h}], v[{ACC+2*h}:{ACC+2*h+1}], v[{ACC+2*h}:{ACC+2*h+1}]')
    for r in range(2, 8):
        h = r % 2
        a(f'v_pk_fma_f32 v[{T+2+2*h}:{T+3+2*h}], v[{ACC+2*r}:{ACC+2*r+1}], v[{ACC+2*r}:{ACC+2*r+1}], v[{T+2+2*h}:{T+3+2*h}]')
    a(f'v_pk_add_f32 v[{T+2}:{T+3}], v[{T+2}:{T+3}], v[{T+4}:{T+5}]')
    a(f'v_add_f32 v{T+1}, v{T+2}, v{T+3}')
    allred8(a, T + 1, T + 2)
    a(f'ds_write_b64 v2, v[{T}:{T+1}]')
    for i in range(2): a(f'buffer_store_dwordx4 v[{X1+4*i}:{X1+4*i+3}], v{vL16}, {srd("WS")}, s{sP+2} offen offset:{1024*i} {SC}', 'x1')
    barrier(a)
    a(f'ds_read_b128 v[{T+4}:{T+7}], v3'); a(f'ds_read_b128 v[{T+8}:{T+11}], v3 offset:16')
    a(f'v_pk_add_f32 v[{T+12}:{T+13}], v[{T+4}:{T+5}], v[{T+6}:{T+7}]')
    a(f'v_pk_add_f32 v[{T+14}:{T+15}], v[{T+8}:{T+9}], v[{T+10}:{T+11}]')
    a(f'v_pk_add_f32 v[{T+12}:{T+13}], v[{T+12}:{T+13}], v[{T+14}:{T+15}]')
    a(f'v_mul_f32 v{T+12}, {hx(0.25)}, v{T+12}')
    for w in range(4): a(f'v_sub_f32 v{T+4+2*w}, v{T+4+2*w}, v{T+12}')
    a(f'v_mul_f32 v{T+14}, v{T+4}, v{T+4}')
    for w in range(1, 4): a(f'v_fmac_f32 v{T+14}, v{T+4+2*w}, v{T+4+2*w}')
    a(f'v_fmamk_f32 v{T+13}, v{T+14}, {hx(128.0)}, v{T+13}')
    a(f'v_mov_b32 v{T+14}, {hx(1e-5)}')
    a(f'v_fmamk_f32 v{T+13}, v{T+13}, {hx(1.0/512)}, v{T+14}')
    a(f'v_rsq_f32 v{T+13}, v{T+13}')
    a(f'v_sub_f32 v{T+12}, v{T+12}, v{T}')
    a(f'v_mul_f32 v{T+12}, v{T+12}, v{T+13}')
    for i in range(2):
        for r in range(4 * i, 4 * i + 4):
            a(f'v_pk_fma_f32 v[{ACC+2*r}:{ACC+2*r+1}], v[{ACC+2*r}:{ACC+2*r+1}], v[{T+12}:{T+13}], v[{T+12}:{T+13}] op_sel:[0,1,0] op_sel_hi:[1,1,0]')
        for r in range(4 * i, 4 * i + 4):
            a(f'v_pk_fma_f32 v[{ACC+2*r}:{ACC+2*r+1}], v[{ACC+2*r}:{ACC+2*r+1}], v[{RM+32+2*r}:{RM+33+2*r}], v[{RM+16+2*r}:{RM+17+2*r}]')
        for r in range(4 * i, 4 * i + 4): a(f'v_cvt_pk_bf16_f32 v{T+r}, v{ACC+2*r}, v{ACC+2*r+1}')
        a(f'buffer_store_dwordx4 v[{T+4*i}:{T+4*i+3}], v12, {srd("WS")}, s{sP+i} offen {SC}', 'h2')

def tr32(a, dst, tmp, hhmul):
    lane_fields(a, dst, [(5, 1, hhmul), (2, 2, 64), (4, 1, 32), (0, 1, 16), (1, 1, 8)], tmp)

W2_SIG = [4, 5, -4, -3, -2, -1, 0, 1, 2, 3]
def pair_step(i, dst):
    return [f's_add_u32 {dst}, {sH}, {i % 7}', f's_and_b32 {sT3}, {dst}, 1', f's_andn2_b32 {dst}, {dst}, 1', f's_lshl_b32 {dst}, {dst}, 1',
            f's_add_u32 {dst}, {dst}, {sT3}']
def w2_dma(i):
    out = [f's_add_u32 m0, {sC}, {slot_lds(W2_SIG[i % 10])}'] + pair_step(i, sT1)
    out += [f's_lshl_b32 {sT1}, {sT1}, 15', f's_lshl_b32 {sT3}, {sF}, 7', f's_add_u32 {sT1}, {sT1}, {sT3}']
    if i >= 7: out.append(f's_add_u32 {sT1}, {sT1}, {64*1024}')
    return out + [dma(sT1, vG2 + p, 'W2', 1024 * p) for p in range(4)]

def phase_g1(a):
    a(f's_lshl_b32 {sT0}, {sR32}, 15'); a(f's_add_u32 {sT0}, {sT0}, {WS_H2}')
    def bload(k):
        out = [f's_add_u32 {sT0}, {sT0}, 4096'] if k and k % 4 == 0 else []
        return out + [f'buffer_load_dwordx4 {ar(4*k,4)}, v{vL16}, {srd("WS")}, {sT0} offen offset:{1024*(k%4)} {SC}']
    PF = 10
    for k in range(PF):
        for x in bload(k): a(x)
    S = Sched2(6)
    acc = lambda j: 128 + 16 * j
    NF = 8; LA = 5; reads = []
    for grp in ((0, 1), (2,), (3,)):
        for k in range(32):
            for j in grp:
                f = 32 + 4 * (len(S.m) % NF)
                g = S.mfma(m32(vr(acc(j), 16), vr(f, 4), ar(4 * k, 4), k == 0))
                for rr in range(2):
                    reads.append((g - LA, f'ds_read_b64_tr_b16 {vr(f+2*rr,2)}, v{12 + j//2} offset:{4096*(k//2) + 1024*(k%2) + 2048*rr + 256*(j%2)}'))
    for g, x in reads:
        if g <= 0: a(x)
        else: S.mem(g, x, force=True)
    for k in range(PF, 32): S.chain(2 * (k - PF) + 1, bload(k))
    def silu(j, g):
        for hf in range(2):
            o = acc(j) + 8 * hf; t = 64 + 16 * (j % 2) + 8 * hf; p = 96 + 8 * (j % 2) + 4 * hf
            ins = []
            for r in range(8): ins.append(f'v_exp_f32 v{t+r}, v{o+r}')
            for r in range(8): ins.append(f'v_add_f32 v{t+r}, 1.0, v{t+r}')
            for r in range(8): ins.append(f'v_rcp_f32 v{t+r}, v{t+r}')
            for r in range(8): ins.append(f'v_mul_f32 v{t+r}, v{o+r}, v{t+r}')
            for r in range(4): ins.append(f'v_cvt_pk_bf16_f32 v{p+r}, v{t+2*r}, v{t+2*r+1}')
            g = S.chain(g, ins)
            s_ = 2 * j + hf
            g = S.mem(g + 1, f'buffer_store_dwordx4 v[{p}:{p+3}], v{vL16}, {srd("WS")}, s{sP + s_ // 4} offen offset:{1024*(s_%4)} {SC}', ('h1', j // 2), force=True)
        return g
    S.scal(63, barrier)
    g = silu(0, 66); g = silu(1, g); g1 = g; g = silu(2, g); g = silu(3, max(g, 128))
    for i in range(2, 6): S.block(66 + 12 * (i - 2), lambda a, i=i: [a(x, ('w2', i)) for x in w2_dma(i)])
    S.block(127, barrier)
    S.block(min(g1 + 24, g - 4), lambda a: signal(a, ('h1', 0), 16, F_C0))
    for nm, gg in (('g0', 1), ('g64', 64), ('g128', 128)): S.block(gg, lambda a, nm=nm: stamp(a, nm))
    S.emit(a, 'gemm1')

def g1_addr(a):
    tr32(a, 12, 13, 512)
    a('v_add_u32 v13, 0x10000, v12')
    a(f's_mul_i32 s{sP}, {sR32}, {112*1024}'); a(f's_lshl_b32 {sT0}, {sFS}, 13'); a(f's_add_u32 s{sP}, s{sP}, {sT0}')
    a(f's_add_u32 s{sP}, s{sP}, {WS_H1}'); a(f's_add_u32 s{sP+1}, s{sP}, 4096')
    a(f's_lshl_b32 {sSIG}, {sRH}, 7'); a(f's_add_u32 {sSIG}, {sSIG}, {sG}'); a(f's_lshl_b32 {sSIG}, {sSIG}, 8')
    a(f's_lshl_b32 {sT0}, {sFS}, 2'); a(f's_add_u32 {sSIG}, {sSIG}, {sT0}'); a(f's_add_u32 {sSIG}, {sSIG}, {WS_FLG}')

def phase_g2(a):
    aB = lambda k, qt: 8 * k + 4 * qt
    def b_load(i):
        out = pair_step(i, sT0) + [f's_lshl_b32 {sT0}, {sT0}, 11', f's_add_u32 {sT0}, {sT0}, {sH1}']
        if i >= 7: out.append(f's_add_u32 {sT0}, {sT0}, 4096')
        out.append(f's_add_u32 {sT2}, {sT0}, {112*1024}')
        for kk in range(2):
            for qt in range(2):
                out.append(f'buffer_load_dwordx4 {ar(aB(2*i+kk,qt),4)}, v{vL16}, {srd("WS")}, {sT2 if qt else sT0} offen offset:{1024*kk} {SC}')
        return out
    a(f's_mul_i32 {sH1}, {sE}, {2*112*1024}'); a(f's_add_u32 {sH1}, {sH1}, {WS_H1}')
    tr32(a, 12, 13, 1024)
    a(f'v_add_u32 v12, {sC}, v12'); a('v_add_u32 v13, 0x10000, v12'); a('v_add_u32 v14, 0x20000, v12')
    vA = lambda k, j: 32 + 8 * (k % 4) + 4 * j
    acc = lambda j, qt: 128 + 16 * (2 * j + qt)
    def a_reads(k):
        o = slot_lds(W2_SIG[(k // 2) % 10]) + 2048 * (k % 2)
        return [f'ds_read_b64_tr_b16 {vr(vA(k,j)+2*rr,2)}, v{12 + o // 65536} offset:{o % 65536 + 256*j + 512*rr}' for j in range(2) for rr in range(2)]
    PF = 3
    for half in range(2):
        await_flags(a, 14, F_C1 if half else F_C0); stamp(a, 'syncC%d' % half)
        i0 = 7 * half
        for i in range(i0, i0 + PF):
            for x in b_load(i): a(x)
        a.wait_tag(('w2', i0))
        for k in (2 * i0, 2 * i0 + 1):
            for x in a_reads(k): a(x)
        S = Sched2(6)
        for k in range(2 * i0, 2 * i0 + 14):
            for j in range(2):
                for qt in range(2): S.mfma(m32(vr(acc(j, qt), 16), vr(vA(k, j), 4), ar(aB(k, qt), 4), k == 0))
        for kk in range(2, 14):
            k = 2 * i0 + kk; g = 4 * (kk - 2) + 1
            if k % 2 == 0: S.scal(g, lambda a, k=k: a.wait_tag(('w2', k // 2)), force=True)
            for i, x in enumerate(a_reads(k)): S.mem(g + i, x, force=True)
        for i in range(PF, 7): S.block(8 * (i - PF) + 1, lambda a, i=i: [a(x) for x in b_load(i0 + i)])
        if half == 0:
            for i in range(10, 14): S.block(8 * (i - 10) + 30, lambda a, i=i: [a(x, ('w2', i)) for x in w2_dma(i)])
        else:
            def epi_loads(a):
                a(f's_add_u32 m0, {sC}, {slot_lds(4)}')
                a(f's_lshl_b32 {sT0}, {sE}, 16'); a(f's_lshl_b32 {sT1}, {sW}, 14'); a(f's_add_u32 {sT0}, {sT0}, {sT1}')
                a(f's_lshl_b32 {sT1}, {sF}, 10'); a(f's_add_u32 {sT0}, {sT0}, {sT1}'); a(f's_add_u32 {sT0}, {sT0}, {WS_X1}')
                a(dma(sT0, vL16, 'WS', 0, SC), 'xe'); a(f's_add_u32 {sT0}, {sT0}, {8192-1024}'); a(dma(sT0, vL16, 'WS', 1024, SC), 'xe')
                lane_fields(a, 9, [(0, 3, 32)], 8)
                a(f's_lshl_b32 {sT0}, {sF}, 8'); a(f's_add_u32 {sT0}, {sT0}, {WS_MOD + 2048*5}')
                for hf in range(2): a(f'buffer_load_dwordx4 v[{20+4*hf}:{23+4*hf}], v9, {srd("WS")}, {sT0} offen offset:{16*hf} {SC}')
            S.block(36, epi_loads)
        S.block(56, lambda a: stamp(a, 'f%d' % half))
        S.emit(a, 'gemm2')
    OCT = 1152; HALF = 8 * OCT; WV = 2 * HALF
    lane_fields(a, 2, [(3, 2, OCT), (5, 1, 144), (0, 3, 16)], 3)
    a(f's_mul_i32 {sT0}, {sW}, {WV}'); a(f'v_add_u32 v2, {sT0}, v2')
    barrier(a)
    for j in range(2):
        for qt in range(2):
            for hf in range(2):
                for e in range(2):
                    o = acc(j, qt) + 8 * hf + 4 * e
                    a(f'ds_write_b128 v2, v[{o}:{o+3}] offset:{e*HALF + 4*qt*OCT + (4*j + 2*hf)*144}')
    lane_fields(a, 3, [(0, 3, 144), (3, 3, 16)], 4)
    a(f's_mul_i32 {sT0}, {sW}, {2*OCT}'); a(f'v_add_u32 v3, {sT0}, v3'); a(f'v_add_u32 v4, {2*WV}, v3')
    lane_fields(a, 5, [(2, 1, 512), (0, 1, 256), (1, 1, 8), (3, 3, 16)], 6)
    a(f's_add_u32 {sT0}, {sC}, {slot_lds(4)}'); a(f'v_add_u32 v5, {sT0}, v5')
    a.wait_tag('xe')
    for i in range(2):
        for q in range(2): a(f'ds_read_b64 v[{12+4*i+2*q}:{13+4*i+2*q}], v5 offset:{1024*i + 128*q}')
    lane_fields(a, 8, [(3, 3, 1024), (0, 3, 16)], 6)
    a(f's_lshl_b32 {sT0}, {sE}, 16'); a(f's_lshl_b32 {sT1}, {sW}, 14'); a(f's_add_u32 {sT0}, {sT0}, {sT1}')
    a(f's_lshl_b32 {sT1}, {sF}, 7'); a(f's_add_u32 {sT0}, {sT0}, {sT1}'); a(f's_add_u32 {sT1}, {sT0}, 8192')
    barrier(a)
    for i in range(2):
        for w in range(4):
            for e in range(2):
                b = 32 + 32 * i + 8 * w + 4 * e
                a(f'ds_read_b128 v[{b}:{b+3}], v{3 if w < 2 else 4} offset:{(w%2)*WV + e*HALF + i*OCT}')
    for r in range(8):
        a(f'v_lshlrev_b32 v{96+2*r}, 16, v{12+r}'); a(f'v_and_b32 v{97+2*r}, {sMASK}, v{12+r}')
    for i in range(2):
        b = 32 + 32 * i
        for r in range(4): a(f'v_pk_add_f32 v[{b+2*r}:{b+2*r+1}], v[{b+2*r}:{b+2*r+1}], v[{b+8+2*r}:{b+9+2*r}]')
        for r in range(4): a(f'v_pk_add_f32 v[{b+16+2*r}:{b+17+2*r}], v[{b+16+2*r}:{b+17+2*r}], v[{b+24+2*r}:{b+25+2*r}]')
        for r in range(4): a(f'v_pk_add_f32 v[{b+2*r}:{b+2*r+1}], v[{b+2*r}:{b+2*r+1}], v[{b+16+2*r}:{b+17+2*r}]')
        for r in range(4): a(f'v_pk_fma_f32 v[{b+2*r}:{b+2*r+1}], v[{b+2*r}:{b+2*r+1}], v[{20+2*r}:{21+2*r}], v[{96+8*i+2*r}:{97+8*i+2*r}]')
        for r in range(4): a(f'v_cvt_pk_bf16_f32 v{b+8+r}, v{b+2*r}, v{b+2*r+1}')
        a(f'buffer_store_dwordx4 v[{b+8}:{b+11}], v8, {srd("OUT")}, {sT1 if i else sT0} offen')

def k_mega(a):
    a.raw('s_cmp_ge_u32 s2, 256')
    a.raw('s_cbranch_scc1 L_end')
    stamp_names.append([])
    if OPT['stamps']: a('s_memrealtime s[98:99]'); a('s_memtime s[96:97]')
    else: stamp(a, 'start')
    names = ['WM', 'C', 'X', 'WS', 'DBG', 'WQ', 'K', 'V', 'WO', 'W1', 'W2', 'OUT']
    for n in names: a(f's_load_dwordx2 s[{SRD[n]}:{SRD[n]+1}], s[0:1], {KOFF[n]}')
    a(f's_lshr_b32 {sRB}, s2, 3')
    lc = a.newlabel('nocode')
    a(f's_cmp_ge_u32 {sRB}, 29')
    a.raw(f's_cbranch_scc0 {lc}')
    a.raw('s_getpc_b64 s[66:67]')
    a.label('L_pc')
    a.raw(f's_sub_u32 {sT0}, {sRB}, 29'); a.raw(f's_lshl_b32 {sT0}, {sT0}, 15')
    a.raw(f'v_lshl_add_u32 v2, v0, 7, {sT0}')
    a.raw('v_min_u32 v2, L_code_end - L_pc - 4, v2')
    a.raw('v_mov_b32 v3, s67'); a.raw('v_add_co_u32 v2, vcc, s66, v2'); a.raw('s_nop 1'); a.raw('v_addc_co_u32 v3, vcc, 0, v3, vcc')
    a.raw('global_load_dword v28, v[2:3], off')
    a.label(lc)
    a('v_lshrrev_b32 v1, 6, v0')
    for n in names:
        a(f's_mov_b32 s{SRD[n]+2}, {SIZE[n]}'); a(f's_mov_b32 s{SRD[n]+3}, 0x20000')
    a(f's_and_b32 {sG}, s2, 7')
    a(f'v_readfirstlane_b32 {sW}, v1')
    a('v_and_b32 v0, 63, v0')
    a(f's_mov_b32 {sMASK}, 0xffff0000')
    if OPT['stamps']:
        stamp_names[-1].append('start')
        a('v_writelane_b32 v1, s98, 0'); a('v_writelane_b32 v1, s96, 32')
        stamp(a, 'args')
    a(f's_lshl_b32 {sN}, {sRB}, 2'); a(f's_add_u32 {sN}, {sN}, {sW}')
    a(f's_lshl_b32 {sT2}, {sN}, 14'); a(f's_lshl_b32 {sT3}, {sG}, 11')
    a(f'v_lshlrev_b32 v{vT}, 4, v0'); a(f'v_lshlrev_b32 v{vL4}, 2, v0'); a(f'v_mov_b32 v{vONE}, 1')
    lnp, lj = a.newlabel('noprod'), a.newlabel('prodj')
    a.wait_all()
    a('s_cmp_lt_u32 s2, 48')
    a.raw(f's_cbranch_scc0 {lnp}')
    phase_mod(a)
    a.raw(f's_branch {lj}')
    a.label(lnp)
    a.vm = []; a.lg = []
    a(f's_sub_u32 {sA}, {sN}, 24'); a(f's_min_u32 {sA}, {sA}, 95')
    a(f's_lshr_b32 {sT1}, {sA}, 4'); a(f's_and_b32 {sT0}, {sA}, 15')
    a(f's_mul_i32 {sT0}, {sT0}, {32*6144}'); a(f's_lshl_b32 {sT1}, {sT1}, 10'); a(f's_add_u32 {sT0}, {sT0}, {sT1}')
    a(f's_lshl_b32 {sT1}, {sG}, 7'); a(f's_add_u32 {sT0}, {sT0}, {sT1}')
    lane_fields(a, 2, [(0, 6, 6144)], 3)
    touch(a, 'WM', 2, 32, sT0)
    for i in range(4):
        for t in x_load(i): a(t)
    a('v_lshlrev_b32 v2, 7, v0'); a(f's_lshl_b32 {sT0}, {sA}, 12')
    touch(a, 'X', 2, 32, sT0)
    a.vm.pop()
    for i in range(4, 8):
        for t in x_load(i): a(t)
    a.label(lj)
    for i in range(8, 16):
        for t in x_load(i): a(t)
    stamp(a, 'xissue')
    a(f's_lshl_b32 {sT0}, {sN}, 15'); a(f's_lshl_b32 {sT1}, {sG}, 10'); a(f's_add_u32 {sT0}, {sT0}, {sT1}')
    lane_fields(a, 2, [(3, 3, 8192), (0, 3, 128)], 3)
    touch(a, 'WQ', 2, 32, sT0)
    main_setup(a)
    ln1_stats(a); stamp(a, 'stats')
    await_flags(a, 16, 0, 'DBG', '0'); stamp(a, 'modok')
    ln1_apply(a)
    a(f's_lshl_b32 {sT0}, {sN}, 10'); a(f's_lshl_b32 {sT1}, {sG}, 19'); a(f's_add_u32 {sT0}, {sT0}, {sT1}'); a(f's_add_u32 {sT0}, {sT0}, {1536*256}')
    a(f'v_lshlrev_b32 v{vT}, 7, v0')
    touch(a, 'K', vT, 8, sT0); touch(a, 'V', vT, 8, sT0)
    stamp(a, 'apply')
    phase_main(a)
    for i in range(4):
        for x in w1_dma(1, i, sT1): a(x, ('w1', 1))
    red_operands(a)
    signal(a, ('p1', 1), 8, F_A1); stamp(a, 'p1done')
    lab = a.newlabel('late')
    a(f's_cmp_lg_u32 {sLD}, 0')
    a.raw(f's_cbranch_scc1 {lab}')
    spin(a, 'WS', sWAIT, vL4, vPOLL, 8, F_A0)
    for x in part_loads(0): a.raw(x)
    a.raw('s_waitcnt vmcnt(0)')
    a.label(lab)
    red_addr(a)
    red_sum(a, 0)
    await_flags(a, 8, F_A1); stamp(a, 'syncA')
    for x in part_loads(1): a(x)
    red_sum(a, 1); stamp(a, 'sum')
    red_ln(a); stamp(a, 'red')
    signal(a, 'h2', 14, F_B); stamp(a, 'h2done')
    for i in range(2):
        for x in w2_dma(i): a(x, ('w2', i))
    l1, l2 = a.newlabel('nog1'), a.newlabel('nog1j')
    a(f's_cmp_ge_u32 {sRB}, 28')
    a.raw(f's_cbranch_scc1 {l1}')
    g1_addr(a)
    await_flags(a, 16, F_B); stamp(a, 'syncB')
    phase_g1(a)
    for i in range(6, 10):
        for x in w2_dma(i): a(x, ('w2', i))
    signal(a, ('h1', 1), 16, F_C1)
    a.raw(f's_branch {l2}')
    a.label(l1)
    for i in range(2, 10):
        for x in w2_dma(i): a.raw(x)
    a.raw('s_waitcnt vmcnt(0)')
    a.label(l2)
    stamp(a, 'h1done')
    phase_g2(a)
    stamp_flush(a); a.label('L_end'); a.raw('s_endpgm')
    a.label('L_code_end')
    slow_path(a)
    a.label('L_mod2')
    spin(a, 'DBG', '0', vL4, vPOLL, 32, 128)
    a.raw('s_branch L_mod2j')

def main(out):
    ref = open(f'cdna_kernels/{NAME}.s.ref').read().splitlines()
    head = [l for l in ref if l.startswith(';') and '@launch' not in l]
    name = NAME + '_kernel'
    a = Asm(); k_mega(a)
    print('nop states', a.nnop, 'lines', len(a.lines))
    s = '\n'.join(head) + '\n'
    s += f'; @launch grid=(256,1,1) block=(256,1,1) lds={LDS_BYTES}\n'
    s += '.amdgcn_target "amdgcn-amd-amdhsa--gfx950"\n.text\n'
    s += f'.globl {name}\n.p2align 8\n.type {name},@function\n{name}:\n' + a.text()
    s += f""".section .rodata,"a"
.p2align 6
.amdhsa_kernel {name}
  .amdhsa_next_free_vgpr 512
  .amdhsa_next_free_sgpr 102
  .amdhsa_accum_offset 256
  .amdhsa_group_segment_fixed_size 0
  .amdhsa_kernarg_size 104
  .amdhsa_user_sgpr_count 2
  .amdhsa_user_sgpr_kernarg_segment_ptr 1
  .amdhsa_system_sgpr_workgroup_id_x 1
.end_amdhsa_kernel
"""
    open(out, 'w').write(s)
    if OPT['stamps']:
        import json; json.dump(stamp_names, open(out + '.stamps', 'w'))

if __name__ == '__main__':
    for o in sys.argv[2:]:
        k, v = o.split('='); OPT[k] = v if k == 'probe' else int(v)
    main(sys.argv[1] if len(sys.argv) > 1 else f'cdna_kernels/{NAME}.s')
```

```python
import re

REG = re.compile(r'(?<![\w.])([vas])(?:(\d+)(?![\w\[])|\[(\d+):(\d+)\])')

def regs_of(tok):
    out = []
    t = tok.strip()
    if t in ('vcc', 'vcc_lo', 'vcc_hi'): return [('x', 'vcc')]
    if t in ('exec', 'exec_lo', 'exec_hi'): return [('x', 'exec')]
    if t == 'm0': return [('x', 'm0')]
    for m in REG.finditer(t):
        k = m.group(1)
        if m.group(2) is not None: out.append((k, int(m.group(2))))
        else: out += [(k, i) for i in range(int(m.group(3)), int(m.group(4)) + 1)]
    return out

def split_ops(rest):
    ops, depth, cur = [], 0, ''
    for ch in rest:
        if ch == '[': depth += 1
        if ch == ']': depth -= 1
        if ch == ',' and depth == 0:
            ops.append(cur.strip()); cur = ''
        else: cur += ch
    if cur.strip(): ops.append(cur.strip())
    return ops

TRANS = ('v_exp_f32', 'v_log_f32', 'v_rcp_f32', 'v_rsq_f32', 'v_sqrt_f32')

class Ins:
    def __init__(self, text, tag=None):
        self.text = text; self.tag = tag
        p = text.split(None, 1)
        self.op = op = p[0]
        ops = split_ops(p[1]) if len(p) > 1 else []
        if ops:
            last = ops[-1].split()
            mods = ' '.join(last[1:]); ops[-1] = last[0]
        else: mods = ''
        self.ops = ops; self.mods = mods
        R = [regs_of(o) for o in ops]
        flat = lambda L: [r for x in L for r in x]
        self.kind = 'salu'; self.w = []; self.r = []; self.srcC = []; self.passes = 0; self.data = []
        if op.startswith('v_mfma'):
            self.kind = 'mfma'; self.w = R[0]; self.r = flat(R[1:]); self.srcC = R[3]; self.ab = R[1] + R[2]
            self.passes = 8 if '32x32x16' in op else 4
        elif op.startswith('ds_read'):
            self.kind = 'lds'; self.w = R[0]; self.r = flat(R[1:])
        elif op.startswith('ds_write'):
            self.kind = 'lds'; self.r = flat(R)
        elif op.startswith('buffer_load'):
            self.kind = 'vmem'
            if ' lds' in (' ' + mods): self.r = flat(R) + [('x', 'm0')]; self.dma = True
            else: self.w = R[0]; self.r = flat(R[1:])
        elif op.startswith('global_load'):
            self.kind = 'vmem'; self.w = R[0]; self.r = flat(R[1:])
        elif op.startswith('buffer_store'):
            self.kind = 'vmem'; self.r = flat(R)
            if 'x4' in op or 'x3' in op: self.data = R[0]
        elif op.startswith('buffer_atomic'):
            self.kind = 'vmem'; self.r = flat(R)
            if 'sc0' in mods: self.w = R[0]
        elif op.startswith('s_load') or op in ('s_memtime', 's_memrealtime'):
            self.kind = 'smem'; self.w = R[0]; self.r = flat(R[1:])
        elif op.startswith('v_'):
            self.kind = 'valu'
            self.w = list(R[0]); self.r = flat(R[1:])
            if 'swap' in op: self.w = R[0] + R[1]; self.r = R[0] + R[1]
            if op.startswith(('v_fmac', 'v_dot2c', 'v_writelane')): self.r += R[0]
            if op.startswith(('v_add_co', 'v_sub_co', 'v_addc_co')): self.w += R[1]; self.r = flat(R[2:])
            if op.startswith('v_cmpx'): self.w += [('x', 'exec')]
        elif op.startswith('s_'):
            if op.startswith(('s_cmp', 's_bitcmp')): self.r = flat(R)
            elif op.startswith(('s_waitcnt', 's_barrier', 's_nop', 's_cbranch', 's_branch', 's_setprio', 's_sleep', 's_endpgm')): pass
            else:
                self.w = list(R[0]); self.r = flat(R[1:])
                if 'saveexec' in op: self.w += [('x', 'exec')]
        else:
            raise ValueError('unknown op ' + text)
        self.trans = op.startswith(TRANS)
        self.dpp = ('_dpp' in op) or ('row_' in mods) or ('quad_perm' in mods)
        self.perm = 'permlane' in op
        self.rdlane = op.startswith(('v_readlane', 'v_readfirstlane'))
        self.dot = op.startswith('v_dot')
    def states(self):
        if self.op == 's_nop': return int(self.ops[0]) + 1
        return 1
    def cost(self):
        if self.kind == 'mfma': return 8
        if self.trans or self.perm: return 8
        if self.op == 's_nop': return 4 * self.states()
        return 4

class Asm:
    def __init__(self):
        self.lines = []
        self.hist = []
        self.vm = []
        self.lg = []
        self.smem_pending = set()
        self.nnop = 0
        self.uid = 0
        self.seen = set(); self.waited = set()
    def label(self, name):
        self.lines.append(name + ':')
    def comment(self, t):
        self.lines.append('    ; ' + t)
    def newlabel(self, p):
        self.uid += 1
        return f'L_{p}_{self.uid}'
    def raw(self, text):
        i = Ins(text); self.lines.append('    ' + text); self.hist.append(i); self.hist = self.hist[-40:]
        return i
    def _wait(self, vm=None, lg=None):
        parts = []
        if vm is not None and vm < len(self.vm):
            assert vm <= 63
            parts.append(f'vmcnt({vm})'); self.vm = self.vm[len(self.vm) - vm:] if vm else []
        if lg is not None and (lg < len(self.lg) or (lg == 0 and self.smem_pending)):
            if self.smem_pending: lg = 0
            lg = min(lg, 15)
            parts.append(f'lgkmcnt({lg})'); self.lg = self.lg[len(self.lg) - lg:] if lg else []
            if lg == 0: self.smem_pending = set()
        if parts: self.raw('s_waitcnt ' + ' '.join(parts))
    def wait_tag(self, tag):
        assert tag in self.seen, ('wait for a tag that was never issued', tag)
        self.waited.add(tag)
        idx = [k for k, e in enumerate(self.vm) if e[1] == tag]
        if idx: self._wait(vm=min(63, len(self.vm) - 1 - idx[-1]))
    def wait_lds_tag(self, tag):
        idx = [k for k, e in enumerate(self.lg) if e[1] == tag]
        if idx: self._wait(lg=len(self.lg) - 1 - idx[-1])
    def wait_all(self, vm=True, lg=True):
        self._wait(vm=0 if vm else None, lg=0 if lg else None)
    def fence(self, nop=True):
        self.raw('s_waitcnt vmcnt(0) lgkmcnt(0)'); self.vm = []; self.lg = []; self.smem_pending = set()
        if nop: self.raw('s_nop 15'); self.raw('s_nop 3')
    def vm_maybe(self):
        pass
    def fake_vm(self, n, tag):
        self.vm += [(set(), tag)] * n
    def _hazard(self, i):
        need = 0
        dist = 0
        R, W = set(i.r), set(i.w)
        vR = {r for r in R if r[0] in 'va'}; vW = {r for r in W if r[0] in 'va'}
        sR = {r for r in R if r[0] == 's' or r == ('x', 'vcc')}
        if i.op.startswith('v_cndmask') or i.op.startswith('v_addc'): sR |= {('x', 'vcc')} if 'vcc' in i.text else set()
        for p in reversed(self.hist):
            pw = set(p.w); req = 0
            if p.kind == 'mfma':
                big = 12 if p.passes == 8 else 8
                if i.kind == 'mfma':
                    if pw & set(i.ab): req = big
                    elif pw & set(i.srcC):
                        req = 0 if (p.w == i.srcC and p.passes == i.passes) else (10 if p.passes == 8 else 6)
                    elif pw & vW: req = big
                elif pw & (vR | vW): req = big
                if i.kind == 'valu' and set(p.srcC) & vW: req = max(req, 7 if p.passes == 8 else 3)
            elif p.kind == 'valu':
                pv = {r for r in pw if r[0] in 'va'}; ps = {r for r in pw if r[0] == 's' or r == ('x', 'vcc')}
                if i.kind == 'mfma' and pv & vR: req = 3 if p.dot else 2
                if i.kind == 'valu':
                    if (i.dpp or i.perm) and pv & vR: req = max(req, 2)
                    if i.rdlane and pv & vR: req = max(req, 1)
                    if p.trans and not i.trans and pv & (vR | vW): req = max(req, 1)
                    if p.dot and pv & (vR | vW):
                        same = p.op == i.op and not (pv & set(regs_of(i.ops[1]) + regs_of(i.ops[2])))
                        req = max(req, 0 if same else 3)
                    if ps & sR: req = max(req, 4 if i.op.startswith(('v_readlane', 'v_writelane')) else 2)
                    if ('x', 'exec') in pw: req = max(req, 5)
                if p.dot and i.kind in ('vmem', 'lds') and pv & vR: req = max(req, 3)
                if i.kind == 'vmem' and ps & sR: req = max(req, 5)
                if i.kind == 'mfma' and ('x', 'exec') in pw: req = max(req, 4)
                if i.kind == 'salu' and ps & sR: req = max(req, 1)
                if i.op.startswith('s_cbranch_vcc') and ('x', 'vcc') in pw: req = max(req, 1)
            elif p.kind == 'salu':
                if ('x', 'm0') in pw and ('x', 'm0') in R: req = 1
            elif p.kind == 'vmem':
                if p.data and set(p.data) & vW: req = 2
            need = max(need, req - dist)
            dist += p.states()
            if dist > 24: break
        return need
    def __call__(self, text, tag=None):
        i = Ins(text, tag)
        touched = set(i.r) | set(i.w)
        vmn = None
        for k, (regs, _) in enumerate(self.vm):
            if regs & touched: vmn = len(self.vm) - 1 - k
        lgn = None
        for k, (regs, _) in enumerate(self.lg):
            if regs & touched: lgn = len(self.lg) - 1 - k
        if self.smem_pending & touched: lgn = 0
        if vmn is not None: vmn = min(vmn, 63)
        self._wait(vm=vmn, lg=lgn)
        n = self._hazard(i)
        if n > 0:
            self.nnop += n
            while n > 0:
                k = min(n, 16); self.raw(f's_nop {k-1}'); n -= k
        if i.kind == 'vmem' and len(self.vm) >= 63:
            self._wait(vm=62)
        self.lines.append('    ' + text); self.hist.append(i); self.hist = self.hist[-40:]
        if i.kind == 'vmem':
            assert tag is None or tag not in self.waited, ('issued after its wait', tag)
            self.vm.append((set(i.w), tag)); self.seen.add(tag)
        elif i.kind == 'lds': self.lg.append((set(i.w), tag))
        elif i.kind == 'smem': self.smem_pending |= set(i.w)
        return i
    def text(self):
        return '\n'.join(self.lines) + '\n'

class Sched:
    def __init__(self):
        self.m = []
        self.gaps = {}
    def mfma(self, text):
        self.m.append(text); return len(self.m) - 1
    def at(self, g, item, tag=None):
        self.gaps.setdefault(max(g, 0), []).append((item, tag))
    def group(self, g, items, tag=None, stride=1, pre=None):
        g = max(g, getattr(self, 'gend', -10**9))
        if pre: self.at(g, pre)
        for i, x in enumerate(items): self.at(g + stride * i, x, tag)
        self.gend = g + stride * (len(items) - 1)
    def emit(self, a, report=None):
        n = len(self.m); last = max([n] + list(self.gaps.keys()))
        costs = []
        for g in range(last + 1):
            k0 = len(a.lines)
            for item, tag in self.gaps.get(g, []):
                if callable(item): item(a)
                else: a(item, tag)
            if g < n: a(self.m[g])
            c = sum(Ins(t.strip()).cost() for t in a.lines[k0:] if not t.strip().startswith(';') and not t.endswith(':'))
            costs.append(c)
        if report:
            over = sum(max(0, c - 32) for c in costs)
            print(f'{report}: {n} mfma, gaps>32: {sum(c > 32 for c in costs)}, excess {over}, total {sum(costs)}')
        return costs

class Sched2:
    def __init__(self, cap):
        self.cap = cap; self.m = []; self.sc = {}; self.mem_ = {}; self.va = {}; self.used = {}; self.solo = set()
        self.blk = {}; self.gend = -10**9
    def mfma(self, text):
        self.m.append(text); return len(self.m) - 1
    def _inside(self, g): return 0 < g < len(self.m)
    def free(self, g): return self.cap - self.used.get(g, 0)
    def scal(self, g, item, tag=None, force=False):
        g = max(g, 0)
        ok = lambda h: not (self.sc.get(h) or h in self.solo)
        while not force and self._inside(g) and not ok(g): g += 1
        if not force and self.cap == 2 and self._inside(g) and not self.used.get(g):
            for h in (g + 1, g + 2):
                if self._inside(h) and ok(h) and self.used.get(h): g = h; break
        self.sc.setdefault(g, []).append((item, tag)); return g
    def mem(self, g, item, tag=None, force=False):
        g = max(g, 0); i = Ins(item); vm = i.kind == 'vmem' or i.op.startswith('ds_write')
        need = min(self.cap, 3) if vm else 1
        while not force and self._inside(g):
            ok = self.free(g) >= need
            if self.cap == 2:
                ok = ok and not self.mem_.get(g)
                if vm: ok = ok and not self.sc.get(g)
            if ok: break
            g += 1
        if vm and self.cap == 2: self.solo.add(g)
        self.used[g] = self.used.get(g, 0) + need
        self.mem_.setdefault(g, []).append((item, tag)); return g
    def valu(self, g, item, force=False, limit=None):
        g = max(g, 0); i = Ins(item); need = 2 if (i.trans or i.perm) else 1
        g1 = g
        while not force and self._inside(g1) and self.free(g1) < need:
            g1 += 1
            if limit is not None and g1 > limit: g1 = g; break
        self.used[g1] = self.used.get(g1, 0) + need
        self.va.setdefault(g1, []).append((item, None)); return g1
    def block(self, g, fn):
        self.blk.setdefault(max(g, 0), []).append(fn); return g
    def put(self, g, item, tag=None):
        if callable(item): return self.scal(g, item)
        k = Ins(item).kind
        if k == 'salu': return self.scal(g, item, tag)
        if k == 'valu': return self.valu(g, item)
        return self.mem(g, item, tag)
    def chain(self, g, items, tag=None, stride=0):
        rank = lambda x: 0 if callable(x) or Ins(x).kind == 'salu' else (2 if Ins(x).kind == 'valu' else 1)
        prev = None
        for x in items:
            if prev is not None and rank(x) < rank(prev): g += 1
            g = self.put(g, x, tag); prev = x
            last = g
            if rank(x) == 1: g += stride
        return last
    def group(self, g, items, tag=None, stride=0):
        self.par = 1 - getattr(self, 'par', 0); so = ('s82', 's83')[self.par]
        rest = []
        for x in items:
            if not callable(x) and x.startswith('s_add_u32 {so}'):
                g = max(g, self.scal(max(getattr(self, 'gend2', 0) + 1, g - 12, 1), x.replace('{so}', so)))
            else: rest.append(x if callable(x) else x.replace('{so}', so))
        g = max(g, self.gend + 1); self.gend2 = self.gend
        self.gend = self.chain(g, rest, tag, stride); return self.gend
    def emit(self, a, report=None, drop=None):
        n = len(self.m); keys = set(self.sc) | set(self.mem_) | set(self.va) | set(self.blk)
        last = max([n] + list(keys)); est = 0; per = 16 if self.cap == 2 else 32
        xfree = lambda g: not self.sc.get(g) and g not in self.solo
        for g in range(last + 1):
            k0 = len(a.lines)
            ordered = self._inside(g)
            if ordered:
                if xfree(g):
                    h = g
                    while True:
                        a.prewait(self.m[h]); h += 1
                        if h >= n or xfree(h) or h - g > 3: break
                    a.flush_prewait()
                else:
                    a.prewait(self.m[g]); a.flush_prewait()
            for lst in (self.sc, self.mem_, self.va):
                for item, tag in lst.get(g, []):
                    if drop and drop(item, g): a.seen.add(tag); continue
                    if callable(item): item(a)
                    else: a(item, tag)
            for fn in self.blk.get(g, []):
                if drop and drop(fn, g): continue
                fn(a)
            if g < n: a(self.m[g])
            ins = [Ins(t.strip()) for t in a.lines[k0:] if not t.strip().startswith(';') and not t.endswith(':')]
            c = 0; first = True
            for i in ins:
                if i.kind == 'mfma': continue
                w = i.cost() if i.kind != 'vmem' else 8
                if first and i.kind not in ('salu', 'smem'): c += 4
                c += w; first = False
            est += max(per, c + 4) if ordered else c
        if report: print(f'{report}: {n} mfma, ideal {n*per}, estimate {est}')

def _prewait(self, text):
    i = Ins(text); touched = set(i.r) | set(i.w)
    pw = getattr(self, '_pw', [None, None])
    for k, (regs, _) in enumerate(self.vm):
        if regs & touched:
            v = min(63, len(self.vm) - 1 - k); pw[0] = v if pw[0] is None else min(pw[0], v)
    for k, (regs, _) in enumerate(self.lg):
        if regs & touched:
            v = len(self.lg) - 1 - k; pw[1] = v if pw[1] is None else min(pw[1], v)
    self._pw = pw
def _flush(self):
    pw = getattr(self, '_pw', [None, None]); self._pw = [None, None]
    self._wait(vm=pw[0], lg=pw[1])
Asm.prewait = _prewait
Asm.flush_prewait = _flush

def fill(S, ops, g0, g1):
    cost = [2 if (Ins(t).trans or Ins(t).perm) else 1 for t, _ in ops]
    at = {}; debt = 0.0
    for g in range(g0, g1 + 200):
        if len(at) == len(ops): break
        if g in S.solo and g < g1: continue
        left = sum(c for i, c in enumerate(cost) if i not in at)
        open_ = [h for h in range(g, g1 + 1) if h not in S.solo]
        capsum = sum(max(0, S.free(h)) for h in open_)
        cap = max(0, S.free(g))
        if g >= g1: cap = 99
        elif left + 4 > capsum:
            debt += (left + 4 - capsum) / len(open_)
            while debt >= 1: cap += 1; debt -= 1
        while cap > 0:
            ready = [i for i in range(len(ops)) if i not in at and all(d in at and at[d] < g for d in ops[i][1])]
            ready = ready[:10]
            pick = None
            if cap >= 2 and cap % 2 == 0:
                tr = [i for i in ready if cost[i] == 2]; sg = [i for i in ready if cost[i] == 1]
                if tr and (len(sg) < 4 or tr[0] < sg[0]): pick = tr[0]
            if pick is None:
                c = [i for i in ready if cost[i] == 1] or [i for i in ready if cost[i] <= cap]
                if not c: break
                pick = c[0]
            at[pick] = g; cap -= cost[pick]
            S.valu(g, ops[pick][0], force=True)
    return at
```

```python
import sys, struct, math
from asmlib import Asm, Sched2, fill

NAME = 'adaLN_cond__sliding_block_cached__dense_activation_silu__prompt'
def f2u(x): return struct.unpack('<I', struct.pack('<f', x))[0]
def hx(x): return '0x%08x' % f2u(x)
LOG2E = 1.4426950408889634

SRD = dict(X=4, K=8, V=12, WQ=16, WO=20, W1=24, W2=28, C=32, WM=36, OUT=40, DBG=44, WS=48)
KOFF = dict(X=0, K=8, V=16, WQ=24, WO=32, W1=48, W2=56, C=64, WM=72, OUT=80, DBG=88, WS=96)
SIZE = dict(X=2048*512*2, K=8*2048*128*2, V=8*2048*128*2, WQ=512*4096*2, WO=4096*512*2, W1=512*1792*2,
            W2=1792*512*2, C=1024, WM=512*3072*2, OUT=2048*512*2, DBG=256, WS=1 << 28)
def srd(n): return f's[{SRD[n]}:{SRD[n]+3}]'
sW, sG, sRB = 's52', 's53', 's54'
sT0, sT1, sT2, sT3 = 's55', 's56', 's57', 's58'
sMASK = 's59'
sA, sB, sC, sD = 's60', 's61', 's62', 's63'
sST = 64
sN = 's99'
sBAD = 's[64:65]'
sP = 66
sSIG, sWAIT, sLD = 's70', 's71', 's72'
sRH, sR32, sFS = 's73', 's74', 's75'
sE, sF, sH = 's76', 's77', 's78'
sW1, sRD, sH1, sWV, sH2 = 's79', 's80', 's81', 's84', 's85'

WS_MOD = 0
WS_FLG = 0x10000
WS_STAMP = 0x80000
WS_DUMMY = 0x100000
WS_X1 = 0x200000
WS_H2 = 0x400000
WS_H1 = 0x600000
WS_P1 = 0x1000000
SC = 'sc1'
F_A, F_B, F_C = WS_FLG, WS_FLG + 0x20000, WS_FLG + 0x28000

L_B, L_A = 32768, 65536
LDS_BYTES = 163840
def slot_lds(sig): return L_A + 16384 * sig

def vr(b, n=1, k='v'): return f'{k}{b}' if n == 1 else f'{k}[{b}:{b+n-1}]'
def ar(b, n=1): return vr(b, n, 'a')

OPT = dict(stamps=0, probe='', pwg=100, pmul=4, st0=16, abl='', qpace=160, wpace=24, r2=0, stsp=18, siga=48, polla=30, nlast=2, w1st=3, tlb=0, sigc=50, pollc=40, sig4=36, pre2=2, silu3=36, w2b=4, pfl=0, word=1)
stamp_names = []
def stamp(a, name):
    if OPT['probe']:
        pa, pb = OPT['probe'].split(':')
        if name == pa: a('s_memrealtime s[100:101]')
        if name == pb: a('s_memrealtime s[96:97]')
    if not OPT['stamps']: return
    if OPT['stamps'] == 3:
        if not name.startswith('t_') and name not in ('args', 'wo32', 'p1done', 'syncA', 'h2done', 'syncB', 'g0', 'g128', 'g256', 'syncC', 'h1done', 'f0', 'f112', 'f224', 'end'): return
    elif name.startswith('t_'): return
    elif name.startswith('m_') != (OPT['stamps'] == 2) and name not in ('args', 'xissue', 'stats', 'modok', 'apply', 'end', 'q16'): return
    i = len(stamp_names[-1]); stamp_names[-1].append(name)
    a('s_memrealtime s[100:101]')
    a(f'v_writelane_b32 v1, s100, {i}')
    a('s_memtime s[100:101]')
    a(f'v_writelane_b32 v1, s100, {32+i}')
def stamp_flush(a):
    if OPT['probe']:
        a.wait_all(); stamp(a, 'end')
        a('s_memrealtime s[94:95]'); a.wait_all()
        a(f's_cmp_lg_u32 s2, {OPT["pwg"]}'); a.raw('s_cbranch_scc1 L_end')
        a('s_sub_u32 s92, s96, s100'); a(f's_mul_i32 s92, s92, {OPT["pmul"]}'); a('s_min_u32 s92, s92, 100000')
        a.label('L_probe')
        a.raw('s_memrealtime s[90:91]'); a.raw('s_waitcnt lgkmcnt(0)'); a.raw('s_sub_u32 s90, s90, s94'); a.raw('s_cmp_lt_u32 s90, s92'); a.raw('s_cbranch_scc1 L_probe')
    if not OPT['stamps']: return
    a.wait_all()
    stamp(a, 'end')
    a(f's_lshl_b32 s100, s2, 10'); a(f's_lshl_b32 s101, {sW}, 8'); a('s_add_u32 s100, s100, s101')
    a(f's_add_u32 s100, s100, {WS_STAMP}')
    a('v_lshlrev_b32 v0, 2, v0')
    a(f'buffer_store_dword v1, v0, {srd("WS")}, s100 offen')

class Collect:
    def __init__(self): self.l = []
    def __call__(self, t, tag=None): self.l.append(t)
def collect(fn, *args, **kw):
    c = Collect(); fn(c, *args, **kw); return c.l

def lane_fields(a, dst, spec, tmp, add=None):
    first = True
    for sh, nb, sc in spec:
        t = dst if first else tmp
        src = t
        if sh == 0 and nb == 6: src = 0
        elif sh == 0: a(f'v_and_b32 v{t}, {(1 << nb) - 1}, v0')
        elif sh + nb == 6: a(f'v_lshrrev_b32 v{t}, {sh}, v0')
        else: a(f'v_bfe_u32 v{t}, v0, {sh}, {nb}')
        if sc & (sc - 1) == 0:
            if first:
                if sc > 1 or src != t: a(f'v_lshlrev_b32 v{t}, {sc.bit_length()-1}, v{src}')
            else: a(f'v_lshl_add_u32 v{dst}, v{src}, {sc.bit_length()-1}, v{dst}')
        else:
            a(f'v_mul_u32_u24 v{t}, {sc}, v{src}')
            if not first: a(f'v_add_u32 v{dst}, v{dst}, v{t}')
        first = False
    if add is not None: a(f'v_add_u32 v{dst}, {add}, v{dst}')

def dma(soff, voff, srdn, imm, fl=''):
    return f'buffer_load_dwordx4 v{voff}, {srd(srdn)}, {soff} offen offset:{imm} {fl + " " if fl else ""}lds'
def barrier(a):
    a.wait_all(vm=False); a.raw('s_barrier')
def set_exec(a, nl):
    if nl < 32: a.raw(f's_mov_b64 exec, {hex((1 << nl) - 1)}')
    else: a.raw('s_mov_b32 exec_lo, -1'); a.raw(f's_mov_b32 exec_hi, {hex((1 << (nl - 32)) - 1)}')
def touch(a, n, vaddr, nl, soff, dst=28):
    if nl < 64: set_exec(a, nl)
    a.raw(f'buffer_load_dword v{dst}, v{vaddr}, {srd(n)}, {soff} offen'); a.fake_vm(1, None)
    if nl < 64: a.raw('s_mov_b64 exec, -1')

def spin(a, srdn, soff, vaddr, vdst, nl, imm=0, lvl=1):
    loop, out = a.newlabel('poll'), a.newlabel('pollout')
    set_exec(a, nl)
    a.raw('s_mov_b32 s98, 0x200000')
    a.label(loop)
    a.raw(f'buffer_load_dword v{vdst}, v{vaddr}, {srd(srdn)}, {soff} offen offset:{imm} {SC}')
    a.raw('s_sub_u32 s98, s98, 1')
    a.raw(f's_cbranch_scc1 {out}')
    a.raw('s_waitcnt vmcnt(0)')
    a.raw(f'v_cmp_gt_u32 vcc, {lvl}, v{vdst}')
    a.raw('s_nop 0')
    a.raw(f's_cbranch_vccnz {loop}')
    a.label(out)
    a.raw('s_waitcnt vmcnt(0)')
    a.raw('s_mov_b64 exec, -1')
def signal(a, tag, nl, imm):
    a.wait_tag(tag); barrier(a)
    l0 = a.newlabel('sig')
    a(f's_cmp_lg_u32 {sW}, 0')
    a.raw(f's_cbranch_scc1 {l0}')
    set_exec(a, nl)
    a.raw(f'buffer_store_dword v{vONE}, v{vSIG}, {srd("WS")}, {sSIG} offen offset:{imm} {SC}')
    a.raw('s_mov_b64 exec, -1')
    a.label(l0)
def wave_signal(a, tag, lvl, nl, cond=False):
    a(f'v_mov_b32 v{vONE}, {lvl}')
    a.wait_tag(tag)
    l0 = a.newlabel('ws')
    if cond: a(f's_cmp_ge_u32 {sRB}, 28'); a.raw(f's_cbranch_scc1 {l0}')
    set_exec(a, nl)
    a.raw(f'buffer_store_dword v{vONE}, v{vSIG}, {srd("WS")}, {sSIG} offen {SC}')
    a.raw('s_mov_b64 exec, -1')
    if cond: a.label(l0)
    else: a.fake_vm(1, None)
sFP, sFV = 86, 88
late_spins = []
def flag_base(a, soff):
    a(f's_add_u32 s{sFP}, s{SRD["WS"]}, {soff}'); a(f's_addc_u32 s{sFP+1}, s{SRD["WS"]+1}, 0')
def flag_loads(kind):
    if kind == 'C': return [f's_load_dword s{sFV+n}, s[{sFP}:{sFP+1}], {128*n} glc' for n in range(7)]
    out = [f's_load_dwordx8 s[{sFV}:{sFV+7}], s[{sFP}:{sFP+1}], 0 glc']
    if kind == 'B': out.append(f's_load_dwordx8 s[32:39], s[{sFP}:{sFP+1}], 32 glc')
    return out
def flag_test(em, kind, lvl):
    n = 7 if kind == 'C' else 8
    if kind == 'B':
        for q in range(8): em(f's_min_u32 s{sFV+q}, s{sFV+q}, s{32+q}')
    for st in (1, 2, 4):
        for q in range(0, n - st, 2 * st): em(f's_min_u32 s{sFV+q}, s{sFV+q}, s{sFV+q+st}')
    em(f's_cmp_lt_u32 s{sFV}, {lvl}')
def sspin(a, kind, lvl):
    loop, out = a.newlabel('sp'), a.newlabel('spout')
    a.raw('s_mov_b32 s98, 0x200000')
    a.label(loop)
    for x in flag_loads(kind): a.raw(x)
    a.raw('s_sub_u32 s98, s98, 1')
    a.raw('s_waitcnt lgkmcnt(0)')
    a.raw(f's_cbranch_scc1 {out}')
    flag_test(a.raw, kind, lvl)
    a.raw(f's_cbranch_scc1 {loop}')
    a.label(out)
def flag_check(a, kind, lvl):
    l0, l1 = a.newlabel('fc'), a.newlabel('fcj')
    flag_test(a, kind, lvl); a.raw(f's_cbranch_scc1 {l0}'); a.label(l1)
    late_spins.append((l0, l1, kind, lvl))
def await_flags(a, nl, imm, srdn='WS', soff=None):
    l1 = a.newlabel('aw')
    a(f's_cmp_lg_u32 {sW}, 1')
    a.raw(f's_cbranch_scc1 {l1}')
    spin(a, srdn, soff or sWAIT, vL4, vPOLL, nl, imm)
    a.label(l1)
    barrier(a)

vW4, vKD, vVD = 2, 6, 10
vTRA, vTRB, vTV, vK, vH = 12, 14, 16, 18, 22
vTRC, vTW1 = 16, 18
vT = 24
vSIG, vPOLL, vONE, vL4 = 28, 29, 30, 31
vQ, vS, vP, vR, vO = 32, 96, 112, 120, 128
aK, aV, aL, aONE, aX = 0, 64, 128, 144, 160

def m16(d, A, B, first): return f'v_mfma_f32_16x16x32_bf16 {d}, {A}, {B}, {"0" if first else d}'
def m32(d, A, B, first): return f'v_mfma_f32_32x32x16_bf16 {d}, {A}, {B}, {"0" if first else d}'

XR = 64
def x_load(i):
    return [f's_add_u32 {sT3}, {sT3}, 1024', f's_and_b32 {sT3}, {sT3}, 0x3c00', f's_add_u32 {sT0}, {sT2}, {sT3}',
            f'buffer_load_dwordx4 v[{XR+4*i}:{XR+4*i+3}], v{vT}, {srd("X")}, {sT0} offen']

def phase_mod(a):
    a.comment('mod = silu(c) @ w_mod, 64 columns per producer')
    W = 128; SL = 32; SH = 48; ACC = 8
    a(f's_lshl_b32 {sA}, s2, 7')
    a(f's_mul_i32 {sT1}, {sW}, {128*6144}')
    a(f's_add_u32 {sA}, {sA}, {sT1}')
    lane_fields(a, 2, [(3, 3, 16 * 6144), (0, 3, 16)], 3)
    lane_fields(a, 3, [(3, 3, 32)], 4)
    a(f's_lshl_b32 {sB}, {sW}, 8')
    for i in range(2): a(f'buffer_load_dwordx4 v[{16+4*i}:{19+4*i}], v3, {srd("C")}, {sB} offen offset:{16*i}')
    def wl(i):
        a(f'buffer_load_dwordx4 v[{W+4*i}:{W+4*i+3}], v2, {srd("WM")}, {sA} offen')
        if i < 15: a(f's_add_u32 {sA}, {sA}, 6144')
    for i in range(8): wl(i)
    for i in range(8): a(f'v_mov_b32 v{ACC+i}, 0')
    for r in range(8):
        a(f'v_lshlrev_b32 v{SH+2*r}, 16, v{16+r}'); a(f'v_and_b32 v{SH+2*r+1}, {sMASK}, v{16+r}')
    for i in range(8, 16): wl(i)
    stamp(a, 'm_issued')
    lab = a.newlabel('nz')
    a('s_cmp_ge_u32 s2, 16')
    a.raw(f's_cbranch_scc1 {lab}')
    a.raw(f's_lshl2_add_u32 {sT0}, s2, {sW}'); a.raw(f's_mul_i32 {sT0}, {sT0}, 5120'); a.raw(f's_add_u32 {sT0}, {sT0}, {WS_FLG}')
    for i in range(5):
        if i == 4: a.raw(f's_add_u32 {sT0}, {sT0}, 4096')
        a.raw(f'buffer_store_dwordx4 v[{ACC}:{ACC+3}], v{vT}, {srd("WS")}, {sT0} offen offset:{1024*(i%4)} {SC}')
    a.label(lab)
    for i in range(16): a(f'v_mul_f32 v{SL+i}, {hx(-LOG2E)}, v{SH+i}')
    for i in range(16): a(f'v_exp_f32 v{SL+i}, v{SL+i}')
    for i in range(16): a(f'v_add_f32 v{SL+i}, 1.0, v{SL+i}')
    for i in range(16): a(f'v_rcp_f32 v{SL+i}, v{SL+i}')
    for i in range(16): a(f'v_mul_f32 v{SH+i}, v{SH+i}, v{SL+i}')
    for i in range(16): a(f'v_cvt_pk_bf16_f32 v{SL+i}, v{SH+i}, 0')
    for i in range(16): a(f'v_lshlrev_b32 v{SH+i}, 16, v{SL+i}')
    stamp(a, 'm_silu')
    for i in range(16):
        for r in range(4):
            a(f'v_dot2c_f32_bf16 v{ACC+2*r}, v{W+4*i+r}, v{SL+i}')
            a(f'v_dot2c_f32_bf16 v{ACC+2*r+1}, v{W+4*i+r}, v{SH+i}')
    stamp(a, 'm_dot16')
    for i in range(4): a(f'v_permlane32_swap_b32 v{ACC+i}, v{ACC+4+i}')
    for i in range(4): a(f'v_add_f32 v{ACC+i}, v{ACC+i}, v{ACC+4+i}')
    for i in range(2): a(f'v_permlane16_swap_b32 v{ACC+i}, v{ACC+2+i}')
    for i in range(2): a(f'v_add_f32 v{ACC+i}, v{ACC+i}, v{ACC+2+i}')
    lane_fields(a, 4, [(0, 3, 32), (4, 2, 8)], 5)
    a(f'v_add_u32 v4, {sB}, v4')
    for i in range(2): a(f'v_add_f32_dpp v{ACC+i}, v{ACC+i}, v{ACC+i} row_ror:8 row_mask:0xf bank_mask:0xf')
    a(f'ds_write_b64 v4, v[{ACC}:{ACC+1}]')
    a(f's_lshr_b32 {sT1}, s2, 3')
    a(f's_mov_b32 {sB}, {hx(LOG2E/math.sqrt(128.0))}')
    a(f's_cmp_eq_u32 {sT1}, 2'); a(f's_cselect_b32 {sB}, 1.0, {sB}')
    a(f's_cmp_ge_u32 {sT1}, 3'); a(f's_cselect_b32 {sB}, {hx(-LOG2E)}, {sB}')
    a(f's_cmp_eq_u32 {sT1}, 5'); a(f's_cselect_b32 {sB}, {hx(-1.0/LOG2E)}, {sB}')
    a(f's_mov_b32 {sC}, 0')
    a(f's_cmp_eq_u32 {sT1}, 1'); a(f's_cselect_b32 {sC}, 1.0, {sC}')
    a(f's_cmp_eq_u32 {sT1}, 4'); a(f's_cselect_b32 {sC}, 1.0, {sC}')
    a.fence(nop=False)
    a.raw('s_barrier')
    stamp(a, 'm_bar')
    lab = a.newlabel('modskip')
    a(f's_cmp_lg_u32 {sW}, 0')
    a.raw(f's_cbranch_scc1 {lab}')
    for i in range(4): a(f'ds_read_b32 v{ACC+i}, v{vL4} offset:{256*i}')
    a(f's_lshl_b32 {sT1}, s2, 8')
    a(f's_add_u32 {sT1}, {sT1}, {WS_MOD}')
    a(f'v_add_f32 v8, v8, v9'); a('v_add_f32 v10, v10, v11'); a('v_add_f32 v8, v8, v10')
    a('v_cvt_pk_bf16_f32 v8, v8, v8'); a(f'v_and_b32 v8, {sMASK}, v8')
    a(f'v_add_f32 v8, {sC}, v8')
    a('v_cvt_pk_bf16_f32 v8, v8, v8'); a(f'v_and_b32 v8, {sMASK}, v8')
    a(f'v_mul_f32 v8, {sB}, v8')
    a(f'buffer_store_dword v8, v{vL4}, {srd("WS")}, {sT1} offen {SC}')
    stamp(a, 'm_st')
    a.label(lab)
    a.vm = []
    for i in range(8):
        for t in x_load(i): a(t)
    lab = a.newlabel('modskip')
    a(f's_cmp_lg_u32 {sW}, 0')
    a.raw(f's_cbranch_scc1 {lab}')
    a(f's_lshl_b32 {sT1}, s2, 2'); a('s_cmp_ge_u32 s2, 16'); a(f's_cselect_b32 {sT0}, 64, 0'); a(f's_add_u32 {sT1}, {sT1}, {sT0}')
    a.raw('s_mov_b64 exec, 1')
    a.raw('s_waitcnt vmcnt(8)')
    a.raw(f'buffer_store_dword v{vONE}, v0, {srd("DBG")}, {sT1} offen {SC}')
    a.raw('s_mov_b64 exec, -1')
    stamp(a, 'm_stdone')
    a.label(lab)

def butterfly16(a, rs):
    for r in rs:
        for i in range(8): a(f'v_permlane32_swap_b32 v{r+i}, v{r+i+8}')
        for i in range(8): a(f'v_add_f32 v{r+i}, v{r+i}, v{r+i+8}')
    for r in rs:
        for i in range(4): a(f'v_permlane16_swap_b32 v{r+i}, v{r+i+4}')
        for i in range(4): a(f'v_add_f32 v{r+i}, v{r+i}, v{r+i+4}')
    for sh in (8, 4, 2, 1):
        for r in rs:
            for i in range(4):
                a(f'v_add_f32_dpp v{r+i}, v{r+i}, v{r+i} row_ror:{sh} row_mask:0xf bank_mask:0xf')

def wq_sig(n): return (n + 4) % 6
def wq_dma(n, so='{so}'):
    c, k = divmod(n, 16)
    return [f's_add_u32 m0, {sC}, {slot_lds(wq_sig(n))}', f's_add_u32 {so}, {sA}, {k*32*8192 + c*128}'] + \
           [dma(so, vW4 + p, 'WQ', 1024 * p) for p in range(4)]
def wo_sig(n):
    return 2 + n % 4 if n < 6 else n % 6 if n < 22 else n - 20 if n < 26 else (n - 10) % 6
def wo_dma(n, so='{so}'):
    c, k = divmod(n, 16)
    return [f's_add_u32 m0, {sC}, {slot_lds(wo_sig(n))}', f's_add_u32 {so}, {sB}, {k*32*1024 + c*128}'] + \
           [dma(so, vW4 + p, 'WO', 1024 * p) for p in range(4)]
def kv_buf(t): return L_B if t % 2 == 0 else L_A
def kv_dma(t, which, so='{so}'):
    out = [f's_add_u32 m0, {sC}, {kv_buf(t) + (0 if which == "K" else 16384)}', f's_add_u32 {so}, {sD}, {t*16384}']
    return out + [dma(so, vKD + p if which == 'K' else vVD + p % 2, which, 1024 * p) for p in range(4)]
def w_read(dst, sig, t, r):
    reg, base = (vTRC, 16384 * (sig + 4)) if sig < 0 else (vTRA, 16384 * sig) if sig < 4 else (vTRB, 16384 * (sig - 4))
    return f'ds_read_b64_tr_b16 {dst}, v{reg + t % 2} offset:{base + 2048*r + 256*(t//2)}'
def w64_offsets(a, dst, tmp, pitch, kq_rows, prow):
    lane_fields(a, dst, [(2, 2, pitch), (4, 1, 64), (5, 1, kq_rows * pitch)], tmp)
    a(f'v_lshrrev_b32 v{tmp}, 4, v0'); a(f'v_and_b32 v{tmp}, 2, v{tmp}'); a(f'v_xor_b32 v{tmp}, v{tmp}, v0')
    a(f'v_and_b32 v{tmp}, 3, v{tmp}'); a(f'v_lshl_add_u32 v{dst}, v{tmp}, 4, v{dst}')
    for p in range(1, 4): a(f'v_add_u32 v{dst+p}, {prow(p)*pitch - 1024*p}, v{dst}')

def main_setup(a):
    a.comment('address set-up')
    t = vT + 1
    a(f's_lshl_b32 {sC}, {sW}, 12')
    w64_offsets(a, vW4, t, 8192, 8, lambda p: 16 * (p & 1) + 4 * (p >> 1))
    a(f's_lshl_b32 {sA}, {sG}, 10'); a(f's_lshl_b32 {sT1}, {sW}, 8'); a(f's_add_u32 {sA}, {sA}, {sT1}')
    a(f's_lshl_b32 {sB}, {sG}, 19'); a(f's_add_u32 {sD}, {sB}, {1536*256}'); a(f's_add_u32 {sD}, {sD}, {sC}')
    a(f's_add_u32 {sB}, {sB}, {sT1}')
    lane_fields(a, vVD, [(0, 2, 16), (2, 2, 256), (4, 2, 64)], t)
    a(f'v_xor_b32 v{vVD+1}, 32, v{vVD}')
    a(f'v_lshrrev_b32 v{t}, 4, v0')
    a(f'v_and_b32 v{t+1}, 15, v0')
    a(f'v_xor_b32 v{t+2}, v{t+1}, v{t}')
    a(f'v_lshlrev_b32 v{t+2}, 4, v{t+2}')
    a(f'v_lshl_add_u32 v{vKD}, v{t}, 8, v{t+2}')
    for p in range(1, 4): a(f'v_xor_b32 v{vKD+p}, {64*p}, v{vKD}')
    a(f'v_mov_b32 v{vH}, v{vKD}'); a(f'v_mov_b32 v{vH+1}, v{vKD+1}')
    lane_fields(a, t + 2, [(5, 1, 1), (4, 1, 2)], t)
    a(f'v_xor_b32 v{t+2}, v{t+2}, v{t+1}')
    a(f'v_lshlrev_b32 v{t+2}, 4, v{t+2}')
    a(f'v_lshl_add_u32 v{vK}, v{t+1}, 8, v{t+2}')
    a(f'v_add_u32 v{vK}, {L_B}, v{vK}')
    for s in range(1, 4): a(f'v_xor_b32 v{vK+s}, {64*s}, v{vK}')
    lane_fields(a, t + 1, [(2, 2, 64), (4, 1, 32), (0, 2, 8)], t)
    a(f'v_lshrrev_b32 v{t}, 4, v0')
    a(f'v_lshl_add_u32 v{vTV}, v{t}, 10, v{t+1}'); a(f'v_add_u32 v{vTV}, {L_B}, v{vTV}'); a(f'v_xor_b32 v{vTV+1}, 32, v{vTV}')
    a(f's_add_u32 {sT1}, {sC}, {L_A}')
    a(f'v_lshl_add_u32 v{vTRA}, v{t}, 9, v{t+1}'); a(f'v_add_u32 v{vTRA}, {sT1}, v{vTRA}'); a(f'v_xor_b32 v{vTRA+1}, 32, v{vTRA}')
    for b in range(2): a(f'v_add_u32 v{vTRB+b}, 0x10000, v{vTRA+b}')

def ln1_stats(a):
    a.comment('LN1 statistics (rows are held in rotated order)')
    D = 128; R = 32; R2 = 48
    a(f'v_mov_b32 v{vT+1}, 0x3f803f80')
    for i in range(32): a(f'v_mov_b32 v{R+i}, 0')
    for i in range(16):
        for r in range(4):
            a(f'v_dot2c_f32_bf16 v{R+i}, v{XR+4*i+r}, v{vT+1}')
            a(f'v_dot2c_f32_bf16 v{R2+i}, v{XR+4*i+r}, v{XR+4*i+r}')
        for r in range(4):
            a(f'v_lshlrev_b32 v{D+8*i+2*r}, 16, v{XR+4*i+r}')
            a(f'v_and_b32 v{D+8*i+2*r+1}, {sMASK}, v{XR+4*i+r}')
    stamp(a, 'm_pass1')
    for n in range(2):
        for x in wq_dma(n, sT1): a(x, ('wq', n))
    butterfly16(a, [R, R2])
    a(f'v_mov_b32 v{vT+1}, {hx(1e-5)}')
    for i in range(4): a(f'v_mul_f32 v{R+i}, {hx(-1.0/512)}, v{R+i}')
    for i in range(4): a(f'v_mul_f32 v{R2+i}, {hx(1.0/512)}, v{R2+i}')
    for i in range(4): a(f'v_fma_f32 v{R2+i}, -v{R+i}, v{R+i}, v{R2+i}')
    for i in range(4): a(f'v_max_f32 v{R2+i}, 0, v{R2+i}')
    for i in range(4): a(f'v_add_f32 v{R2+i}, v{vT+1}, v{R2+i}')
    for i in range(4): a(f'v_rsq_f32 v{R2+i}, v{R2+i}')
    for i in range(4): a(f'v_mul_f32 v{R+i}, v{R+i}, v{R2+i}')
    for q in range(4):
        for i in range(4):
            a(f'v_readlane_b32 s{sST+2*(i+4*q)}, v{R2+i}, {16*q}'); a(f'v_readlane_b32 s{sST+2*(i+4*q)+1}, v{R+i}, {16*q}')
    for i in range(16):
        d = D + 8 * i; sp = f's[{sST+2*i}:{sST+2*i+1}]'
        for r in range(4):
            a(f'v_pk_fma_f32 v[{d+2*r}:{d+2*r+1}], v[{d+2*r}:{d+2*r+1}], {sp}, {sp} op_sel:[0,0,1] op_sel_hi:[1,0,1]')
    a(f's_lshl_b32 {sT0}, {sW}, 14')
    lane_fields(a, 48, [(0, 6, 256), (0, 3, 16)], 49, add=sT0)
    a(f's_lshl_b32 {sT0}, {sG}, 5')
    for i in range(16):
        a(f's_add_u32 {sT0}, {sT0}, 16'); a(f's_and_b32 {sT0}, {sT0}, 0xf0'); a(f'v_xor_b32 v{32+i}, {sT0}, v48')
    for n in range(2, 4):
        for x in wq_dma(n, sT1): a(x, ('wq', n))

def ln1_apply(a):
    a.comment('h = xn*A + B -> LDS')
    D = 128; M = 48
    a(f'v_lshlrev_b32 v{vT+1}, 5, v0')
    for vec in range(2):
        for hf in range(2):
            b = M + 8 * vec + 4 * hf
            a(f'buffer_load_dwordx4 v[{b}:{b+3}], v{vT+1}, {srd("WS")}, 0 offen offset:{WS_MOD + 2048*vec + 16*hf} {SC}')
    for n in range(4, 6):
        for x in wq_dma(n, sT1): a(x, ('wq', n))
    for i in range(16):
        d = D + 8 * i; t = XR + 4 * (i % 8)
        for r in range(4):
            a(f'v_pk_fma_f32 v[{d+2*r}:{d+2*r+1}], v[{d+2*r}:{d+2*r+1}], v[{M+8+2*r}:{M+9+2*r}], v[{M+2*r}:{M+1+2*r}]')
        for r in range(4): a(f'v_cvt_pk_bf16_f32 v{t+r}, v{d+2*r}, v{d+2*r+1}')
        a(f'ds_write_b128 v{32+i}, v[{t}:{t+3}]')

class Proj:
    LA = 14
    def __init__(self, S, name, sig, ring, res, nlast, bread):
        self.S, self.name, self.sig, self.bread, self.res = S, name, sig, bread, res
        self.g0 = len(S.m); self.use = {}; self.reg = {}; self.done = {}; self.rel = {}; self.need = {}
        acc = self.acc = lambda c, t, qt: vO + 64 * c + 16 * qt + 4 * t
        for n in range(32):
            for t in range(4):
                self.reg[n, t] = (res[n][0], res[n][1] + 4 * t) if n in res else ('v', ring + 4 * ((4 * n + t) % 8))
        def mm(n, t, qt):
            c, k = divmod(n, 16); kind, r = self.reg[n, t]
            g = S.mfma(m16(vr(acc(c, t, qt), 4), vr(r, 4, kind), ar(16 * k + 4 * qt, 4), k == 0))
            self.use.setdefault((n, t), g); self.done[c, qt] = g
        for n in range(32 - nlast):
            for t in range(4):
                for qt in range(4): mm(n, t, qt)
        for qt in range(4):
            for t in range(4):
                for n in range(32 - nlast, 32): mm(n, t, qt)
    def step(self, n): return self.g0 + int(16 * n)
    def a_reads(self, n, t):
        kind, r = self.reg[n, t]
        return [w_read(vr(r + 2 * rr, 2, kind), self.sig(n), t, rr) for rr in range(2)]
    def head(self, a):
        for qt in range(4): a(self.bread(0, qt))
        if 0 not in self.res:
            a.wait_tag((self.name, 0))
            for t in range(4):
                for x in self.a_reads(0, t): a(x, ('ar', 0))
    def reads(self):
        S = self.S
        for n in sorted(range(32), key=lambda n: n in self.res):
            if 0 < n < 16:
                for qt in range(4): S.mem(self.step(n - 1) + 4 * qt, self.bread(n, qt))
            self.rel[n] = self.step(n)
            if n == 0 and 0 not in self.res: continue
            if n in self.res and self.res[n][2] is None: continue
            g = g1 = self.g0 + self.res[n][2] if n in self.res else self.step(n) - self.LA
            for t in range(4):
                g = max(g, g1 + 4 * t)
                for x in self.a_reads(n, t): g = S.mem(g, x, ('ar', n))
                assert g <= self.use[n, t] - 6, (self.name, n, t, g, self.use[n, t])
            S.scal(g1, lambda a, n=n: a.wait_tag((self.name, n)), force=True)
            self.rel[n] = g + 5; self.need[n] = g1
    def stream(self, groups):
        slack = []
        for n, g, items, tag, stride in groups:
            pre = [] if n is None else [lambda a, n=n: a.wait_lds_tag(('ar', n))]
            ge = self.S.group(max(g, self.g0 + 1, -1 if n is None else self.rel[n]), pre + items, tag, stride)
            if tag[0] == self.name: slack.append(self.need[tag[1]] - ge)
        print(self.name, 'DMA slack (gaps)', slack)

def o_convert(qt, packed):
    out = []
    for ap in range(4):
        o = vO + 32 * qt + 8 * ap; t = vS + 4 * ((4 * qt + ap) % 4) if packed else vQ + 16 * ap + 4 * qt
        if packed:
            rp = vR + (qt & ~1); sel = 'op_sel_hi:[1,0]' if qt % 2 == 0 else 'op_sel:[0,1] op_sel_hi:[1,1]'
            for r in range(4): out.append(f'v_pk_mul_f32 v[{o+2*r}:{o+2*r+1}], v[{o+2*r}:{o+2*r+1}], v[{rp}:{rp+1}] {sel}')
        else:
            t = vT
            for r in range(8): out.append(f'v_mul_f32 v{o+r}, v{o+r}, v{vR+qt}')
        for r in range(4): out.append(f'v_cvt_pk_bf16_f32 v{t+r}, v{o+2*r}, v{o+2*r+1}')
        out.append(f'ds_write_b128 v{vH}, v[{t}:{t+3}] offset:{16384*qt + 1024*ap}')
    return out
def l_check(qt):
    return [f'v_accvgpr_read_b32 v{vR+qt}, a{aL+4*qt}',
            f'v_med3_f32 v124, v{vR+qt}, v125, v126',
            f'v_cmp_neq_f32 vcc, v124, v{vR+qt}',
            f'v_rcp_f32 v{vR+qt}, v{vR+qt}',
            f's_or_b64 {sBAD}, {sBAD}, vcc']

def phase_main(a):
    S = Sched2(2)
    hread = lambda k, qt: f'ds_read_b128 {ar(16*k + 4*qt, 4)}, v{vH + k % 2} offset:{16384*qt + 1024*k}'
    Pq = Proj(S, 'wq', wq_sig, 96, {30: ('a', aX, 16 * 28 - 4), 31: ('a', aX + 16, 16 * 29 - 4)}, 2, hread)
    G = len(S.m)
    sreg = lambda m: vS + 8 * (m % 2)
    preg = lambda m: vP + 4 * (m % 2)
    kreg = lambda u, kt, s: aK + 32 * (u % 2) + 16 * kt + 4 * s
    vreg = lambda u, t: aV + 32 * (u % 2) + 4 * t
    qk_g, pv_g, ms = {}, {}, {}
    def qk(m):
        u, qt = divmod(m, 4); qk_g[m] = len(S.m)
        for kt in range(2):
            for s in range(4):
                S.mfma(m16(vr(sreg(m) + 4 * kt, 4), ar(kreg(u, kt, s), 4), vr(vQ + 16 * s + 4 * qt, 4), s == 0))
    def pv(m):
        u, qt = divmod(m, 4); pv_g[m] = len(S.m)
        S.mfma(m16(ar(aL + 4 * qt, 4), ar(aONE, 4), vr(preg(m), 4), u == 0))
        for t in range(8):
            S.mfma(m16(vr(vO + 32 * qt + 4 * t, 4), ar(vreg(u, t), 4), vr(preg(m), 4), u == 0))
    qk(0)
    for m in range(64):
        ms[m] = len(S.m)
        if m < 63: qk(m + 1)
        if m >= 1: pv(m - 1)
    ms[64] = len(S.m)
    pv(63)
    Gend = len(S.m)
    for m in range(64):
        g0 = ms[m]; full = 0 < m < 63
        for e in range(8):
            g = g0 + 2 * e if full else (g0 + e if m == 63 else g0 + 1 + (7 * e) // 8)
            S.valu(g, f'v_exp_f32 v{sreg(m)+e}, v{sreg(m)+e}', force=True)
            if e % 2: S.valu(g + 1 if (full or e < 7) else g + (1 if m == 0 else 1), f'v_cvt_pk_bf16_f32 v{preg(m)+e//2}, v{sreg(m)+e-1}, v{sreg(m)+e}', force=True)
    S.scal(Pq.step(16) + 3, barrier)
    Pq.reads()
    grp = [(n, 0, wq_dma(n + 6), ('wq', n + 6), 2) for n in range(26)]
    grp.insert(24, (None, 0, kv_dma(0, 'K'), ('kvK', 0), 2))
    grp.append((None, 0, kv_dma(0, 'V'), ('kv', 0), 2))
    Pq.stream(grp)
    def q_conv(c, qt, g):
        for ap in range(2):
            q = vQ + 16 * (2 * c + ap) + 4 * qt; o = Pq.acc(c, 2 * ap, qt)
            for r in range(4): g = S.valu(g, f'v_cvt_pk_bf16_f32 v{q+r}, v{o+2*r}, v{o+2*r+1}', limit=g + (99 if c == 0 else 1))
        for ap in range(2):
            q = vQ + 16 * (2 * c + ap) + 4 * qt
            for r in range(2): g = S.valu(g + 1, f'v_permlane16_swap_b32 v{q+r}, v{q+2+r}', limit=g + (99 if c == 0 else 1))
        return g
    g = Pq.step(16) + 6
    for qt in range(4): g = q_conv(0, qt, g)
    S.chain(Pq.step(26) + 2, [f'v_mov_b32 v{vT+2}, 0x3f803f80'] + [f'v_accvgpr_write_b32 a{aONE+r}, v{vT+2}' for r in range(4)])
    LA = 12
    def kv_bar(t, tag):
        def f(a): a.wait_tag((tag, t)); barrier(a)
        return f
    bar = {}
    for u in range(16):
        t = u // 2; base = kv_buf(t) - L_B + 8192 * (u % 2)
        if u == 0:
            bar[0] = S.scal(G - 34, kv_bar(0, 'kvK'))
            kp = [max(bar[0], G - 34 + 2 * i) for i in range(8)]
            gb = S.scal(G - 14, kv_bar(0, 'kv')); vp = [gb + (5 * i) // 4 for i in range(16)]
        else:
            kp = [ms[4*u-3] + o for o in ((7, 9, 11, 15) if u % 2 else (9, 11, 13, 15))] + [ms[4*u-2] + o for o in (1, 3, 7, 9)]
            vp = [ms[4*u-2] + o for o in (11, 15)] + [ms[m] + o for m in (4*u-1, 4*u) for o in (1, 3, 7, 9, 11, 15)] + [ms[4*u+1] + o for o in (1, 3)]
            if u % 2 == 0: bar[t] = S.scal(kp[0], kv_bar(t, 'kv'), force=True)
        for i in range(8):
            kt, s = divmod(i, 4)
            g = S.mem(kp[i], f'ds_read_b128 {ar(kreg(u,kt,s),4)}, v{vK+s} offset:{base + 4096*kt}')
            assert g <= qk_g[4 * u] + i - 6 and (u == 0 or g == kp[i]), ('K', u, i, g)
        for i in range(16):
            tt, r = divmod(i, 2)
            g = S.mem(vp[i], f'ds_read_b64_tr_b16 {ar(vreg(u,tt)+2*r,2)}, v{vTV + tt % 2} offset:{base + 16384 + 4096*r + 256*(tt//2)}')
            assert g <= pv_g[4 * u] + 1 + tt - 5 and (u == 0 or g == vp[i]), ('V', u, i, g, pv_g[4 * u])
    npre = 6
    def pf_wo(a):
        a(f's_lshl_b32 {sT2}, {sN}, 12'); a(f's_lshl_b32 {sT3}, {sG}, 19'); a(f's_add_u32 {sT2}, {sT2}, {sT3}')
        touch(a, 'WO', vT + 3, 32, sT2)
    g = S.chain(S.gend + 1, collect(w64_offsets, vW4, vT, 1024, 4, lambda p: 8 * p))
    assert g < G - 20, g
    S.chain(Pq.step(22), [f'v_lshlrev_b32 v{vH+1}, 4, v0', f'v_add_u32 v{vH}, {sC}, v{vH+1}', f'v_lshlrev_b32 v{vT+3}, 7, v0'])
    def pre_reads(n, g):
        g = S.scal(g, lambda a: a.wait_tag(('wo', n)))
        for t_ in range(4):
            for r in range(2): g = S.mem(g + 1, w_read(ar(aX + 16 * n + 4 * t_ + 2 * r, 2), wo_sig(n), t_, r), ('pr', n))
        return g
    plan = {1: ((), (0, 1, 2, 3)), 2: ((0,), (4,)), 3: ((1,), (5,)), 4: ((2,), (24,)), 5: ((3,), (25,)), 6: ((4,), (22,)), 7: ((5,), (23,))}
    def pf(n, mul, add, nl):
        def f(a):
            a(f's_mul_i32 {sT2}, {sN}, {mul}'); a(f's_add_u32 {sT2}, {sT2}, {add}')
            touch(a, n, vT + 3, nl, sT2)
        return f
    warm = {1: pf_wo}
    for q in range(6): warm[q + 2] = pf('W1' if (q < 3) != bool(OPT['word']) else 'W2', 112 * 128, 38 * 128 * (q % 3), 38 if q % 3 < 2 else 36)
    for t in range(8):
        g = bar[t] + 1 if t else G + 12
        if t < 7:
            g = S.group(g, kv_dma(t + 1, 'K') + [x for x in kv_dma(t + 1, 'V') if not x.startswith('s_add_u32 {so}')], ('kv', t + 1), stride=2)
            assert g < bar[t + 1] - 25, ('kv', t, g, bar[t + 1])
        if t: S.block(g + 12, warm[t])
        rd, ld = plan.get(t, ((), ()))
        for n in rd: g = pre_reads(n, g + 1)
        for n in ld:
            prev = [m for m in range(min(n, 6)) if wo_sig(m) == wo_sig(n)]
            pre = [lambda a, m=prev[-1]: a.wait_lds_tag(('pr', m))] if prev else []
            g = S.group(g + (5 if prev else 1), pre + wo_dma(n), ('wo', n), stride=2)
        print('interval', t, 'side work ends', g, 'next barrier', bar.get(t + 1))
    for qt in range(4): q_conv(1, qt, Pq.done[1, qt] + 4)
    g = S.chain(ms[12], [f'v_and_b32 v{vT+1}, 0x7f, v{vL4}', f'buffer_load_dword v{vPOLL}, v{vT+1}, {srd("DBG")}, 0 offen offset:128 {SC}'])
    def chk2(a):
        a(f'v_cmp_eq_u32 vcc, 0, v{vPOLL}'); a('s_cbranch_vccnz L_mod2'); a.label('L_mod2j')
    S.block(sorted(b for b in bar.values() if b > g)[1] + 1, chk2)
    if OPT['tlb']:
        def tl(a):
            a(f'v_lshlrev_b32 v{vT}, 20, v0'); a(f's_mul_i32 {sT2}, {sRB}, {OPT["tlb"] - 1}')
            touch(a, 'WS', vT, 32, sT2)
        S.block(ms[57], tl)
    S.chain(ms[50], [f'v_mov_b32 v125, {hx(2.0**-40)}', f'v_mov_b32 v126, {hx(2.0**40)}', f's_mov_b64 {sBAD}, 0'])
    g = S.chain(pv_g[60] + 5, l_check(0))
    ins = o_convert(0, False); gs = max(g + 1, ms[62] + 4)
    prev = gs
    for i, x in enumerate(ins):
        gi = max(prev, gs + (i * (Gend - gs - 1)) // len(ins))
        if x.startswith('ds_'): prev = S.mem(gi + 1, x, force=True)
        else: prev = S.valu(gi, x, force=True)
    for nm, gg in (('q16', Pq.step(16)), ('qend', G), ('a8', ms[32]), ('a16', Gend)):
        S.block(gg, lambda a, nm=nm: stamp(a, nm))
    barrier(a)
    Pq.head(a)
    def drop(item, g):
        ab = OPT['abl']
        if not ab: return False
        if callable(item):
            nm = getattr(item, '__qualname__', '')
            return ('B' in ab and 'kv_bar' in nm and g > G) or ('T' in ab and '.pf.' in nm)
        if g < G: return ('q' in ab and item.startswith('buffer')) or ('r' in ab and item.startswith('ds_read'))
        return ('E' in ab and item.startswith('v_exp')) or ('C' in ab and item.startswith('v_cvt')) or ('R' in ab and item.startswith('ds_read')) \
            or ('D' in ab and item.startswith('buffer')) or ('W' in ab and (srd('WO') in item or (item.startswith('ds_read') and int(item.split('[')[1].split(':')[0]) >= aX)))
    S.emit(a, 'qproj+attn', drop)
    for qt in range(1, 4):
        for x in l_check(qt) + o_convert(qt, True): a(x)
    a(f's_cmp_lg_u64 {sBAD}, 0')
    a.raw('s_cbranch_scc1 L_slow')
    a.label('L_join')
    S = Sched2(2)
    oread = lambda k, qt: f'ds_read_b128 {ar(16*k + 4*qt, 4)}, v{vH+1} offset:{16384*qt + 1024*k}'
    nl = OPT['nlast']
    res = {n: ('a', aX + 16 * n, None) for n in range(6)}
    for n in range(22, 26): res[n] = ('v', 32 + 16 * (n - 22), 16 * (n - 22) + 2)
    for n in range(32 - nl, 32):
        q = n - (32 - nl); res[n] = ('v', 32 + 16 * q, 16 * 28 + 16 * q - 4 if nl == 2 else 16 * 25 + 12 * q - 4)
    Po = Proj(S, 'wo', wo_sig, 96, res, nl, oread)
    gb1 = S.scal(Po.step(16) + 3, barrier)
    Po.reads()
    def p_cvt(c, qt, ap, g, lim):
        o = Po.acc(c, 2 * ap, qt)
        for r in range(4): g = S.valu(g, f'v_cvt_pk_bf16_f32 v{o+r}, v{o+2*r}, v{o+2*r+1}', limit=g + lim)
        return g
    lastst = [0, 0]
    def p_store(c, qt, ap, g):
        o = Po.acc(c, 2 * ap, qt)
        g = max(g, S.scal(max(g - 3, lastst[ap] + 1), f's_add_u32 s{sP+1+ap}, s{sP}, {(8*c + 4*ap + qt) << 20}'))
        lastst[ap] = S.mem(g, f'buffer_store_dwordx4 v[{o}:{o+3}], v{vT}, {srd("WS")}, s{sP+1+ap} offen {SC}', ('p1', c))
        return lastst[ap]
    for q in range(8): gs = p_store(0, q // 2, q % 2, p_cvt(0, q // 2, q % 2, Po.step(16) + 6 + OPT['stsp'] * q, 99) + 1)
    grp = [(None, 0, wo_dma(6), ('wo', 6), 2), (None, 0, wo_dma(7), ('wo', 7), 2)]
    grp += [(n, 0, wo_dma(n - 14), ('wo', n - 14), 2) for n in range(22, 26)]
    grp += [(n, 0, wo_dma(n + 6), ('wo', n + 6), 2) for n in range(6, 16)]
    grp += [(n, Po.step(16) + OPT['wpace'] * (n - 16), wo_dma(n + 10), ('wo', n + 10), OPT['wpace'] // 4 - 1) for n in range(16, 22)]
    grp += [(26, 0, red_dma(), 'rd', 0)]
    grp += [(None, 0, w1_dma(0, i), ('w1', 0), OPT['w1st']) for i in range(4)]
    Po.stream(grp)
    print('c0 stores end at step', (gs - Po.g0) / 16, 'side DMA ends', (S.gend - Po.g0) / 16)
    g = S.chain(2, collect(tail_setup))
    assert g < Po.step(16), g
    S.block(Po.step(16), lambda a: flag_base(a, sWV))
    S.block(gs + OPT['siga'], lambda a: wave_signal(a, ('p1', 0), 1, 8))
    S.block(max(Po.rel[n] for n in range(26, 32)), barrier)
    ge = Po.done[1, 0] + 4
    S.mem(ge - OPT['polla'], f'buffer_load_dword v{vPOLL}, v{vT+1}, {srd("WS")}, {sWV} offen {SC}', force=True)
    assert gs + OPT['siga'] < ge
    def early(a):
        lab = a.newlabel('early')
        a(f'v_cmp_gt_u32 vcc, 1, v{vPOLL}'); a(f's_cbranch_vccnz {lab}')
        for x in part_loads(0): a.raw(x)
        a.raw(f's_mov_b32 {sLD}, 1')
        a.label(lab)
    S.block(ge, early)
    for qt in range(4):
        g = Po.done[1, qt] + 4
        for ap in range(2): g = p_store(1, qt, ap, p_cvt(1, qt, ap, g, 1) + 1)
    for nm, gg in (('wo0', 1), ('wo16', Po.step(16)), ('wo24', Po.step(24)), ('wo32', len(S.m))):
        S.block(gg, lambda a, nm=nm: stamp(a, nm))
    barrier(a)
    Po.head(a)
    def drop2(item, g):
        ab = OPT['abl']
        if callable(item): return False
        if 'p' in ab and item.startswith('buffer_store'):
            a(item.replace(' sc1', ''), ('p1', 0 if g < Po.step(29) else 1)); return True
        return ('1' in ab and srd('W1') in item) or ('s' in ab and item.startswith('buffer_store') and g < Po.step(29))
    S.emit(a, 'wo', drop2)

def slow_path(a):
    a.label('L_slow')
    a.fence()
    vM = vT; vAD = 124; vF = 120; vTR = 125
    a(f's_sub_u32 {sT2}, {sD}, {sC}')
    lane_fields(a, vAD, [(0, 4, 256), (5, 1, 16), (4, 1, 32)], vTR)
    a(f's_sub_u32 {sT0}, {sC}, {L_B}')
    for b in range(2): a(f'v_add_u32 v{vTR+b}, {sT0}, v{vTV+b}')
    a('v_mov_b32 v120, 0')
    for qt in range(4): a(f'v_mov_b32 v{vM+qt}, 0xff800000')
    for r in range(16): a(f'v_accvgpr_write_b32 a{aL+r}, v120')
    for r in range(128): a(f'v_mov_b32 v{vO+r}, 0')
    a('s_mov_b32 s98, 0')
    loop = a.newlabel('slowloop')
    a.fence()
    a.label(loop)
    for hf in range(2):
        a(f's_add_u32 m0, {sC}, {16384*hf}')
        a(f's_add_u32 {sT0}, {sT2}, {4096*hf}')
        for p in range(4): a(dma(sT0, vVD + p % 2, 'V', 1024 * p))
    for kt in range(2):
        a(f's_add_u32 {sT0}, {sT2}, {4096*kt}')
        for s in range(4): a(f'buffer_load_dwordx4 {ar(aK+16*kt+4*s,4)}, v{vAD}, {srd("K")}, {sT0} offen offset:{64*s}')
    a.wait_all()
    for tt in range(8):
        for r in range(2):
            a(f'ds_read_b64_tr_b16 {ar(aV+4*tt+2*r,2)}, v{vTR + tt % 2} offset:{16384*r + 256*(tt//2)}')
    for qt in range(4):
        b = vS; t = vF
        for kt in range(2):
            for s in range(4): a(m16(vr(b + 4 * kt, 4), ar(aK + 16 * kt + 4 * s, 4), vr(vQ + 16 * s + 4 * qt, 4), s == 0))
        a(f'v_max3_f32 v{t}, v{b}, v{b+1}, v{vM+qt}')
        for r in range(2, 8, 2): a(f'v_max3_f32 v{t}, v{b+r}, v{b+r+1}, v{t}')
        for sw in ('16', '32'):
            a(f'v_mov_b32 v{t+1}, v{t}'); a(f'v_permlane{sw}_swap_b32 v{t}, v{t+1}'); a(f'v_max_f32 v{t}, v{t}, v{t+1}')
        a(f'v_sub_f32 v{t+1}, v{vM+qt}, v{t}')
        a(f'v_exp_f32 v{t+1}, v{t+1}')
        a(f'v_mov_b32 v{vM+qt}, v{t}')
        a(f'v_accvgpr_read_b32 v{t+2}, a{aL+4*qt}')
        a(f'v_mul_f32 v{t+2}, v{t+2}, v{t+1}')
        for r in range(4): a(f'v_accvgpr_write_b32 a{aL+4*qt+r}, v{t+2}')
        for r in range(32): a(f'v_mul_f32 v{vO+32*qt+r}, v{vO+32*qt+r}, v{t+1}')
        for r in range(8): a(f'v_sub_f32 v{b+r}, v{b+r}, v{t}')
        for r in range(8): a(f'v_exp_f32 v{b+r}, v{b+r}')
        for r in range(4): a(f'v_cvt_pk_bf16_f32 v{vP+r}, v{b+2*r}, v{b+2*r+1}')
        a(m16(ar(aL + 4 * qt, 4), ar(aONE, 4), vr(vP, 4), False))
        for tt in range(8): a(m16(vr(vO + 32 * qt + 4 * tt, 4), ar(aV + 4 * tt, 4), vr(vP, 4), False))
    a(f's_add_u32 {sT2}, {sT2}, 8192')
    a.fence()
    a('s_add_u32 s98, s98, 1')
    a('s_cmp_lt_u32 s98, 16')
    a.raw(f's_cbranch_scc1 {loop}')
    for qt in range(4):
        a(f'v_accvgpr_read_b32 v{vR+qt}, a{aL+4*qt}'); a(f'v_rcp_f32 v{vR+qt}, v{vR+qt}')
    for qt in range(4):
        for x in o_convert(qt, True): a(x)
    a.fence()
    a.raw('s_branch L_join')

vW1, vL16, vRX, vRM, vPA = 6, 10, 11, 20, 21
def tail_setup(a):
    t = vT + 2
    lane_fields(a, vT, [(3, 1, 16384), (4, 2, 128), (0, 3, 16)], t)
    lane_fields(a, vPA, [(5, 1, 1 << 22), (0, 5, 16)], t)
    a(f's_lshl_b32 {sT2}, {sRB}, 15'); a(f's_lshl_b32 {sT0}, {sW}, 9'); a(f's_add_u32 {sT2}, {sT2}, {sT0}'); a(f's_add_u32 {sT2}, {sT2}, {WS_P1}')
    a(f's_lshl_b32 s{sP}, {sG}, 11'); a(f's_add_u32 s{sP}, s{sP}, {sT2}')
    a(f's_lshr_b32 {sRD}, {sG}, 1'); a(f's_lshl_b32 {sRD}, {sRD}, 20'); a(f's_add_u32 {sRD}, {sRD}, {sT2}')
    a(f's_and_b32 {sT0}, {sG}, 1'); a(f's_lshl_b32 {sT0}, {sT0}, 14'); a(f's_add_u32 {sRD}, {sRD}, {sT0}')
    a(f's_mov_b32 {sLD}, 0')
    a(f'v_and_b32 v{vT+1}, 7, v0'); a(f'v_max_u32 v{vT+1}, 1, v{vT+1}'); a(f'v_xor_b32 v{vT+1}, {sG}, v{vT+1}'); a(f'v_lshlrev_b32 v{vT+1}, 2, v{vT+1}')
    a(f'v_lshlrev_b32 v{vL16}, 4, v0')
    a(f'v_lshlrev_b32 v{vSIG}, 9, v0')
    a(f's_lshl_b32 {sT2}, {sW}, 7'); a(f's_add_u32 {sT2}, {sT2}, {F_A}')
    a(f's_lshl_b32 {sSIG}, {sRB}, 12'); a(f's_lshl_b32 {sT0}, {sG}, 2'); a(f's_add_u32 {sSIG}, {sSIG}, {sT0}'); a(f's_add_u32 {sSIG}, {sSIG}, {sT2}')
    a(f's_lshl_b32 {sWV}, s2, 9'); a(f's_add_u32 {sWV}, {sWV}, {sT2}'); a(f's_lshl_b32 {sWAIT}, s2, 7'); a(f's_add_u32 {sWAIT}, {sWAIT}, {F_B}')
    a(f's_mul_i32 {sRH}, {sRB}, 37'); a(f's_lshr_b32 {sRH}, {sRH}, 9')
    a(f's_mul_i32 {sFS}, {sRH}, 14'); a(f's_sub_u32 {sFS}, {sRB}, {sFS}')
    a(f's_lshl_b32 {sW1}, {sFS}, 8'); a(f's_mul_i32 {sT0}, {sW}, {32*3584}'); a(f's_add_u32 {sW1}, {sW1}, {sT0}')
    w64_offsets(a, vW1, t, 3584, 4, lambda p: 8 * p)
    a(f's_and_b32 {sF}, {sRB}, 7'); a(f's_lshr_b32 {sE}, {sRB}, 3'); a(f's_lshl_b32 {sT0}, {sG}, 2'); a(f's_add_u32 {sE}, {sE}, {sT0}')
    a(f's_mul_i32 {sH}, {sW}, {448*1024}'); a(f's_lshl_b32 {sT0}, {sF}, 7'); a(f's_add_u32 {sH}, {sH}, {sT0}')
    lane_fields(a, vRX, [(4, 2, 1024), (0, 4, 16)], t)
    lane_fields(a, vRM, [(5, 1, 2048), (0, 5, 16)], t)
    a(f's_and_b32 {sT0}, {sW}, 1'); a(f's_lshl_b32 {sT0}, {sT0}, 15'); a(f's_sub_u32 {sT0}, {sT0}, {sC}')
    for b in range(2):
        a(f'v_subrev_u32 v{vTRC+b}, 0x10000, v{vTRA+b}'); a(f'v_add_u32 v{vTW1+b}, {sT0}, v{vTRC+b}')
def w1_dma(b, i, so='{so}'):
    return [f's_add_u32 m0, {sC}, {65536*b + 16384*i}', f's_add_u32 {so}, {sW1}, {128*3584*(2*b + i%2) + 128*(i//2)}'] + \
           [dma(so, vW1 + p, 'W1', 1024 * p) for p in range(4)]
def red_dma():
    return [f's_add_u32 m0, {sC}, {slot_lds(4)}', f's_lshl_b32 {sT1}, s2, 13', f's_lshl_b32 {sT0}, {sW}, 8', f's_add_u32 {sT1}, {sT1}, {sT0}',
            dma(sT1, vRX, 'X', 0), f's_add_u32 {sT1}, {sT1}, 3072', dma(sT1, vRX, 'X', 1024),
            f's_lshl_b32 {sT1}, {sW}, 9', f's_add_u32 {sT1}, {sT1}, {WS_MOD + 4096 - 2048}', dma(sT1, vRM, 'WS', 2048, SC),
            f's_add_u32 {sT1}, {sT1}, 3072', dma(sT1, vRM, 'WS', 3072, SC)]
PL = 128
def part_loads(c):
    out = []; fl = ['sc1', 'sc1 nt', 'sc0 sc1', 'sc0 sc1 nt'][OPT['pfl']]
    for g in range(8):
        if g % 2 == 0: out.append(f's_add_u32 {sT0}, {sRD}, {(c << 23) + 2048*g}')
        out.append(f'buffer_load_dwordx4 v[{PL+32*c+4*g}:{PL+32*c+4*g+3}], v{vPA}, {srd("WS")}, {sT0} offen offset:{2048*(g%2)} {fl}')
    return out

RX, RM, ACC, T = 64, 192, 80, 96
def red_operands(a):
    a.wait_tag('rd')
    lane_fields(a, 120, [(0, 3, 256), (5, 1, 64), (3, 2, 8)], 121)
    lane_fields(a, 121, [(5, 1, 128), (3, 2, 16)], 122)
    a(f's_add_u32 {sT0}, {sC}, {slot_lds(4)}')
    a(f'v_add_u32 v120, {sT0}, v120'); a(f'v_add_u32 v121, {sT0}, v121')
    for c in range(2):
        for hf in range(2): a(f'ds_read_b64 v[{T+4*c+2*hf}:{T+4*c+2*hf+1}], v120 offset:{128*c + 32*hf}')
    for vec in range(3):
        for c in range(2):
            for hf in range(2):
                b = RM + 16 * vec + 8 * c + 4 * hf
                a(f'ds_read_b128 v[{b}:{b+3}], v121 offset:{2048 + 512*vec + 256*c + 64*hf}')
    for r in range(8):
        a(f'v_lshlrev_b32 v{RX+2*r}, 16, v{T+r}'); a(f'v_and_b32 v{RX+2*r+1}, {sMASK}, v{T+r}')
    a('v_mov_b32 v122, 0x3f80'); a('v_mov_b32 v123, 0x3f800000')
def red_sum(a, c):
    P = PL + 32 * c; A = ACC + 8 * c
    for r in range(4):
        a(f'v_lshlrev_b32 v{A+2*r}, 16, v{P+r}'); a(f'v_and_b32 v{A+2*r+1}, {sMASK}, v{P+r}')
    for g in range(1, 8):
        for r in range(4):
            a(f'v_dot2c_f32_bf16 v{A+2*r}, v{P+4*g+r}, v122'); a(f'v_dot2c_f32_bf16 v{A+2*r+1}, v{P+4*g+r}, v123')
    for r in range(4 * c, 4 * c + 4):
        a(f'v_pk_fma_f32 v[{ACC+2*r}:{ACC+2*r+1}], v[{ACC+2*r}:{ACC+2*r+1}], v[{RM+2*r}:{RM+1+2*r}], v[{RX+2*r}:{RX+2*r+1}]')

def late_sum(a, loads):
    l0, l1 = a.newlabel('ls'), a.newlabel('lsj')
    dm = list(a.vm)
    a(f's_cmp_lg_u32 {sLD}, 0'); a.raw(f's_cbranch_scc1 {l0}')
    a.vm = dm + loads; red_sum(a, 1); a.raw(f's_branch {l1}')
    a.label(l0)
    a.vm = loads + dm; red_sum(a, 1)
    a.label(l1)

def allred8(a, r, t):
    a(f'v_add_f32_dpp v{r}, v{r}, v{r} row_ror:8 row_mask:0xf bank_mask:0xf')
    a(f'v_mov_b32 v{t}, v{r}'); a(f'v_permlane16_swap_b32 v{r}, v{t}'); a(f'v_add_f32 v{r}, v{r}, v{t}')
    a(f'v_mov_b32 v{t}, v{r}'); a(f'v_permlane32_swap_b32 v{r}, v{t}'); a(f'v_add_f32 v{r}, v{r}, v{t}')

def red_addr(a):
    lane_fields(a, 125, [(0, 3, 32)], 124, add=slot_lds(5))
    a(f's_lshl_b32 {sT1}, {sW}, 3'); a(f'v_add_u32 v124, {sT1}, v125')
    lane_fields(a, 126, [(3, 3, 256), (0, 3, 16)], 127)
    a(f's_lshr_b32 s{sP}, s2, 1'); a(f's_lshl_b32 s{sP}, s{sP}, 14')
    a(f's_and_b32 {sT1}, s2, 1'); a(f's_lshl_b32 {sT1}, {sT1}, 7'); a(f's_add_u32 s{sP}, s{sP}, {sT1}')
    a(f's_add_u32 s{sP}, s{sP}, {sC}'); a(f's_add_u32 s{sP}, s{sP}, {WS_H2}')
    a(f's_lshl_b32 s{sP+2}, s2, 13'); a(f's_lshl_b32 {sT1}, {sW}, 11'); a(f's_add_u32 s{sP+2}, s{sP+2}, {sT1}'); a(f's_add_u32 s{sP+2}, s{sP+2}, {WS_X1}')
    a(f'v_lshlrev_b32 v{vSIG}, 10, v0')
    a(f's_bfe_u32 {sSIG}, s2, 0x10004'); a(f's_mul_i32 {sSIG}, {sSIG}, {14*8}'); a(f's_lshr_b32 {sT0}, s2, 5'); a(f's_add_u32 {sSIG}, {sSIG}, {sT0}')
    a(f's_lshl_b32 {sSIG}, {sSIG}, 7'); a(f's_and_b32 {sT0}, s2, 15'); a(f's_lshl_b32 {sT0}, {sT0}, 2'); a(f's_add_u32 {sSIG}, {sSIG}, {sT0}')
    a(f's_add_u32 {sSIG}, {sSIG}, {F_B}')

def red_ln(a):
    X1 = 112
    for r in range(4): a(f'v_pk_add_f32 v[{T+2*r}:{T+2*r+1}], v[{ACC+2*r}:{ACC+2*r+1}], v[{ACC+8+2*r}:{ACC+9+2*r}]')
    for r in range(2): a(f'v_pk_add_f32 v[{T+2*r}:{T+2*r+1}], v[{T+2*r}:{T+2*r+1}], v[{T+4+2*r}:{T+5+2*r}]')
    a(f'v_pk_add_f32 v[{T}:{T+1}], v[{T}:{T+1}], v[{T+2}:{T+3}]')
    a(f'v_add_f32 v{T}, v{T}, v{T+1}')
    for r in range(8): a(f'v_cvt_pk_bf16_f32 v{X1+r}, v{ACC+2*r}, v{ACC+2*r+1}')
    allred8(a, T, T + 1)
    a(f'v_mul_f32 v{T}, {hx(-1.0/128)}, v{T}')
    for r in range(8): a(f'v_pk_add_f32 v[{ACC+2*r}:{ACC+2*r+1}], v[{ACC+2*r}:{ACC+2*r+1}], v[{T}:{T+1}] op_sel_hi:[1,0]')
    for h in range(2): a(f'v_pk_mul_f32 v[{T+2+2*h}:{T+3+2*h}], v[{ACC+2*h}:{ACC+2*h+1}], v[{ACC+2*h}:{ACC+2*h+1}]')
    for r in range(2, 8):
        h = r % 2
        a(f'v_pk_fma_f32 v[{T+2+2*h}:{T+3+2*h}], v[{ACC+2*r}:{ACC+2*r+1}], v[{ACC+2*r}:{ACC+2*r+1}], v[{T+2+2*h}:{T+3+2*h}]')
    a(f'v_pk_add_f32 v[{T+2}:{T+3}], v[{T+2}:{T+3}], v[{T+4}:{T+5}]')
    a(f'v_add_f32 v{T+1}, v{T+2}, v{T+3}')
    allred8(a, T + 1, T + 2)
    a(f'ds_write_b64 v124, v[{T}:{T+1}]')
    for i in range(2): a(f'buffer_store_dwordx4 v[{X1+4*i}:{X1+4*i+3}], v{vL16}, {srd("WS")}, s{sP+2} offen offset:{1024*i} {SC}', 'x1')
    barrier(a)
    a(f'ds_read_b128 v[{T+4}:{T+7}], v125'); a(f'ds_read_b128 v[{T+8}:{T+11}], v125 offset:16')
    a(f'v_pk_add_f32 v[{T+12}:{T+13}], v[{T+4}:{T+5}], v[{T+6}:{T+7}]')
    a(f'v_pk_add_f32 v[{T+14}:{T+15}], v[{T+8}:{T+9}], v[{T+10}:{T+11}]')
    a(f'v_pk_add_f32 v[{T+12}:{T+13}], v[{T+12}:{T+13}], v[{T+14}:{T+15}]')
    a(f'v_mul_f32 v{T+12}, {hx(0.25)}, v{T+12}')
    for w in range(4): a(f'v_sub_f32 v{T+4+2*w}, v{T+4+2*w}, v{T+12}')
    a(f'v_mul_f32 v{T+14}, v{T+4}, v{T+4}')
    for w in range(1, 4): a(f'v_fmac_f32 v{T+14}, v{T+4+2*w}, v{T+4+2*w}')
    a(f'v_fmamk_f32 v{T+13}, v{T+14}, {hx(128.0)}, v{T+13}')
    a(f'v_mov_b32 v{T+14}, {hx(1e-5)}')
    a(f'v_fmamk_f32 v{T+13}, v{T+13}, {hx(1.0/512)}, v{T+14}')
    a(f'v_rsq_f32 v{T+13}, v{T+13}')
    a(f'v_sub_f32 v{T+12}, v{T+12}, v{T}')
    a(f'v_mul_f32 v{T+12}, v{T+12}, v{T+13}')
    for i in range(2):
        for r in range(4 * i, 4 * i + 4):
            a(f'v_pk_fma_f32 v[{ACC+2*r}:{ACC+2*r+1}], v[{ACC+2*r}:{ACC+2*r+1}], v[{T+12}:{T+13}], v[{T+12}:{T+13}] op_sel:[0,1,0] op_sel_hi:[1,1,0]')
        for r in range(4 * i, 4 * i + 4):
            a(f'v_pk_fma_f32 v[{ACC+2*r}:{ACC+2*r+1}], v[{ACC+2*r}:{ACC+2*r+1}], v[{RM+32+2*r}:{RM+33+2*r}], v[{RM+16+2*r}:{RM+17+2*r}]')
        for r in range(4 * i, 4 * i + 4): a(f'v_cvt_pk_bf16_f32 v{T+r}, v{ACC+2*r}, v{ACC+2*r+1}')
        a(f'buffer_store_dwordx4 v[{T+4*i}:{T+4*i+3}], v126, {srd("WS")}, s{sP} offen offset:{2048*i} {SC}', 'h2')

def w1_reads(b):
    return [f'ds_read_b64_tr_b16 {ar(128*b + 16*k + 4*t + 2*r, 2)}, v{vTW1 + t % 2} offset:{4096*k + 2048*r + 256*(t//2)}'
            for k in range(8) for t in range(4) for r in range(2)]
class Weave:
    def __init__(self, a, extra, every): self.a, self.extra, self.every, self.n = a, list(extra), every, 0
    def __getattr__(self, k): return getattr(self.a, k)
    def pop(self):
        while self.extra:
            x, tag = self.extra.pop(0); self.a(x, tag)
            if x.startswith('buffer'): break
    def __call__(self, t, tag=None):
        self.a(t, tag); self.n += 1
        if self.n % self.every == 0: self.pop()
    def flush(self):
        while self.extra: self.pop()
W2_LEFT = []
def w2_sig(k): return k - 4 if k < 10 else k - 14
def w2_dma(k, so='{so}'):
    return [f's_add_u32 m0, {sC}, {slot_lds(w2_sig(k))}', f's_add_u32 {so}, {sH}, {32*1024*k}'] + \
           [dma(so, vW4 + p, 'W2', 1024 * p) for p in range(4)]
def w2_reg(k, t): return ('v', 32 + 16 * k + 4 * t) if k < 4 else ('a', 16 * (k - 4) + 4 * t)
def w2_reads(k):
    return [w_read(vr(w2_reg(k, t)[1] + 2 * r, 2, w2_reg(k, t)[0]), w2_sig(k), t, r) for t in range(4) for r in range(2)]
NB2 = 16
def b2_reg(i, k): return 192 + 4 * ((14 * i + k) % NB2)
def b2_load(i, k):
    out = [f's_add_u32 {sT0}, {sH1}, {57344*i + 4096*(k//4)}'] if k % 4 == 0 else []
    return out + [f'buffer_load_dwordx4 {vr(b2_reg(i,k),4)}, v{vL16}, {srd("WS")}, {sT0} offen offset:{1024*(k%4)} {SC}']
def h1_touch(a, i):
    a(f's_mul_i32 {sT2}, {sF}, {14*128}'); a(f's_add_u32 {sT2}, {sT2}, {sH1}'); a(f's_add_u32 {sT2}, {sT2}, {57344*i}')
    touch(a, 'WS', vT + 2, 14, sT2, vT + 3)
PF2 = 10
def g2_head(a):
    h1_touch(a, 0)
    for k in range(PF2):
        for x in b2_load(0, k): a(x)

def mlp_addr(a):
    a(f'v_lshlrev_b32 v{vT+2}, 7, v0'); a(f'v_min_u32 v{vT+1}, {6*128}, v{vT+2}')
    a(f's_mul_i32 {sT0}, {sW}, {7*128}'); a(f's_lshl_b32 {sWV}, {sE}, 12'); a(f's_add_u32 {sWV}, {sWV}, {sT0}'); a(f's_add_u32 {sWV}, {sWV}, {F_C}')
    a(f's_mul_i32 {sH1}, {sE}, {4*57344}'); a(f's_mul_i32 {sT0}, {sW}, {14*1024}'); a(f's_add_u32 {sH1}, {sH1}, {sT0}'); a(f's_add_u32 {sH1}, {sH1}, {WS_H1}')
    a(f's_lshr_b32 {sT1}, {sW}, 1'); a(f's_lshl1_add_u32 {sT2}, {sRH}, {sT1}'); a(f's_lshl2_add_u32 {sR32}, {sG}, {sT2}')
    a(f's_and_b32 {sT3}, {sW}, 1')
    a(f's_lshl_b32 {sH2}, {sR32}, 16'); a(f's_lshl_b32 {sT0}, {sT3}, 13'); a(f's_add_u32 {sH2}, {sH2}, {sT0}'); a(f's_add_u32 {sH2}, {sH2}, {WS_H2}')
    a(f's_lshl1_add_u32 {sT3}, {sFS}, {sT3}')
    a(f's_mul_i32 s{sP}, {sR32}, {4*57344}'); a(f's_lshl_b32 {sT0}, {sT3}, 11'); a(f's_add_u32 s{sP}, s{sP}, {sT0}'); a(f's_add_u32 s{sP}, s{sP}, {WS_H1}')
    for q in range(1, 4): a(f's_add_u32 s{sP+q}, s{sP}, {57344*q}')
    a(f's_lshl_b32 {sSIG}, {sR32}, 12'); a(f's_lshl_b32 {sT0}, {sT3}, 7'); a(f's_add_u32 {sSIG}, {sSIG}, {sT0}'); a(f's_add_u32 {sSIG}, {sSIG}, {F_C}')
    a(f's_lshl_b32 {sD}, {sW}, 13')
    a(f's_lshl_b32 {sT1}, {sT1}, 14'); a(f'v_add_u32 v{vH}, {sT1}, v{vL16}')

vPK = 176
def silu(i):
    o = 128 + 16 * (i % 2); t = 160; ops = []
    for h in range(8):
        m = []
        for r in (2 * h, 2 * h + 1):
            n = len(ops)
            ops += [(f'v_exp_f32 v{t+r}, v{o+r}', []), (f'v_add_f32 v{t+r}, 1.0, v{t+r}', [n]), (f'v_rcp_f32 v{t+r}, v{t+r}', [n + 1]),
                    (f'v_mul_f32 v{t+r}, v{o+r}, v{t+r}', [n + 2])]
            m.append(n + 3)
        ops.append((f'v_cvt_pk_bf16_f32 v{vPK+8*(i%2)+h}, v{t+2*h}, v{t+2*h+1}', m))
    return ops
def h1_store(i, ap):
    o = vPK + 8 * (i % 2) + 4 * ap
    return f'buffer_store_dwordx4 v[{o}:{o+3}], v{vL16}, {srd("WS")}, s{sP+i} offen offset:{1024*ap} {SC}'

def phase_g1(a):
    def h2_dma(i, hf, so='{so}'):
        return [f's_add_u32 m0, {sD}, {32768*(i%2) + 4096*hf}', f's_add_u32 {so}, {sH2}, {16384*i + 4096*hf}'] + \
               [dma(so, vL16, 'WS', 1024 * p, SC) for p in range(4)]
    a(f's_lshl2_add_u32 {sT1}, {sFS}, {sW}'); a(f's_mul_i32 {sT1}, {sT1}, {19*128}')
    a(f's_min_u32 {sT1}, {sT1}, {131072 - 19*128}'); a(f's_andn2_b32 {sT2}, {sH2}, 0x1ffff'); a(f's_add_u32 {sT2}, {sT1}, {sT2}')
    flag_check(a, 'B', 1)
    barrier(a); stamp(a, 'syncB')
    for hf in range(2):
        for x in h2_dma(0, hf, sT1): a(x, ('h2', 0))
    touch(a, 'WS', vT + 2, 19, sT2, vT + 3)
    flag_base(a, sWV)
    S = Sched2(2)
    breg = lambda i, k: 96 + 4 * (k % 8)
    bread = lambda i, k: f'ds_read_b128 {vr(breg(i,k),4)}, v{vH} offset:{32768*(i%2) + 1024*k}'
    for i in range(4):
        for k in range(16):
            for t in range(4): S.mfma(m16(vr(128 + 16 * (i % 2) + 4 * t, 4), ar(16 * k + 4 * t, 4), vr(breg(i, k), 4), k == 0))
    LA = 28; bar = {}
    a.wait_tag(('h2', 0)); barrier(a)
    for i in range(4):
        if i: bar[i] = S.scal(64 * i - (22 if i == 2 else 12), lambda a, i=i: (a.wait_tag(('h2', i)), barrier(a)), force=True)
        g = 0
        for k in range(16):
            g = max(64 * i + 4 * k - LA, bar.get(i, -99), g + 2 if i else -99)
            if g <= 0: a(bread(i, k))
            else: g = S.mem(g, bread(i, k))
            assert g <= 64 * i + 4 * k - 8 or g <= 0
    left = list(W2_LEFT)
    for i in (2, 3):
        for ap in range(2): S.mem(64 * i + 1 + ap, h1_store(i - 2, ap), ('h1', i - 2))
        S.block(64 * i + OPT['sigc'], lambda a, i=i: wave_signal(a, ('h1', i - 2), i - 1, 1))
    for i in range(4):
        g = bar.get(i, 0) + 1
        if i < 3:
            for hf in range(2): g = S.group(g, h2_dma(i + 1, hf), ('h2', i + 1), stride=3)
        else:
            for k in (10, 11): g = S.group(g, w2_dma(k), ('w2', k), stride=3)
        ge = g
        for _ in range(-(-len(left) // (3 - i)) if i < 3 else 0):
            k = left.pop(0); g = S.group(g + 1, w2_dma(k), ('w2', k), stride=2 if i == 0 else 3)
        print('gemm1 stage', i, 'DMA ends', ge - 64 * i, g - 64 * i)
    assert not left
    S.block(192 + OPT['pollc'], lambda a: (barrier(a), [a(x) for x in flag_loads('C')]))
    for i in range(1, 4):
        at = fill(S, silu(i - 1), 64 * i + 3, 64 * i + 63)
        assert max(at.values()) <= 64 * i + 64, max(at.values())
    for nm, gg in (('g0', 1), ('t_g50', 50), ('t_g64', 64), ('g128', 128), ('t_g192', 192), ('g256', 256)): S.block(gg, lambda a, nm=nm: stamp(a, nm))
    S.emit(a, 'gemm1')
    for ap in range(2): a(h1_store(2, ap), ('h1', 2))
    flag_check(a, 'C', 1); stamp(a, 'syncC')
    g2_head(a)
    a.wait_tag(('w2', 11))

vRW, vRR, vXR, vOA, vGB, vRD = 6, 11, 20, 21, 96, 100
def g2_addr(a):
    a(f'v_lshrrev_b32 v{vT}, 4, v0'); a(f'v_and_b32 v{vH+1}, 15, v0')
    a(f'v_xor_b32 v{vRW}, v{vT}, v{vH+1}'); a(f'v_lshlrev_b32 v{vRW}, 4, v{vRW}'); a(f'v_lshl_add_u32 v{vRW}, v{vT}, 8, v{vRW}')
    a(f's_add_u32 {sT1}, {sC}, {L_A}'); a(f'v_add_u32 v{vRW}, {sT1}, v{vRW}')
    for t in range(1, 4): a(f'v_xor_b32 v{vRW+t}, {64*t}, v{vRW}')
    a(f's_lshl_b32 {sT1}, {sW}, 2'); a(f'v_add_u32 v{vT}, {sT1}, v{vT}')
    a(f'v_xor_b32 v{vRR}, v{vT}, v{vH+1}'); a(f'v_lshlrev_b32 v{vRR}, 4, v{vRR}'); a(f'v_lshl_add_u32 v{vRR}, v{vH+1}, 8, v{vRR}')
    a(f'v_add_u32 v{vRR}, {L_A}, v{vRR}')
    a(f'v_lshlrev_b32 v{vOA}, 3, v{vH+1}'); a(f'v_lshl_add_u32 v{vOA}, v{vT}, 10, v{vOA}')
    lane_fields(a, vXR, [(3, 1, 512), (0, 2, 128), (2, 1, 8), (4, 2, 16)], vT, add=slot_lds(4))
    a(f's_lshr_b32 {sT1}, {sW}, 1'); a(f's_lshl_b32 {sT1}, {sT1}, 10'); a(f's_and_b32 {sT2}, {sW}, 1'); a(f's_lshl_b32 {sT2}, {sT2}, 6')
    a(f's_add_u32 {sT1}, {sT1}, {sT2}'); a(f'v_add_u32 v{vXR}, {sT1}, v{vXR}')
    a(f'v_lshlrev_b32 v{vH+1}, 4, v{vH+1}')
    a(f's_lshl_b32 {sA}, {sE}, 16'); a(f's_lshl_b32 {sT1}, {sF}, 7'); a(f's_add_u32 {sB}, {sA}, {sT1}')
    a(f's_lshl_b32 {sT1}, {sW}, 14'); a(f's_add_u32 {sA}, {sA}, {sT1}'); a(f's_lshl_b32 {sT1}, {sF}, 10'); a(f's_add_u32 {sA}, {sA}, {sT1}')
    a(f's_add_u32 {sA}, {sA}, {WS_X1}')
    a(f's_lshl_b32 {sLD}, {sF}, 8'); a(f's_add_u32 {sLD}, {sLD}, {WS_MOD + 2048*5}')

def phase_g2(a):
    for x in flag_loads('C'): a(x)
    for k in range(4, 12):
        for x in w2_reads(k): a(x, ('ar', k))
    for k in (12, 13):
        for x in w2_dma(k, sT1): a(x, ('w2', k))
    S = Sched2(2)
    acc = lambda i, t: 128 + 16 * (i % 2) + 4 * t
    for i in range(4):
        for k in range(14):
            for t in range(4):
                kind, r = w2_reg(k, t)
                S.mfma(m16(vr(acc(i, t), 4), vr(r, 4, kind), vr(b2_reg(i, k), 4), k == 0))
    g = 1
    for n in range(PF2, 56):
        i, k = divmod(n, 14); g = max(g, 4 * (n - PF2) + 2)
        if k == 0:
            S.block(g - 1, lambda a, i=i: stamp(a, f't_pre{i}'))
            S.block(g - 1, lambda a, i=i: (flag_check(a, 'C', i + 1), stamp(a, f't_chk{i}'), h1_touch(a, i)))
        g = S.chain(g, b2_load(i, k))
    S.block(1, lambda a: wave_signal(a, ('h1', 2), 3, 1))
    g = 20
    for k in range(12, 14):
        g = S.scal(g, lambda a, k=k: a.wait_tag(('w2', k)))
        for x in w2_reads(k): g = S.mem(g, x, ('ar', k))
        assert g <= 4 * k - 3, (k, g)
    S.block(g + 6, lambda a: (a.wait_all(vm=False), [a(x) for x in flag_loads('C')]))
    g = S.group(g + 1, [f's_add_u32 m0, {sC}, {slot_lds(4)}', dma(sA, vL16, 'WS', 0, SC), f's_add_u32 {sA}, {sA}, {8192-1024}', dma(sA, vL16, 'WS', 1024, SC)], 'xe')
    S.mem(g + 1, f'buffer_load_dwordx4 v[{vGB}:{vGB+3}], v{vH+1}, {srd("WS")}, {sLD} offen {SC}')
    at = fill(S, silu(3), 1, OPT['silu3'])
    gl = max(at.values())
    assert gl < 55
    for ap in range(2): gl = S.mem(gl + 1, h1_store(3, ap), ('h1', 3))
    S.block(gl + OPT['sig4'], lambda a: wave_signal(a, ('h1', 3), 4, 1))
    def wr(i): return [f'ds_write_b128 v{vRW+t}, v[{acc(i,t)}:{acc(i,t)+3}] offset:{16384*i + 1024*t}' for t in range(4)]
    def rd(i): return [f'ds_read_b128 v[{vRD+4*w}:{vRD+4*w+3}], v{vRR} offset:{16384*i + 4096*w}' for w in range(4)] + \
                      [f'ds_read_b64 v[{vRD+16}:{vRD+17}], v{vXR} offset:{4096*i}']
    def fin(i):
        X = vRD + 16; out = []
        for e in range(4): out += [f'v_add_f32 v{vRD+e}, v{vRD+e}, v{vRD+4+e}', f'v_add_f32 v{vRD+8+e}, v{vRD+8+e}, v{vRD+12+e}']
        out += [f'v_lshlrev_b32 v{X+2}, 16, v{X}', f'v_and_b32 v{X+3}, {sMASK}, v{X}', f'v_lshlrev_b32 v{X+4}, 16, v{X+1}', f'v_and_b32 v{X+5}, {sMASK}, v{X+1}']
        for e in range(4): out.append(f'v_add_f32 v{vRD+e}, v{vRD+e}, v{vRD+8+e}')
        for e in range(4): out.append(f'v_fmac_f32 v{X+2+e}, v{vRD+e}, v{vGB+e}')
        out += [f'v_cvt_pk_bf16_f32 v{X+6+h}, v{X+2+2*h}, v{X+3+2*h}' for h in range(2)]
        out += [f's_add_u32 {sT1}, {sB}, {16384*i}', f'buffer_store_dwordx2 v[{X+6}:{X+7}], v{vOA}, {srd("OUT")}, {sT1} offen']
        return out
    def bar(a): a.wait_tag('xe'); barrier(a)
    for i in range(3):
        g = S.chain(56 * (i + 1) + 4, wr(i), stride=3)
        g = S.scal(g + 8, bar)
        g = S.chain(g, rd(i))
        if i == 0: S.block(g + 7, lambda a: (a.wait_all(vm=False), [a(x) for x in flag_loads('C')]))
        g = S.chain(g + 8, fin(i))
        assert g < 56 * (i + 2) + 4, g
    S.block(40, lambda a: stamp(a, 't_f40')); S.block(56, lambda a: stamp(a, 't_f56')); S.block(90, lambda a: stamp(a, 't_f90'))
    S.block(1, lambda a: stamp(a, 'f0')); S.block(112, lambda a: stamp(a, 'f112')); S.block(224, lambda a: stamp(a, 'f224'))
    S.emit(a, 'gemm2')
    for x in wr(3): a(x)
    barrier(a)
    for x in rd(3) + fin(3): a(x)

def k_mega(a):
    a.raw('s_cmp_ge_u32 s2, 256')
    a.raw('s_cbranch_scc1 L_end')
    stamp_names.append([])
    if OPT['stamps']: a('s_memrealtime s[98:99]'); a('s_memtime s[96:97]')
    else: stamp(a, 'start')
    names = ['WM', 'C', 'X', 'WS', 'DBG', 'WQ', 'K', 'V', 'WO', 'W1', 'W2', 'OUT']
    for n in names: a(f's_load_dwordx2 s[{SRD[n]}:{SRD[n]+1}], s[0:1], {KOFF[n]}')
    a(f's_lshr_b32 {sRB}, s2, 3')
    lc = a.newlabel('nocode')
    a(f's_cmp_ge_u32 {sRB}, 29')
    a.raw(f's_cbranch_scc0 {lc}')
    a.raw('s_getpc_b64 s[66:67]')
    a.label('L_pc')
    a.raw(f's_sub_u32 {sT0}, {sRB}, 29'); a.raw(f's_lshl_b32 {sT0}, {sT0}, 15')
    a.raw(f'v_lshl_add_u32 v2, v0, 7, {sT0}')
    a.raw('v_min_u32 v2, L_code_end - L_pc - 4, v2')
    a.raw('v_mov_b32 v3, s67'); a.raw('v_add_co_u32 v2, vcc, s66, v2'); a.raw('s_nop 1'); a.raw('v_addc_co_u32 v3, vcc, 0, v3, vcc')
    a.raw('global_load_dword v28, v[2:3], off')
    a.label(lc)
    a('v_lshrrev_b32 v1, 6, v0')
    for n in names:
        a(f's_mov_b32 s{SRD[n]+2}, {SIZE[n]}'); a(f's_mov_b32 s{SRD[n]+3}, 0x20000')
    a(f's_and_b32 {sG}, s2, 7')
    a(f'v_readfirstlane_b32 {sW}, v1')
    a('v_and_b32 v0, 63, v0')
    a(f's_mov_b32 {sMASK}, 0xffff0000')
    if OPT['stamps']:
        stamp_names[-1].append('start')
        a('v_writelane_b32 v1, s98, 0'); a('v_writelane_b32 v1, s96, 32')
        stamp(a, 'args')
    a(f's_lshl_b32 {sN}, {sRB}, 2'); a(f's_add_u32 {sN}, {sN}, {sW}')
    a(f's_lshl_b32 {sT2}, {sN}, 14'); a(f's_lshl_b32 {sT3}, {sG}, 11')
    a(f'v_lshlrev_b32 v{vT}, 4, v0'); a(f'v_lshlrev_b32 v{vL4}, 2, v0'); a(f'v_mov_b32 v{vONE}, 1')
    lnp, lj = a.newlabel('noprod'), a.newlabel('prodj')
    a.wait_all()
    a('s_cmp_lt_u32 s2, 48')
    a.raw(f's_cbranch_scc0 {lnp}')
    phase_mod(a)
    a.raw(f's_branch {lj}')
    a.label(lnp)
    a.vm = []; a.lg = []
    a(f's_sub_u32 {sA}, {sN}, 24'); a(f's_min_u32 {sA}, {sA}, 95')
    a(f's_lshr_b32 {sT1}, {sA}, 4'); a(f's_and_b32 {sT0}, {sA}, 15')
    a(f's_mul_i32 {sT0}, {sT0}, {32*6144}'); a(f's_lshl_b32 {sT1}, {sT1}, 10'); a(f's_add_u32 {sT0}, {sT0}, {sT1}')
    a(f's_lshl_b32 {sT1}, {sG}, 7'); a(f's_add_u32 {sT0}, {sT0}, {sT1}')
    lane_fields(a, 2, [(0, 6, 6144)], 3)
    touch(a, 'WM', 2, 32, sT0)
    for i in range(4):
        for t in x_load(i): a(t)
    a('v_lshlrev_b32 v2, 7, v0'); a(f's_lshl_b32 {sT0}, {sA}, 12')
    touch(a, 'X', 2, 32, sT0)
    a.vm.pop()
    for i in range(4, 8):
        for t in x_load(i): a(t)
    a.label(lj)
    for i in range(8, 16):
        for t in x_load(i): a(t)
    stamp(a, 'xissue')
    a(f's_lshl_b32 {sT0}, {sN}, 15'); a(f's_lshl_b32 {sT1}, {sG}, 10'); a(f's_add_u32 {sT0}, {sT0}, {sT1}')
    lane_fields(a, 2, [(3, 3, 8192), (0, 3, 128)], 3)
    touch(a, 'WQ', 2, 32, sT0)
    main_setup(a)
    ln1_stats(a); stamp(a, 'stats')
    await_flags(a, 16, 0, 'DBG', '0'); stamp(a, 'modok')
    ln1_apply(a)
    a(f's_lshl_b32 {sT0}, {sN}, 10'); a(f's_lshl_b32 {sT1}, {sG}, 19'); a(f's_add_u32 {sT0}, {sT0}, {sT1}'); a(f's_add_u32 {sT0}, {sT0}, {1536*256}')
    a(f'v_lshlrev_b32 v{vT}, 7, v0')
    touch(a, 'K', vT, 8, sT0); touch(a, 'V', vT, 8, sT0)

    stamp(a, 'apply')
    phase_main(a)
    assert a.vm[-1][1] == ('p1', 1)
    red_operands(a)
    a._wait(vm=OPT['pre2'])
    for x in flag_loads('A'): a(x)
    wave_signal(a, ('p1', 1), 2, 8); stamp(a, 'p1done')
    l0, l1, l2 = (a.newlabel(x) for x in ('c0', 'c1', 'c1j'))
    pl = lambda c: [({('v', PL + 32 * c + 4 * g + r) for r in range(4)}, None) for g in range(8)]
    a(f's_mov_b32 {sT2}, 0')
    for q in range(8):
        a(f's_lshr_b32 s{sFV+q}, s{sFV+q}, 1'); a(f's_lshl1_add_u32 {sT2}, {sT2}, s{sFV+q}')
    a(f's_lshr_b32 {sT3}, 0x80, {sG}'); a(f's_or_b32 {sT2}, {sT2}, {sT3}')
    a(f's_cmp_lg_u32 {sLD}, 0')
    a.raw(f's_cbranch_scc1 {l0}')
    sspin(a, 'A', 1)
    for x in part_loads(0): a.raw(x)
    a.label(l0)
    a.vm += pl(0)
    a(f's_mov_b32 {sLD}, 0')
    a(f's_cmp_lg_u32 {sT2}, 0xff')
    a.raw(f's_cbranch_scc1 {l1}')
    for x in part_loads(1): a.raw(x)
    a.raw(f's_mov_b32 {sLD}, 1')
    a.label(l1)
    a.raw('s_barrier')
    for x in w1_reads(0): a(x)
    for b in range(2): a(f'v_add_u32 v{vTW1+b}, 0x10000, v{vTW1+b}')
    red_addr(a)
    stamp(a, 't_w1')
    l3, l4 = a.newlabel('w'), a.newlabel('wj')
    a(f's_cmp_lg_u32 {sLD}, 0'); a.raw(f's_cbranch_scc1 {l3}')
    a.raw('s_waitcnt vmcnt(0)'); a.label(l3); a.raw('s_waitcnt vmcnt(8)'); a.vm = []
    red_sum(a, 0); stamp(a, 't_sum0')
    for i in range(4):
        for x in w1_dma(1, i, sT1): a(x, ('w1', 1))
    a.wait_all(vm=False)
    a(f's_cmp_lg_u32 {sLD}, 0')
    a.raw(f's_cbranch_scc1 {l2}')
    sspin(a, 'A', 2)
    for x in part_loads(1): a.raw(x)
    a.label(l2)
    stamp(a, 'syncA')
    late_sum(a, pl(1)); stamp(a, 'sum')
    red_ln(a); stamp(a, 'red')
    for k in range(2):
        for x in w2_dma(k, sT1): a(x, ('w2', k))
    a.wait_tag(('w1', 1))
    signal(a, 'h2', 14, 0); stamp(a, 'h2done')
    rest = [2, 3, 8, 9][:OPT['w2b']]
    wv = Weave(a, [(x, ('w2', k)) for k in rest for x in w2_dma(k, sT1)], 4)
    for x in w1_reads(1): wv(x)
    wv.flush()
    W2_LEFT[:] = [k for k in range(4, 10) if k not in rest]
    flag_base(a, sWAIT)
    for x in flag_loads('B'): a(x)
    mlp_addr(a); g2_addr(a)
    for k in range(4):
        a.wait_tag(('w2', k))
        for x in w2_reads(k): a(x)
    stamp(a, 't_w2')
    l1, l2 = a.newlabel('nog1'), a.newlabel('nog1j')
    a(f's_cmp_ge_u32 {sRB}, 28')
    a.raw(f's_cbranch_scc1 {l1}')
    phase_g1(a)
    a.raw(f's_branch {l2}')
    a.label(l1)
    save = (list(a.vm), list(a.lg))
    a.raw('s_waitcnt lgkmcnt(0)'); a.raw('s_barrier')
    for k in W2_LEFT + [10, 11]:
        for x in w2_dma(k, sT1): a.raw(x)
    a.vm = []; a.lg = []
    a(f's_lshl2_add_u32 {sT0}, s2, {sW}'); a(f's_lshl_b32 {sT0}, {sT0}, 12'); a(f's_add_u32 s{sP+3}, {sT0}, {WS_DUMMY - 896*4096}')
    a(f's_add_u32 {sSIG}, s{sP+3}, 2048')
    flag_base(a, sWV)
    sspin(a, 'C', 1)
    g2_head(a)
    a.raw('s_waitcnt vmcnt(0)')
    a.vm, a.lg = save
    a.label(l2)
    stamp(a, 'h1done')
    phase_g2(a)
    stamp_flush(a); a.label('L_end'); a.raw('s_endpgm')
    a.label('L_code_end')
    slow_path(a)
    for l0, l1, kind, lvl in late_spins:
        a.label(l0); sspin(a, kind, lvl); a.raw(f's_branch {l1}')
    a.label('L_mod2')
    spin(a, 'DBG', '0', vL4, vPOLL, 32, 128)
    a.raw('s_branch L_mod2j')

def main(out):
    ref = open(f'cdna_kernels/{NAME}.s.ref').read().splitlines()
    head = [l for l in ref if l.startswith(';') and '@launch' not in l]
    name = NAME + '_kernel'
    a = Asm(); k_mega(a)
    print('nop states', a.nnop, 'lines', len(a.lines))
    s = '\n'.join(head) + '\n'
    s += f'; @launch grid=(256,1,1) block=(256,1,1) lds={LDS_BYTES}\n'
    s += '.amdgcn_target "amdgcn-amd-amdhsa--gfx950"\n.text\n'
    s += f'.globl {name}\n.p2align 8\n.type {name},@function\n{name}:\n' + a.text()
    s += f""".section .rodata,"a"
.p2align 6
.amdhsa_kernel {name}
  .amdhsa_next_free_vgpr 512
  .amdhsa_next_free_sgpr 102
  .amdhsa_accum_offset 256
  .amdhsa_group_segment_fixed_size 0
  .amdhsa_kernarg_size 104
  .amdhsa_user_sgpr_count 2
  .amdhsa_user_sgpr_kernarg_segment_ptr 1
  .amdhsa_system_sgpr_workgroup_id_x 1
.end_amdhsa_kernel
"""
    open(out, 'w').write(s)
    if OPT['stamps']:
        import json; json.dump(stamp_names, open(out + '.stamps', 'w'))

if __name__ == '__main__':
    for o in sys.argv[2:]:
        k, v = o.split('='); OPT[k] = v if k in ('probe', 'abl') else int(v)
    main(sys.argv[1] if len(sys.argv) > 1 else f'cdna_kernels/{NAME}.s')
```

```python
import sys, struct, math
from asmlib import Asm, Sched2, fill

NAME = 'adaLN_cond__sliding_block_cached__dense_activation_silu__prompt'
def f2u(x): return struct.unpack('<I', struct.pack('<f', x))[0]
def hx(x): return '0x%08x' % f2u(x)
LOG2E = 1.4426950408889634

SRD = dict(X=4, K=8, V=12, WQ=16, WO=20, W1=24, W2=28, C=32, WM=36, OUT=40, DBG=44, WS=48)
KOFF = dict(X=0, K=8, V=16, WQ=24, WO=32, W1=48, W2=56, C=64, WM=72, OUT=80, DBG=88, WS=96)
SIZE = dict(X=2048*512*2, K=8*2048*128*2, V=8*2048*128*2, WQ=512*4096*2, WO=4096*512*2, W1=512*1792*2,
            W2=1792*512*2, C=1024, WM=512*3072*2, OUT=2048*512*2, DBG=256, WS=1 << 28)
def srd(n): return f's[{SRD[n]}:{SRD[n]+3}]'
sW, sG, sRB = 's52', 's53', 's54'
sT0, sT1, sT2, sT3 = 's55', 's56', 's57', 's58'
sMASK = 's59'
sA, sB, sC, sD = 's60', 's61', 's62', 's63'
sST = 64
sN = 's99'
sBAD = 's[64:65]'
sP = 66
sSIG, sWAIT, sLD = 's70', 's71', 's72'
sRH, sR32, sFS = 's73', 's74', 's75'
sE, sF, sH = 's76', 's77', 's78'
sW1, sRD, sH1, sWV, sH2 = 's79', 's80', 's81', 's84', 's85'

WS_MOD = 0
WS_FLG = 0x10000
WS_STAMP = 0x80000
WS_DUMMY = 0x100000
WS_X1 = 0x200000
WS_H2 = 0x400000
WS_H1 = 0x600000
WS_P1 = 0x1000000
SC = 'sc1'
F_A, F_B, F_C = WS_FLG, WS_FLG + 0x20000, WS_FLG + 0x28000

L_B, L_A = 32768, 65536
LDS_BYTES = 163840
def slot_lds(sig): return L_A + 16384 * sig

def vr(b, n=1, k='v'): return f'{k}{b}' if n == 1 else f'{k}[{b}:{b+n-1}]'
def ar(b, n=1): return vr(b, n, 'a')

OPT = dict(stamps=0, probe='', pwg=100, pmul=4, st0=16, abl='', qpace=160, wpace=24, r2=0, stsp=18, siga=48, polla=30, nlast=2, w1st=3, wq0=2, xwait=1, tlb=0, sigc=50, pollc=40, sig4=36, pre2=2, silu3=36, w2b=4, pfl=0, word=1)
stamp_names = []
def stamp(a, name):
    if OPT['probe']:
        pa, pb = OPT['probe'].split(':')
        if name == pa: a('s_memrealtime s[100:101]')
        if name == pb: a('s_memrealtime s[96:97]')
    if not OPT['stamps']: return
    if OPT['stamps'] == 3:
        if not name.startswith('t_') and name not in ('args', 'wo32', 'p1done', 'syncA', 'h2done', 'syncB', 'g0', 'g128', 'g256', 'syncC', 'h1done', 'f0', 'f112', 'f224', 'end'): return
    elif name.startswith('t_'): return
    elif name.startswith('m_') != (OPT['stamps'] == 2) and name not in ('args', 'xissue', 'stats', 'modok', 'apply', 'end', 'q16'): return
    i = len(stamp_names[-1]); stamp_names[-1].append(name)
    a('s_memrealtime s[100:101]')
    a(f'v_writelane_b32 v1, s100, {i}')
    a('s_memtime s[100:101]')
    a(f'v_writelane_b32 v1, s100, {32+i}')
def stamp_flush(a):
    if OPT['probe']:
        a.wait_all(); stamp(a, 'end')
        a('s_memrealtime s[94:95]'); a.wait_all()
        a(f's_cmp_lg_u32 s2, {OPT["pwg"]}'); a.raw('s_cbranch_scc1 L_end')
        a('s_sub_u32 s92, s96, s100'); a(f's_mul_i32 s92, s92, {OPT["pmul"]}'); a('s_min_u32 s92, s92, 100000')
        a.label('L_probe')
        a.raw('s_memrealtime s[90:91]'); a.raw('s_waitcnt lgkmcnt(0)'); a.raw('s_sub_u32 s90, s90, s94'); a.raw('s_cmp_lt_u32 s90, s92'); a.raw('s_cbranch_scc1 L_probe')
    if not OPT['stamps']: return
    a.wait_all()
    stamp(a, 'end')
    a(f's_lshl_b32 s100, s2, 10'); a(f's_lshl_b32 s101, {sW}, 8'); a('s_add_u32 s100, s100, s101')
    a(f's_add_u32 s100, s100, {WS_STAMP}')
    a('v_lshlrev_b32 v0, 2, v0')
    a(f'buffer_store_dword v1, v0, {srd("WS")}, s100 offen')

class Collect:
    def __init__(self): self.l = []
    def __call__(self, t, tag=None): self.l.append(t)
def collect(fn, *args, **kw):
    c = Collect(); fn(c, *args, **kw); return c.l

def lane_fields(a, dst, spec, tmp, add=None):
    first = True
    for sh, nb, sc in spec:
        t = dst if first else tmp
        src = t
        if sh == 0 and nb == 6: src = 0
        elif sh == 0: a(f'v_and_b32 v{t}, {(1 << nb) - 1}, v0')
        elif sh + nb == 6: a(f'v_lshrrev_b32 v{t}, {sh}, v0')
        else: a(f'v_bfe_u32 v{t}, v0, {sh}, {nb}')
        if sc & (sc - 1) == 0:
            if first:
                if sc > 1 or src != t: a(f'v_lshlrev_b32 v{t}, {sc.bit_length()-1}, v{src}')
            else: a(f'v_lshl_add_u32 v{dst}, v{src}, {sc.bit_length()-1}, v{dst}')
        else:
            a(f'v_mul_u32_u24 v{t}, {sc}, v{src}')
            if not first: a(f'v_add_u32 v{dst}, v{dst}, v{t}')
        first = False
    if add is not None: a(f'v_add_u32 v{dst}, {add}, v{dst}')

def dma(soff, voff, srdn, imm, fl=''):
    return f'buffer_load_dwordx4 v{voff}, {srd(srdn)}, {soff} offen offset:{imm} {fl + " " if fl else ""}lds'
def barrier(a):
    a.wait_all(vm=False); a.raw('s_barrier')
def set_exec(a, nl):
    if nl == 64: return
    if nl < 32: a.raw(f's_mov_b64 exec, {hex((1 << nl) - 1)}')
    else: a.raw('s_mov_b32 exec_lo, -1'); a.raw(f's_mov_b32 exec_hi, {hex((1 << (nl - 32)) - 1)}')
def touch(a, n, vaddr, nl, soff, dst=28):
    if nl < 64: set_exec(a, nl)
    a.raw(f'buffer_load_dword v{dst}, v{vaddr}, {srd(n)}, {soff} offen'); a.fake_vm(1, None)
    if nl < 64: a.raw('s_mov_b64 exec, -1')

def spin(a, srdn, soff, vaddr, vdst, nl, imm=0, lvl=1):
    loop, out = a.newlabel('poll'), a.newlabel('pollout')
    set_exec(a, nl)
    a.raw('s_mov_b32 s98, 0x200000')
    a.label(loop)
    a.raw(f'buffer_load_dword v{vdst}, v{vaddr}, {srd(srdn)}, {soff} offen offset:{imm} {SC}')
    a.raw('s_sub_u32 s98, s98, 1')
    a.raw(f's_cbranch_scc1 {out}')
    a.raw('s_waitcnt vmcnt(0)')
    a.raw(f'v_cmp_gt_u32 vcc, {lvl}, v{vdst}')
    a.raw('s_nop 0')
    a.raw(f's_cbranch_vccnz {loop}')
    a.label(out)
    a.raw('s_waitcnt vmcnt(0)')
    a.raw('s_mov_b64 exec, -1')
def signal(a, tag, nl, imm):
    a.wait_tag(tag); barrier(a)
    l0 = a.newlabel('sig')
    a(f's_cmp_lg_u32 {sW}, 0')
    a.raw(f's_cbranch_scc1 {l0}')
    set_exec(a, nl)
    a.raw(f'buffer_store_dword v{vONE}, v{vSIG}, {srd("WS")}, {sSIG} offen offset:{imm} {SC}')
    a.raw('s_mov_b64 exec, -1')
    a.label(l0)
def wave_signal(a, tag, lvl, nl, cond=False):
    a(f'v_mov_b32 v{vONE}, {lvl}')
    a.wait_tag(tag)
    l0 = a.newlabel('ws')
    if cond: a(f's_cmp_ge_u32 {sRB}, 28'); a.raw(f's_cbranch_scc1 {l0}')
    set_exec(a, nl)
    a.raw(f'buffer_store_dword v{vONE}, v{vSIG}, {srd("WS")}, {sSIG} offen {SC}')
    a.raw('s_mov_b64 exec, -1')
    if cond: a.label(l0)
    else: a.fake_vm(1, None)
sFP, sFV = 86, 88
late_spins = []
def flag_base(a, soff):
    a(f's_add_u32 s{sFP}, s{SRD["WS"]}, {soff}'); a(f's_addc_u32 s{sFP+1}, s{SRD["WS"]+1}, 0')
def flag_loads(kind):
    if kind == 'C': return [f's_load_dword s{sFV+n}, s[{sFP}:{sFP+1}], {128*n} glc' for n in range(7)]
    out = [f's_load_dwordx8 s[{sFV}:{sFV+7}], s[{sFP}:{sFP+1}], 0 glc']
    if kind == 'B': out.append(f's_load_dwordx8 s[32:39], s[{sFP}:{sFP+1}], 32 glc')
    return out
def flag_test(em, kind, lvl):
    n = 7 if kind == 'C' else 8
    if kind == 'B':
        for q in range(8): em(f's_min_u32 s{sFV+q}, s{sFV+q}, s{32+q}')
    for st in (1, 2, 4):
        for q in range(0, n - st, 2 * st): em(f's_min_u32 s{sFV+q}, s{sFV+q}, s{sFV+q+st}')
    em(f's_cmp_lt_u32 s{sFV}, {lvl}')
def sspin(a, kind, lvl):
    loop, out = a.newlabel('sp'), a.newlabel('spout')
    a.raw('s_mov_b32 s98, 0x200000')
    a.label(loop)
    for x in flag_loads(kind): a.raw(x)
    a.raw('s_sub_u32 s98, s98, 1')
    a.raw('s_waitcnt lgkmcnt(0)')
    a.raw(f's_cbranch_scc1 {out}')
    flag_test(a.raw, kind, lvl)
    a.raw(f's_cbranch_scc1 {loop}')
    a.label(out)
def flag_check(a, kind, lvl):
    l0, l1 = a.newlabel('fc'), a.newlabel('fcj')
    flag_test(a, kind, lvl); a.raw(f's_cbranch_scc1 {l0}'); a.label(l1)
    late_spins.append((l0, l1, kind, lvl))
def await_flags(a, nl, imm, srdn='WS', soff=None):
    l1 = a.newlabel('aw')
    a(f's_cmp_lg_u32 {sW}, 1')
    a.raw(f's_cbranch_scc1 {l1}')
    spin(a, srdn, soff or sWAIT, vL4, vPOLL, nl, imm)
    a.label(l1)
    barrier(a)

vW4, vKD, vVD = 2, 6, 10
vTRA, vTRB, vTV, vK, vH = 12, 14, 16, 18, 22
vTRC, vTW1 = 16, 18
vT = 24
vSIG, vPOLL, vONE, vL4 = 28, 29, 30, 31
vQ, vS, vP, vR, vO = 32, 96, 112, 120, 128
aK, aV, aL, aONE, aX = 0, 64, 128, 144, 160

def m16(d, A, B, first): return f'v_mfma_f32_16x16x32_bf16 {d}, {A}, {B}, {"0" if first else d}'
def m32(d, A, B, first): return f'v_mfma_f32_32x32x16_bf16 {d}, {A}, {B}, {"0" if first else d}'

XR = 64
def x_load(i):
    return [f's_add_u32 {sT3}, {sT3}, 1024', f's_and_b32 {sT3}, {sT3}, 0x3c00', f's_add_u32 {sT0}, {sT2}, {sT3}',
            f'buffer_load_dwordx4 v[{XR+4*i}:{XR+4*i+3}], v{vT}, {srd("X")}, {sT0} offen']

def phase_mod(a):
    a.comment('mod = silu(c) @ w_mod, 64 columns per producer')
    W = 128; SL = 32; SH = 48; ACC = 8
    a(f's_lshl_b32 {sA}, s2, 7')
    a(f's_mul_i32 {sT1}, {sW}, {128*6144}')
    a(f's_add_u32 {sA}, {sA}, {sT1}')
    lane_fields(a, 2, [(3, 3, 16 * 6144), (0, 3, 16)], 3)
    lane_fields(a, 3, [(3, 3, 32)], 4)
    a(f's_lshl_b32 {sB}, {sW}, 8')
    for i in range(2): a(f'buffer_load_dwordx4 v[{16+4*i}:{19+4*i}], v3, {srd("C")}, {sB} offen offset:{16*i}')
    def wl(i):
        a(f'buffer_load_dwordx4 v[{W+4*i}:{W+4*i+3}], v2, {srd("WM")}, {sA} offen')
        if i < 15: a(f's_add_u32 {sA}, {sA}, 6144')
    for i in range(8): wl(i)
    for i in range(8): a(f'v_mov_b32 v{ACC+i}, 0')
    for r in range(8):
        a(f'v_lshlrev_b32 v{SH+2*r}, 16, v{16+r}'); a(f'v_and_b32 v{SH+2*r+1}, {sMASK}, v{16+r}')
    for i in range(16): a(f'v_mul_f32 v{SL+i}, {hx(-LOG2E)}, v{SH+i}')
    for i in range(16): a(f'v_exp_f32 v{SL+i}, v{SL+i}')
    for i in range(16): a(f'v_add_f32 v{SL+i}, 1.0, v{SL+i}')
    for i in range(16): a(f'v_rcp_f32 v{SL+i}, v{SL+i}')
    for i in range(16): a(f'v_mul_f32 v{SH+i}, v{SH+i}, v{SL+i}')
    for i in range(16): a(f'v_cvt_pk_bf16_f32 v{SL+i}, v{SH+i}, 0')
    for i in range(16): a(f'v_lshlrev_b32 v{SH+i}, 16, v{SL+i}')
    stamp(a, 'm_silu')
    for i in range(8, 12): wl(i)
    for i in range(16):
        for r in range(4):
            a(f'v_dot2c_f32_bf16 v{ACC+2*r}, v{W+4*i+r}, v{SL+i}')
            a(f'v_dot2c_f32_bf16 v{ACC+2*r+1}, v{W+4*i+r}, v{SH+i}')
        if i < 4: wl(12 + i)
    stamp(a, 'm_dot16')
    for i in range(4): a(f'v_permlane32_swap_b32 v{ACC+i}, v{ACC+4+i}')
    for i in range(4): a(f'v_add_f32 v{ACC+i}, v{ACC+i}, v{ACC+4+i}')
    for i in range(2): a(f'v_permlane16_swap_b32 v{ACC+i}, v{ACC+2+i}')
    for i in range(2): a(f'v_add_f32 v{ACC+i}, v{ACC+i}, v{ACC+2+i}')
    lane_fields(a, 4, [(0, 3, 32), (4, 2, 8)], 5)
    a(f'v_add_u32 v4, {sB}, v4')
    for i in range(2): a(f'v_add_f32_dpp v{ACC+i}, v{ACC+i}, v{ACC+i} row_ror:8 row_mask:0xf bank_mask:0xf')
    a(f'ds_write_b64 v4, v[{ACC}:{ACC+1}]')
    a(f's_lshr_b32 {sT1}, s2, 3')
    a(f's_mov_b32 {sB}, {hx(LOG2E/math.sqrt(128.0))}')
    a(f's_cmp_eq_u32 {sT1}, 2'); a(f's_cselect_b32 {sB}, 1.0, {sB}')
    a(f's_cmp_ge_u32 {sT1}, 3'); a(f's_cselect_b32 {sB}, {hx(-LOG2E)}, {sB}')
    a(f's_cmp_eq_u32 {sT1}, 5'); a(f's_cselect_b32 {sB}, {hx(-1.0/LOG2E)}, {sB}')
    a(f's_mov_b32 {sC}, 0')
    a(f's_cmp_eq_u32 {sT1}, 1'); a(f's_cselect_b32 {sC}, 1.0, {sC}')
    a(f's_cmp_eq_u32 {sT1}, 4'); a(f's_cselect_b32 {sC}, 1.0, {sC}')
    barrier(a)
    stamp(a, 'm_bar')
    lab = a.newlabel('modskip')
    a(f's_cmp_lg_u32 {sW}, 0')
    a.raw(f's_cbranch_scc1 {lab}')
    for i in range(4): a(f'ds_read_b32 v{ACC+i}, v{vL4} offset:{256*i}')
    lane_fields(a, 4, [(2, 1, 1024), (3, 3, 16), (0, 2, 4)], 5)
    a(f's_lshl_b32 {sT0}, {sG}, 7'); a(f's_lshl_b32 {sT1}, s2, 8'); a(f's_sub_u32 {sT0}, {sT1}, {sT0}')
    a('s_cmp_ge_u32 s2, 16'); a(f's_cselect_b32 {sT1}, {sT1}, {sT0}'); a('s_cselect_b64 vcc, -1, 0')
    a(f'v_cndmask_b32 v4, v4, v{vL4}, vcc')
    a(f'v_add_f32 v8, v8, v9'); a('v_add_f32 v10, v10, v11'); a('v_add_f32 v8, v8, v10')
    a('v_cvt_pk_bf16_f32 v8, v8, v8'); a(f'v_and_b32 v8, {sMASK}, v8')
    a(f'v_add_f32 v8, {sC}, v8')
    a('v_cvt_pk_bf16_f32 v8, v8, v8'); a(f'v_and_b32 v8, {sMASK}, v8')
    a(f'v_mul_f32 v8, {sB}, v8')
    a(f'buffer_store_dword v8, v4, {srd("WS")}, {sT1} offen offset:{WS_MOD} {SC}')
    stamp(a, 'm_st')
    a.label(lab)
    a.vm = []
    for i in range(8):
        for t in x_load(i): a(t)
    lab = a.newlabel('modskip')
    a(f's_cmp_lg_u32 {sW}, 0')
    a.raw(f's_cbranch_scc1 {lab}')
    a.raw('s_cmp_ge_u32 s2, 16'); a.raw(f's_cselect_b32 {sT1}, 4, 0'); a.raw(f's_cselect_b32 {sA}, 63, 15')
    a.raw('v_mov_b32 v9, 1')
    a.raw('s_mov_b64 exec, 1')
    a.raw('s_waitcnt vmcnt(8)')
    a.raw(f'buffer_atomic_add v9, v0, {srd("DBG")}, {sT1} offen offset:128 sc0 sc1')
    a.raw('s_mov_b64 exec, -1')
    a.label(lab)
    for i in range(8, 12):
        for t in x_load(i): a(t)
    lab = a.newlabel('modskip')
    a(f's_cmp_lg_u32 {sW}, 0')
    a.raw(f's_cbranch_scc1 {lab}')
    a.raw('s_waitcnt vmcnt(4)')
    a.raw(f'v_readfirstlane_b32 {sT1}, v9')
    a.raw('s_nop 1')
    a.raw(f's_cmp_lg_u32 {sT1}, {sA}')
    a.raw(f's_cbranch_scc1 {lab}')
    a.raw('s_mov_b64 exec, 1')
    a.raw(f'buffer_store_dword v{vONE}, v0, {srd("DBG")}, 0 offen {SC}')
    a.raw('s_mov_b64 exec, -1')
    a.label(lab)
    stamp(a, 'm_stdone')

def butterfly16(a, rs):
    for r in rs:
        for i in range(8): a(f'v_permlane32_swap_b32 v{r+i}, v{r+i+8}')
        for i in range(8): a(f'v_add_f32 v{r+i}, v{r+i}, v{r+i+8}')
    for r in rs:
        for i in range(4): a(f'v_permlane16_swap_b32 v{r+i}, v{r+i+4}')
        for i in range(4): a(f'v_add_f32 v{r+i}, v{r+i}, v{r+i+4}')
    for sh in (8, 4, 2, 1):
        for r in rs:
            for i in range(4):
                a(f'v_add_f32_dpp v{r+i}, v{r+i}, v{r+i} row_ror:{sh} row_mask:0xf bank_mask:0xf')

def wq_sig(n): return (n + 4) % 6
def wq_dma(n, so='{so}'):
    c, k = divmod(n, 16)
    return [f's_add_u32 m0, {sC}, {slot_lds(wq_sig(n))}', f's_add_u32 {so}, {sA}, {k*32*8192 + c*128}'] + \
           [dma(so, vW4 + p, 'WQ', 1024 * p) for p in range(4)]
def wo_sig(n):
    return 2 + n % 4 if n < 6 else n % 6 if n < 22 else n - 20 if n < 26 else (n - 10) % 6
def wo_dma(n, so='{so}'):
    c, k = divmod(n, 16)
    return [f's_add_u32 m0, {sC}, {slot_lds(wo_sig(n))}', f's_add_u32 {so}, {sB}, {k*32*1024 + c*128}'] + \
           [dma(so, vW4 + p, 'WO', 1024 * p) for p in range(4)]
def kv_buf(t): return L_B if t % 2 == 0 else L_A
def kv_dma(t, which, so='{so}'):
    out = [f's_add_u32 m0, {sC}, {kv_buf(t) + (0 if which == "K" else 16384)}', f's_add_u32 {so}, {sD}, {t*16384}']
    return out + [dma(so, vKD + p if which == 'K' else vVD + p % 2, which, 1024 * p) for p in range(4)]
def w_read(dst, sig, t, r):
    reg, base = (vTRC, 16384 * (sig + 4)) if sig < 0 else (vTRA, 16384 * sig) if sig < 4 else (vTRB, 16384 * (sig - 4))
    return f'ds_read_b64_tr_b16 {dst}, v{reg + t % 2} offset:{base + 2048*r + 256*(t//2)}'
def w64_offsets(a, dst, tmp, pitch, kq_rows, prow):
    lane_fields(a, dst, [(2, 2, pitch), (4, 1, 64), (5, 1, kq_rows * pitch)], tmp)
    a(f'v_lshrrev_b32 v{tmp}, 4, v0'); a(f'v_and_b32 v{tmp}, 2, v{tmp}'); a(f'v_xor_b32 v{tmp}, v{tmp}, v0')
    a(f'v_and_b32 v{tmp}, 3, v{tmp}'); a(f'v_lshl_add_u32 v{dst}, v{tmp}, 4, v{dst}')
    for p in range(1, 4): a(f'v_add_u32 v{dst+p}, {prow(p)*pitch - 1024*p}, v{dst}')

def main_setup(a):
    a.comment('address set-up')
    t = vT + 1
    a(f's_lshl_b32 {sC}, {sW}, 12')
    w64_offsets(a, vW4, t, 8192, 8, lambda p: 16 * (p & 1) + 4 * (p >> 1))
    a(f's_lshl_b32 {sA}, {sG}, 10'); a(f's_lshl_b32 {sT1}, {sW}, 8'); a(f's_add_u32 {sA}, {sA}, {sT1}')
    a(f's_lshl_b32 {sB}, {sG}, 19'); a(f's_add_u32 {sD}, {sB}, {1536*256}'); a(f's_add_u32 {sD}, {sD}, {sC}')
    a(f's_add_u32 {sB}, {sB}, {sT1}')
    lane_fields(a, vVD, [(0, 2, 16), (2, 2, 256), (4, 2, 64)], t)
    a(f'v_xor_b32 v{vVD+1}, 32, v{vVD}')
    a(f'v_lshrrev_b32 v{t}, 4, v0')
    a(f'v_and_b32 v{t+1}, 15, v0')
    a(f'v_xor_b32 v{t+2}, v{t+1}, v{t}')
    a(f'v_lshlrev_b32 v{t+2}, 4, v{t+2}')
    a(f'v_lshl_add_u32 v{vKD}, v{t}, 8, v{t+2}')
    for p in range(1, 4): a(f'v_xor_b32 v{vKD+p}, {64*p}, v{vKD}')
    a(f'v_mov_b32 v{vH}, v{vKD}'); a(f'v_mov_b32 v{vH+1}, v{vKD+1}')
    lane_fields(a, t + 2, [(5, 1, 1), (4, 1, 2)], t)
    a(f'v_xor_b32 v{t+2}, v{t+2}, v{t+1}')
    a(f'v_lshlrev_b32 v{t+2}, 4, v{t+2}')
    a(f'v_lshl_add_u32 v{vK}, v{t+1}, 8, v{t+2}')
    a(f'v_add_u32 v{vK}, {L_B}, v{vK}')
    for s in range(1, 4): a(f'v_xor_b32 v{vK+s}, {64*s}, v{vK}')
    lane_fields(a, t + 1, [(2, 2, 64), (4, 1, 32), (0, 2, 8)], t)
    a(f'v_lshrrev_b32 v{t}, 4, v0')
    a(f'v_lshl_add_u32 v{vTV}, v{t}, 10, v{t+1}'); a(f'v_add_u32 v{vTV}, {L_B}, v{vTV}'); a(f'v_xor_b32 v{vTV+1}, 32, v{vTV}')
    a(f's_add_u32 {sT1}, {sC}, {L_A}')
    a(f'v_lshl_add_u32 v{vTRA}, v{t}, 9, v{t+1}'); a(f'v_add_u32 v{vTRA}, {sT1}, v{vTRA}'); a(f'v_xor_b32 v{vTRA+1}, 32, v{vTRA}')
    for b in range(2): a(f'v_add_u32 v{vTRB+b}, 0x10000, v{vTRA+b}')

def mod_loads():
    return [f'buffer_load_dwordx4 v[{48+8*vec+4*hf}:{51+8*vec+4*hf}], v{vT+1}, {srd("WS")}, 0 offen offset:{WS_MOD + 2048*vec + 1024*hf} {SC}'
            for vec in range(2) for hf in range(2)]
def clear_flags(a):
    lab = a.newlabel('nz')
    a(f's_lshr_b32 {sT0}, s2, 4'); a(f's_cmp_lg_u32 {sT0}, 3')
    a.raw(f's_cbranch_scc1 {lab}')
    for r in range(4): a.raw(f'v_mov_b32 v{32+r}, 0')
    a.raw(f's_lshl2_add_u32 {sT1}, s2, {sW}'); a.raw(f's_sub_u32 {sT1}, {sT1}, 192'); a.raw(f's_mul_i32 {sT0}, {sT1}, 5120'); a.raw(f's_add_u32 {sT0}, {sT0}, {WS_FLG}')
    for i in range(5):
        if i == 4: a.raw(f's_add_u32 {sT0}, {sT0}, 4096')
        a.raw(f'buffer_store_dwordx4 v[32:35], v{vT}, {srd("WS")}, {sT0} offen offset:{1024*(i%4)} {SC}')
    a.label(lab)
def cleared_signal(a):
    lab = a.newlabel('nz')
    a(f's_lshr_b32 {sT0}, s2, 4'); a(f's_cmp_lg_u32 {sT0}, 3')
    a.raw(f's_cbranch_scc1 {lab}')
    a.raw('s_mov_b64 exec, 1')
    a.raw(f'buffer_atomic_add v{vONE}, v0, {srd("DBG")}, 0 offen offset:136 {SC}')
    a.raw('s_mov_b64 exec, -1')
    a.label(lab)

def ln1_stats(a):
    a.comment('LN1 statistics (rows are held in rotated order)')
    D = 128; R = 32; R2 = 48
    a(f'v_mov_b32 v{vT+1}, 0x3f803f80')
    for i in range(32): a(f'v_mov_b32 v{R+i}, 0')
    for i in range(16):
        for r in range(4):
            a(f'v_dot2c_f32_bf16 v{R+i}, v{XR+4*i+r}, v{vT+1}')
            a(f'v_dot2c_f32_bf16 v{R2+i}, v{XR+4*i+r}, v{XR+4*i+r}')
        for r in range(4):
            a(f'v_lshlrev_b32 v{D+8*i+2*r}, 16, v{XR+4*i+r}')
            a(f'v_and_b32 v{D+8*i+2*r+1}, {sMASK}, v{XR+4*i+r}')
    stamp(a, 'm_pass1')
    a(f'buffer_load_dword v{vPOLL}, off, {srd("DBG")}, 0 {SC}')
    for n in range(OPT['wq0']):
        for x in wq_dma(n, sT1): a(x, ('wq', n))
    butterfly16(a, [R, R2])
    a(f'v_mov_b32 v{vT+1}, {hx(1e-5)}')
    for i in range(4): a(f'v_mul_f32 v{R+i}, {hx(-1.0/512)}, v{R+i}')
    for i in range(4): a(f'v_mul_f32 v{R2+i}, {hx(1.0/512)}, v{R2+i}')
    for i in range(4): a(f'v_fma_f32 v{R2+i}, -v{R+i}, v{R+i}, v{R2+i}')
    for i in range(4): a(f'v_max_f32 v{R2+i}, 0, v{R2+i}')
    for i in range(4): a(f'v_add_f32 v{R2+i}, v{vT+1}, v{R2+i}')
    for i in range(4): a(f'v_rsq_f32 v{R2+i}, v{R2+i}')
    for i in range(4): a(f'v_mul_f32 v{R+i}, v{R+i}, v{R2+i}')
    for q in range(4):
        for i in range(4):
            a(f'v_readlane_b32 s{sST+2*(i+4*q)}, v{R2+i}, {16*q}'); a(f'v_readlane_b32 s{sST+2*(i+4*q)+1}, v{R+i}, {16*q}')
    a(f'v_lshlrev_b32 v{vT+1}, 4, v0')
    a(f'v_cmp_eq_u32 vcc, 0, v{vPOLL}'); a(f's_mov_b32 {sT3}, 0'); a('s_cbranch_vccnz L_nomod')
    for x in mod_loads(): a.raw(x)
    a.raw(f's_mov_b32 {sT3}, 1')
    a.label('L_nomod')
    for i in range(16):
        d = D + 8 * i; sp = f's[{sST+2*i}:{sST+2*i+1}]'
        for r in range(4):
            a(f'v_pk_fma_f32 v[{d+2*r}:{d+2*r+1}], v[{d+2*r}:{d+2*r+1}], {sp}, {sp} op_sel:[0,0,1] op_sel_hi:[1,0,1]')
    a(f's_lshl_b32 {sT0}, {sW}, 14')
    lane_fields(a, vT + 3, [(0, 6, 256), (0, 3, 16)], vT, add=sT0)
    a(f's_lshl_b32 {sT0}, {sG}, 5')
    for i in range(16):
        a(f's_add_u32 {sT0}, {sT0}, 16'); a(f's_and_b32 {sT0}, {sT0}, 0xf0'); a(f'v_xor_b32 v{32+i}, {sT0}, v{vT+3}')

def ln1_apply(a):
    a.comment('h = xn*A + B -> LDS')
    D = 128; M = 48
    lab = a.newlabel('havemod')
    a(f's_cmp_lg_u32 {sT3}, 0'); a.raw(f's_cbranch_scc1 {lab}')
    spin(a, 'DBG', '0', vL4, vPOLL, 1)
    for x in mod_loads(): a.raw(x)
    a.label(lab)
    stamp(a, 'modok')
    a.vm += [({('v', M + 4 * q + r) for r in range(4)}, None) for q in range(4)]
    a = Weave(a, [(x, ('wq', n)) for n in range(OPT['wq0'], 6) for x in wq_dma(n, sT1)], 144 // (4 * (6 - OPT['wq0'])))
    for i in range(16):
        d = D + 8 * i; t = XR + 4 * (i % 8)
        for r in range(4):
            a(f'v_pk_fma_f32 v[{d+2*r}:{d+2*r+1}], v[{d+2*r}:{d+2*r+1}], v[{M+8+2*r}:{M+9+2*r}], v[{M+2*r}:{M+1+2*r}]')
        for r in range(4): a(f'v_cvt_pk_bf16_f32 v{t+r}, v{d+2*r}, v{d+2*r+1}')
        a(f'ds_write_b128 v{32+i}, v[{t}:{t+3}]')
    a.flush()

class Proj:
    LA = 14
    def __init__(self, S, name, sig, ring, res, nlast, bread):
        self.S, self.name, self.sig, self.bread, self.res = S, name, sig, bread, res
        self.g0 = len(S.m); self.use = {}; self.reg = {}; self.done = {}; self.rel = {}; self.need = {}
        acc = self.acc = lambda c, t, qt: vO + 64 * c + 16 * qt + 4 * t
        for n in range(32):
            for t in range(4):
                self.reg[n, t] = (res[n][0], res[n][1] + 4 * t) if n in res else ('v', ring + 4 * ((4 * n + t) % 8))
        def mm(n, t, qt):
            c, k = divmod(n, 16); kind, r = self.reg[n, t]
            g = S.mfma(m16(vr(acc(c, t, qt), 4), vr(r, 4, kind), ar(16 * k + 4 * qt, 4), k == 0))
            self.use.setdefault((n, t), g); self.done[c, qt] = g
        for n in range(32 - nlast):
            for t in range(4):
                for qt in range(4): mm(n, t, qt)
        for qt in range(4):
            for t in range(4):
                for n in range(32 - nlast, 32): mm(n, t, qt)
    def step(self, n): return self.g0 + int(16 * n)
    def a_reads(self, n, t):
        kind, r = self.reg[n, t]
        return [w_read(vr(r + 2 * rr, 2, kind), self.sig(n), t, rr) for rr in range(2)]
    def head(self, a):
        for qt in range(4): a(self.bread(0, qt))
        if 0 not in self.res:
            a.wait_tag((self.name, 0))
            for t in range(4):
                for x in self.a_reads(0, t): a(x, ('ar', 0))
    def reads(self):
        S = self.S
        for n in sorted(range(32), key=lambda n: n in self.res):
            if 0 < n < 16:
                for qt in range(4): S.mem(self.step(n - 1) + 4 * qt, self.bread(n, qt))
            self.rel[n] = self.step(n)
            if n == 0 and 0 not in self.res: continue
            if n in self.res and self.res[n][2] is None: continue
            g = g1 = self.g0 + self.res[n][2] if n in self.res else self.step(n) - self.LA
            for t in range(4):
                g = max(g, g1 + 4 * t)
                for x in self.a_reads(n, t): g = S.mem(g, x, ('ar', n))
                assert g <= self.use[n, t] - 6, (self.name, n, t, g, self.use[n, t])
            S.scal(g1, lambda a, n=n: a.wait_tag((self.name, n)), force=True)
            self.rel[n] = g + 5; self.need[n] = g1
    def stream(self, groups):
        slack = []
        for n, g, items, tag, stride in groups:
            pre = [] if n is None else [lambda a, n=n: a.wait_lds_tag(('ar', n))]
            ge = self.S.group(max(g, self.g0 + 1, -1 if n is None else self.rel[n]), pre + items, tag, stride)
            if tag[0] == self.name: slack.append(self.need[tag[1]] - ge)
        print(self.name, 'DMA slack (gaps)', slack)

def o_convert(qt, packed):
    out = []
    for ap in range(4):
        o = vO + 32 * qt + 8 * ap; t = vS + 4 * ((4 * qt + ap) % 4) if packed else vQ + 16 * ap + 4 * qt
        if packed:
            rp = vR + (qt & ~1); sel = 'op_sel_hi:[1,0]' if qt % 2 == 0 else 'op_sel:[0,1] op_sel_hi:[1,1]'
            for r in range(4): out.append(f'v_pk_mul_f32 v[{o+2*r}:{o+2*r+1}], v[{o+2*r}:{o+2*r+1}], v[{rp}:{rp+1}] {sel}')
        else:
            t = vT
            for r in range(8): out.append(f'v_mul_f32 v{o+r}, v{o+r}, v{vR+qt}')
        for r in range(4): out.append(f'v_cvt_pk_bf16_f32 v{t+r}, v{o+2*r}, v{o+2*r+1}')
        out.append(f'ds_write_b128 v{vH}, v[{t}:{t+3}] offset:{16384*qt + 1024*ap}')
    return out
def l_check(qt):
    return [f'v_accvgpr_read_b32 v{vR+qt}, a{aL+4*qt}',
            f'v_med3_f32 v124, v{vR+qt}, v125, v126',
            f'v_cmp_neq_f32 vcc, v124, v{vR+qt}',
            f'v_rcp_f32 v{vR+qt}, v{vR+qt}',
            f's_or_b64 {sBAD}, {sBAD}, vcc']

def phase_main(a):
    S = Sched2(2)
    hread = lambda k, qt: f'ds_read_b128 {ar(16*k + 4*qt, 4)}, v{vH + k % 2} offset:{16384*qt + 1024*k}'
    Pq = Proj(S, 'wq', wq_sig, 96, {30: ('a', aX, 16 * 28 - 4), 31: ('a', aX + 16, 16 * 29 - 4)}, 2, hread)
    G = len(S.m)
    sreg = lambda m: vS + 8 * (m % 2)
    preg = lambda m: vP + 4 * (m % 2)
    kreg = lambda u, kt, s: aK + 32 * (u % 2) + 16 * kt + 4 * s
    vreg = lambda u, t: aV + 32 * (u % 2) + 4 * t
    qk_g, pv_g, ms = {}, {}, {}
    def qk(m):
        u, qt = divmod(m, 4); qk_g[m] = len(S.m)
        for kt in range(2):
            for s in range(4):
                S.mfma(m16(vr(sreg(m) + 4 * kt, 4), ar(kreg(u, kt, s), 4), vr(vQ + 16 * s + 4 * qt, 4), s == 0))
    def pv(m):
        u, qt = divmod(m, 4); pv_g[m] = len(S.m)
        S.mfma(m16(ar(aL + 4 * qt, 4), ar(aONE, 4), vr(preg(m), 4), u == 0))
        for t in range(8):
            S.mfma(m16(vr(vO + 32 * qt + 4 * t, 4), ar(vreg(u, t), 4), vr(preg(m), 4), u == 0))
    qk(0)
    for m in range(64):
        ms[m] = len(S.m)
        if m < 63: qk(m + 1)
        if m >= 1: pv(m - 1)
    ms[64] = len(S.m)
    pv(63)
    Gend = len(S.m)
    for m in range(64):
        g0 = ms[m]; full = 0 < m < 63
        for e in range(8):
            g = g0 + 2 * e if full else (g0 + e if m == 63 else g0 + 1 + (7 * e) // 8)
            S.valu(g, f'v_exp_f32 v{sreg(m)+e}, v{sreg(m)+e}', force=True)
            if e % 2: S.valu(g + 1 if (full or e < 7) else g + (1 if m == 0 else 1), f'v_cvt_pk_bf16_f32 v{preg(m)+e//2}, v{sreg(m)+e-1}, v{sreg(m)+e}', force=True)
    S.scal(Pq.step(16) + 3, barrier)
    Pq.reads()
    grp = [(n, 0, wq_dma(n + 6), ('wq', n + 6), 2) for n in range(26)]
    grp.insert(24, (None, 0, kv_dma(0, 'K'), ('kvK', 0), 2))
    grp.append((None, 0, kv_dma(0, 'V'), ('kv', 0), 2))
    Pq.stream(grp)
    def q_conv(c, qt, g):
        for ap in range(2):
            q = vQ + 16 * (2 * c + ap) + 4 * qt; o = Pq.acc(c, 2 * ap, qt)
            for r in range(4): g = S.valu(g, f'v_cvt_pk_bf16_f32 v{q+r}, v{o+2*r}, v{o+2*r+1}', limit=g + (99 if c == 0 else 1))
        for ap in range(2):
            q = vQ + 16 * (2 * c + ap) + 4 * qt
            for r in range(2): g = S.valu(g + 1, f'v_permlane16_swap_b32 v{q+r}, v{q+2+r}', limit=g + (99 if c == 0 else 1))
        return g
    g = Pq.step(16) + 6
    for qt in range(4): g = q_conv(0, qt, g)
    S.chain(Pq.step(26) + 2, [f'v_mov_b32 v{vT+2}, 0x3f803f80'] + [f'v_accvgpr_write_b32 a{aONE+r}, v{vT+2}' for r in range(4)])
    LA = 12
    def kv_bar(t, tag):
        def f(a): a.wait_tag((tag, t)); barrier(a)
        return f
    bar = {}
    for u in range(16):
        t = u // 2; base = kv_buf(t) - L_B + 8192 * (u % 2)
        if u == 0:
            bar[0] = S.scal(G - 34, kv_bar(0, 'kvK'))
            kp = [max(bar[0], G - 34 + 2 * i) for i in range(8)]
            gb = S.scal(G - 14, kv_bar(0, 'kv')); vp = [gb + (5 * i) // 4 for i in range(16)]
        else:
            kp = [ms[4*u-3] + o for o in ((7, 9, 11, 15) if u % 2 else (9, 11, 13, 15))] + [ms[4*u-2] + o for o in (1, 3, 7, 9)]
            vp = [ms[4*u-2] + o for o in (11, 15)] + [ms[m] + o for m in (4*u-1, 4*u) for o in (1, 3, 7, 9, 11, 15)] + [ms[4*u+1] + o for o in (1, 3)]
            if u % 2 == 0: bar[t] = S.scal(kp[0], kv_bar(t, 'kv'), force=True)
        for i in range(8):
            kt, s = divmod(i, 4)
            g = S.mem(kp[i], f'ds_read_b128 {ar(kreg(u,kt,s),4)}, v{vK+s} offset:{base + 4096*kt}')
            assert g <= qk_g[4 * u] + i - 6 and (u == 0 or g == kp[i]), ('K', u, i, g)
        for i in range(16):
            tt, r = divmod(i, 2)
            g = S.mem(vp[i], f'ds_read_b64_tr_b16 {ar(vreg(u,tt)+2*r,2)}, v{vTV + tt % 2} offset:{base + 16384 + 4096*r + 256*(tt//2)}')
            assert g <= pv_g[4 * u] + 1 + tt - 5 and (u == 0 or g == vp[i]), ('V', u, i, g, pv_g[4 * u])
    npre = 6
    def pf_wo(a):
        a(f's_lshl_b32 {sT2}, {sN}, 12'); a(f's_lshl_b32 {sT3}, {sG}, 19'); a(f's_add_u32 {sT2}, {sT2}, {sT3}')
        touch(a, 'WO', vT + 3, 32, sT2)
    g = S.chain(S.gend + 1, collect(w64_offsets, vW4, vT, 1024, 4, lambda p: 8 * p))
    assert g < G - 20, g
    S.chain(Pq.step(22), [f'v_lshlrev_b32 v{vH+1}, 4, v0', f'v_add_u32 v{vH}, {sC}, v{vH+1}', f'v_lshlrev_b32 v{vT+3}, 7, v0'])
    def pre_reads(n, g):
        g = S.scal(g, lambda a: a.wait_tag(('wo', n)))
        for t_ in range(4):
            for r in range(2): g = S.mem(g + 1, w_read(ar(aX + 16 * n + 4 * t_ + 2 * r, 2), wo_sig(n), t_, r), ('pr', n))
        return g
    plan = {1: ((), (0, 1, 2, 3)), 2: ((0,), (4,)), 3: ((1,), (5,)), 4: ((2,), (24,)), 5: ((3,), (25,)), 6: ((4,), (22,)), 7: ((5,), (23,))}
    def pf(n, mul, add, nl):
        def f(a):
            a(f's_mul_i32 {sT2}, {sN}, {mul}'); a(f's_add_u32 {sT2}, {sT2}, {add}')
            touch(a, n, vT + 3, nl, sT2)
        return f
    warm = {1: pf_wo}
    for q in range(6): warm[q + 2] = pf('W1' if (q < 3) != bool(OPT['word']) else 'W2', 112 * 128, 38 * 128 * (q % 3), 38 if q % 3 < 2 else 36)
    for t in range(8):
        g = bar[t] + 1 if t else G + 12
        if t < 7:
            g = S.group(g, kv_dma(t + 1, 'K') + [x for x in kv_dma(t + 1, 'V') if not x.startswith('s_add_u32 {so}')], ('kv', t + 1), stride=2)
            assert g < bar[t + 1] - 25, ('kv', t, g, bar[t + 1])
        if t: S.block(g + 12, warm[t])
        rd, ld = plan.get(t, ((), ()))
        for n in rd: g = pre_reads(n, g + 1)
        for n in ld:
            prev = [m for m in range(min(n, 6)) if wo_sig(m) == wo_sig(n)]
            pre = [lambda a, m=prev[-1]: a.wait_lds_tag(('pr', m))] if prev else []
            g = S.group(g + (5 if prev else 1), pre + wo_dma(n), ('wo', n), stride=2)
        print('interval', t, 'side work ends', g, 'next barrier', bar.get(t + 1))
    for qt in range(4): q_conv(1, qt, Pq.done[1, qt] + 4)
    S.block(ms[2], cleared_signal)
    g = S.chain(ms[12], [f'v_and_b32 v{vT+2}, 4, v{vL4}', f'v_lshl_add_u32 v{vT+1}, v{vT+2}, 3, 32',
                         f'buffer_load_dword v{vPOLL}, v{vT+2}, {srd("DBG")}, 0 offen offset:132 {SC}'])
    def chk2(a):
        a(f'v_cmp_gt_u32 vcc, v{vT+1}, v{vPOLL}'); a('s_cbranch_vccnz L_mod2'); a.label('L_mod2j')
    S.block(sorted(b for b in bar.values() if b > g)[1] + 1, chk2)
    if OPT['tlb']:
        def tl(a):
            a(f'v_lshlrev_b32 v{vT}, 20, v0'); a(f's_mul_i32 {sT2}, {sRB}, {OPT["tlb"] - 1}')
            touch(a, 'WS', vT, 32, sT2)
        S.block(ms[57], tl)
    S.chain(ms[50], [f'v_mov_b32 v125, {hx(2.0**-40)}', f'v_mov_b32 v126, {hx(2.0**40)}', f's_mov_b64 {sBAD}, 0'])
    g = S.chain(pv_g[60] + 5, l_check(0))
    ins = o_convert(0, False); gs = max(g + 1, ms[62] + 4)
    prev = gs
    for i, x in enumerate(ins):
        gi = max(prev, gs + (i * (Gend - gs - 1)) // len(ins))
        if x.startswith('ds_'): prev = S.mem(gi + 1, x, force=True)
        else: prev = S.valu(gi, x, force=True)
    for nm, gg in (('q16', Pq.step(16)), ('qend', G), ('a8', ms[32]), ('a16', Gend)):
        S.block(gg, lambda a, nm=nm: stamp(a, nm))
    barrier(a)
    Pq.head(a)
    def drop(item, g):
        ab = OPT['abl']
        if not ab: return False
        if callable(item):
            nm = getattr(item, '__qualname__', '')
            return ('B' in ab and 'kv_bar' in nm and g > G) or ('T' in ab and '.pf.' in nm)
        if g < G: return ('q' in ab and item.startswith('buffer')) or ('r' in ab and item.startswith('ds_read'))
        return ('E' in ab and item.startswith('v_exp')) or ('C' in ab and item.startswith('v_cvt')) or ('R' in ab and item.startswith('ds_read')) \
            or ('D' in ab and item.startswith('buffer')) or ('W' in ab and (srd('WO') in item or (item.startswith('ds_read') and int(item.split('[')[1].split(':')[0]) >= aX)))
    S.emit(a, 'qproj+attn', drop)
    for qt in range(1, 4):
        for x in l_check(qt) + o_convert(qt, True): a(x)
    a(f's_cmp_lg_u64 {sBAD}, 0')
    a.raw('s_cbranch_scc1 L_slow')
    a.label('L_join')
    S = Sched2(2)
    oread = lambda k, qt: f'ds_read_b128 {ar(16*k + 4*qt, 4)}, v{vH+1} offset:{16384*qt + 1024*k}'
    nl = OPT['nlast']
    res = {n: ('a', aX + 16 * n, None) for n in range(6)}
    for n in range(22, 26): res[n] = ('v', 32 + 16 * (n - 22), 16 * (n - 22) + 2)
    for n in range(32 - nl, 32):
        q = n - (32 - nl); res[n] = ('v', 32 + 16 * q, 16 * 28 + 16 * q - 4 if nl == 2 else 16 * 25 + 12 * q - 4)
    Po = Proj(S, 'wo', wo_sig, 96, res, nl, oread)
    gb1 = S.scal(Po.step(16) + 3, barrier)
    Po.reads()
    def p_cvt(c, qt, ap, g, lim):
        o = Po.acc(c, 2 * ap, qt)
        for r in range(4): g = S.valu(g, f'v_cvt_pk_bf16_f32 v{o+r}, v{o+2*r}, v{o+2*r+1}', limit=g + lim)
        return g
    lastst = [0, 0]
    def p_store(c, qt, ap, g):
        o = Po.acc(c, 2 * ap, qt)
        g = max(g, S.scal(max(g - 3, lastst[ap] + 1), f's_add_u32 s{sP+1+ap}, s{sP}, {(8*c + 4*ap + qt) << 20}'))
        lastst[ap] = S.mem(g, f'buffer_store_dwordx4 v[{o}:{o+3}], v{vT}, {srd("WS")}, s{sP+1+ap} offen {SC}', ('p1', c))
        return lastst[ap]
    for q in range(8): gs = p_store(0, q // 2, q % 2, p_cvt(0, q // 2, q % 2, Po.step(16) + 6 + OPT['stsp'] * q, 99) + 1)
    grp = [(None, 0, wo_dma(6), ('wo', 6), 2), (None, 0, wo_dma(7), ('wo', 7), 2)]
    grp += [(n, 0, wo_dma(n - 14), ('wo', n - 14), 2) for n in range(22, 26)]
    grp += [(n, 0, wo_dma(n + 6), ('wo', n + 6), 2) for n in range(6, 16)]
    grp += [(n, Po.step(16) + OPT['wpace'] * (n - 16), wo_dma(n + 10), ('wo', n + 10), OPT['wpace'] // 4 - 1) for n in range(16, 22)]
    grp += [(26, 0, red_dma(), 'rd', 0)]
    grp += [(None, 0, w1_dma(0, i), ('w1', 0), OPT['w1st']) for i in range(4)]
    Po.stream(grp)
    print('c0 stores end at step', (gs - Po.g0) / 16, 'side DMA ends', (S.gend - Po.g0) / 16)
    g = S.chain(2, collect(tail_setup))
    assert g < Po.step(16), g
    S.block(Po.step(16), lambda a: flag_base(a, sWV))
    S.block(gs + OPT['siga'], lambda a: wave_signal(a, ('p1', 0), 1, 8))
    S.block(max(Po.rel[n] for n in range(26, 32)), barrier)
    ge = Po.done[1, 0] + 4
    S.mem(ge - OPT['polla'], f'buffer_load_dword v{vPOLL}, v{vT+1}, {srd("WS")}, {sWV} offen {SC}', force=True)
    assert gs + OPT['siga'] < ge
    def early(a):
        lab = a.newlabel('early')
        a(f'v_cmp_gt_u32 vcc, 1, v{vPOLL}'); a(f's_cbranch_vccnz {lab}')
        for x in part_loads(0): a.raw(x)
        a.raw(f's_mov_b32 {sLD}, 1')
        a.label(lab)
    S.block(ge, early)
    for qt in range(4):
        g = Po.done[1, qt] + 4
        for ap in range(2): g = p_store(1, qt, ap, p_cvt(1, qt, ap, g, 1) + 1)
    for nm, gg in (('wo0', 1), ('wo16', Po.step(16)), ('wo24', Po.step(24)), ('wo32', len(S.m))):
        S.block(gg, lambda a, nm=nm: stamp(a, nm))
    barrier(a)
    Po.head(a)
    def drop2(item, g):
        ab = OPT['abl']
        if callable(item): return False
        if 'p' in ab and item.startswith('buffer_store'):
            a(item.replace(' sc1', ''), ('p1', 0 if g < Po.step(29) else 1)); return True
        return ('1' in ab and srd('W1') in item) or ('s' in ab and item.startswith('buffer_store') and g < Po.step(29))
    S.emit(a, 'wo', drop2)

def slow_path(a):
    a.label('L_slow')
    a.fence()
    vM = vT; vAD = 124; vF = 120; vTR = 125
    a(f's_sub_u32 {sT2}, {sD}, {sC}')
    lane_fields(a, vAD, [(0, 4, 256), (5, 1, 16), (4, 1, 32)], vTR)
    a(f's_sub_u32 {sT0}, {sC}, {L_B}')
    for b in range(2): a(f'v_add_u32 v{vTR+b}, {sT0}, v{vTV+b}')
    a('v_mov_b32 v120, 0')
    for qt in range(4): a(f'v_mov_b32 v{vM+qt}, 0xff800000')
    for r in range(16): a(f'v_accvgpr_write_b32 a{aL+r}, v120')
    for r in range(128): a(f'v_mov_b32 v{vO+r}, 0')
    a('s_mov_b32 s98, 0')
    loop = a.newlabel('slowloop')
    a.fence()
    a.label(loop)
    for hf in range(2):
        a(f's_add_u32 m0, {sC}, {16384*hf}')
        a(f's_add_u32 {sT0}, {sT2}, {4096*hf}')
        for p in range(4): a(dma(sT0, vVD + p % 2, 'V', 1024 * p))
    for kt in range(2):
        a(f's_add_u32 {sT0}, {sT2}, {4096*kt}')
        for s in range(4): a(f'buffer_load_dwordx4 {ar(aK+16*kt+4*s,4)}, v{vAD}, {srd("K")}, {sT0} offen offset:{64*s}')
    a.wait_all()
    for tt in range(8):
        for r in range(2):
            a(f'ds_read_b64_tr_b16 {ar(aV+4*tt+2*r,2)}, v{vTR + tt % 2} offset:{16384*r + 256*(tt//2)}')
    for qt in range(4):
        b = vS; t = vF
        for kt in range(2):
            for s in range(4): a(m16(vr(b + 4 * kt, 4), ar(aK + 16 * kt + 4 * s, 4), vr(vQ + 16 * s + 4 * qt, 4), s == 0))
        a(f'v_max3_f32 v{t}, v{b}, v{b+1}, v{vM+qt}')
        for r in range(2, 8, 2): a(f'v_max3_f32 v{t}, v{b+r}, v{b+r+1}, v{t}')
        for sw in ('16', '32'):
            a(f'v_mov_b32 v{t+1}, v{t}'); a(f'v_permlane{sw}_swap_b32 v{t}, v{t+1}'); a(f'v_max_f32 v{t}, v{t}, v{t+1}')
        a(f'v_sub_f32 v{t+1}, v{vM+qt}, v{t}')
        a(f'v_exp_f32 v{t+1}, v{t+1}')
        a(f'v_mov_b32 v{vM+qt}, v{t}')
        a(f'v_accvgpr_read_b32 v{t+2}, a{aL+4*qt}')
        a(f'v_mul_f32 v{t+2}, v{t+2}, v{t+1}')
        for r in range(4): a(f'v_accvgpr_write_b32 a{aL+4*qt+r}, v{t+2}')
        for r in range(32): a(f'v_mul_f32 v{vO+32*qt+r}, v{vO+32*qt+r}, v{t+1}')
        for r in range(8): a(f'v_sub_f32 v{b+r}, v{b+r}, v{t}')
        for r in range(8): a(f'v_exp_f32 v{b+r}, v{b+r}')
        for r in range(4): a(f'v_cvt_pk_bf16_f32 v{vP+r}, v{b+2*r}, v{b+2*r+1}')
        a(m16(ar(aL + 4 * qt, 4), ar(aONE, 4), vr(vP, 4), False))
        for tt in range(8): a(m16(vr(vO + 32 * qt + 4 * tt, 4), ar(aV + 4 * tt, 4), vr(vP, 4), False))
    a(f's_add_u32 {sT2}, {sT2}, 8192')
    a.fence()
    a('s_add_u32 s98, s98, 1')
    a('s_cmp_lt_u32 s98, 16')
    a.raw(f's_cbranch_scc1 {loop}')
    for qt in range(4):
        a(f'v_accvgpr_read_b32 v{vR+qt}, a{aL+4*qt}'); a(f'v_rcp_f32 v{vR+qt}, v{vR+qt}')
    for qt in range(4):
        for x in o_convert(qt, True): a(x)
    a.fence()
    a.raw('s_branch L_join')

vW1, vL16, vRX, vRM, vPA = 6, 10, 11, 20, 21
def tail_setup(a):
    t = vT + 2
    lane_fields(a, vT, [(3, 1, 16384), (4, 2, 128), (0, 3, 16)], t)
    lane_fields(a, vPA, [(5, 1, 1 << 22), (0, 5, 16)], t)
    a(f's_lshl_b32 {sT2}, {sRB}, 15'); a(f's_lshl_b32 {sT0}, {sW}, 9'); a(f's_add_u32 {sT2}, {sT2}, {sT0}'); a(f's_add_u32 {sT2}, {sT2}, {WS_P1}')
    a(f's_lshl_b32 s{sP}, {sG}, 11'); a(f's_add_u32 s{sP}, s{sP}, {sT2}')
    a(f's_lshr_b32 {sRD}, {sG}, 1'); a(f's_lshl_b32 {sRD}, {sRD}, 20'); a(f's_add_u32 {sRD}, {sRD}, {sT2}')
    a(f's_and_b32 {sT0}, {sG}, 1'); a(f's_lshl_b32 {sT0}, {sT0}, 14'); a(f's_add_u32 {sRD}, {sRD}, {sT0}')
    a(f's_mov_b32 {sLD}, 0')
    a(f'v_and_b32 v{vT+1}, 7, v0'); a(f'v_max_u32 v{vT+1}, 1, v{vT+1}'); a(f'v_xor_b32 v{vT+1}, {sG}, v{vT+1}'); a(f'v_lshlrev_b32 v{vT+1}, 2, v{vT+1}')
    a(f'v_lshlrev_b32 v{vL16}, 4, v0')
    a(f'v_lshlrev_b32 v{vSIG}, 9, v0')
    a(f's_lshl_b32 {sT2}, {sW}, 7'); a(f's_add_u32 {sT2}, {sT2}, {F_A}')
    a(f's_lshl_b32 {sSIG}, {sRB}, 12'); a(f's_lshl_b32 {sT0}, {sG}, 2'); a(f's_add_u32 {sSIG}, {sSIG}, {sT0}'); a(f's_add_u32 {sSIG}, {sSIG}, {sT2}')
    a(f's_lshl_b32 {sWV}, s2, 9'); a(f's_add_u32 {sWV}, {sWV}, {sT2}'); a(f's_lshl_b32 {sWAIT}, s2, 7'); a(f's_add_u32 {sWAIT}, {sWAIT}, {F_B}')
    a(f's_mul_i32 {sRH}, {sRB}, 37'); a(f's_lshr_b32 {sRH}, {sRH}, 9')
    a(f's_mul_i32 {sFS}, {sRH}, 14'); a(f's_sub_u32 {sFS}, {sRB}, {sFS}')
    a(f's_lshl_b32 {sW1}, {sFS}, 8'); a(f's_mul_i32 {sT0}, {sW}, {32*3584}'); a(f's_add_u32 {sW1}, {sW1}, {sT0}')
    w64_offsets(a, vW1, t, 3584, 4, lambda p: 8 * p)
    a(f's_and_b32 {sF}, {sRB}, 7'); a(f's_lshr_b32 {sE}, {sRB}, 3'); a(f's_lshl_b32 {sT0}, {sG}, 2'); a(f's_add_u32 {sE}, {sE}, {sT0}')
    a(f's_mul_i32 {sH}, {sW}, {448*1024}'); a(f's_lshl_b32 {sT0}, {sF}, 7'); a(f's_add_u32 {sH}, {sH}, {sT0}')
    lane_fields(a, vRX, [(4, 2, 1024), (0, 4, 16)], t)
    lane_fields(a, vRM, [(5, 1, 2048), (0, 5, 16)], t)
    a(f's_and_b32 {sT0}, {sW}, 1'); a(f's_lshl_b32 {sT0}, {sT0}, 15'); a(f's_sub_u32 {sT0}, {sT0}, {sC}')
    for b in range(2):
        a(f'v_subrev_u32 v{vTRC+b}, 0x10000, v{vTRA+b}'); a(f'v_add_u32 v{vTW1+b}, {sT0}, v{vTRC+b}')
def w1_dma(b, i, so='{so}'):
    return [f's_add_u32 m0, {sC}, {65536*b + 16384*i}', f's_add_u32 {so}, {sW1}, {128*3584*(2*b + i%2) + 128*(i//2)}'] + \
           [dma(so, vW1 + p, 'W1', 1024 * p) for p in range(4)]
def red_dma():
    return [f's_add_u32 m0, {sC}, {slot_lds(4)}', f's_lshl_b32 {sT1}, s2, 13', f's_lshl_b32 {sT0}, {sW}, 8', f's_add_u32 {sT1}, {sT1}, {sT0}',
            dma(sT1, vRX, 'X', 0), f's_add_u32 {sT1}, {sT1}, 3072', dma(sT1, vRX, 'X', 1024),
            f's_lshl_b32 {sT1}, {sW}, 9', f's_add_u32 {sT1}, {sT1}, {WS_MOD + 4096 - 2048}', dma(sT1, vRM, 'WS', 2048, SC),
            f's_add_u32 {sT1}, {sT1}, 3072', dma(sT1, vRM, 'WS', 3072, SC)]
PL = 128
def part_loads(c):
    out = []; fl = ['sc1', 'sc1 nt', 'sc0 sc1', 'sc0 sc1 nt'][OPT['pfl']]
    for g in range(8):
        if g % 2 == 0: out.append(f's_add_u32 {sT0}, {sRD}, {(c << 23) + 2048*g}')
        out.append(f'buffer_load_dwordx4 v[{PL+32*c+4*g}:{PL+32*c+4*g+3}], v{vPA}, {srd("WS")}, {sT0} offen offset:{2048*(g%2)} {fl}')
    return out

RX, RM, ACC, T = 64, 192, 80, 96
def red_operands(a):
    a.wait_tag('rd')
    lane_fields(a, 120, [(0, 3, 256), (5, 1, 64), (3, 2, 8)], 121)
    lane_fields(a, 121, [(5, 1, 128), (3, 2, 16)], 122)
    a(f's_add_u32 {sT0}, {sC}, {slot_lds(4)}')
    a(f'v_add_u32 v120, {sT0}, v120'); a(f'v_add_u32 v121, {sT0}, v121')
    for c in range(2):
        for hf in range(2): a(f'ds_read_b64 v[{T+4*c+2*hf}:{T+4*c+2*hf+1}], v120 offset:{128*c + 32*hf}')
    for vec in range(3):
        for c in range(2):
            for hf in range(2):
                b = RM + 16 * vec + 8 * c + 4 * hf
                a(f'ds_read_b128 v[{b}:{b+3}], v121 offset:{2048 + 512*vec + 256*c + 64*hf}')
    for r in range(8):
        a(f'v_lshlrev_b32 v{RX+2*r}, 16, v{T+r}'); a(f'v_and_b32 v{RX+2*r+1}, {sMASK}, v{T+r}')
    a('v_mov_b32 v122, 0x3f80'); a('v_mov_b32 v123, 0x3f800000')
def red_sum(a, c):
    P = PL + 32 * c; A = ACC + 8 * c
    for r in range(4):
        a(f'v_lshlrev_b32 v{A+2*r}, 16, v{P+r}'); a(f'v_and_b32 v{A+2*r+1}, {sMASK}, v{P+r}')
    for g in range(1, 8):
        for r in range(4):
            a(f'v_dot2c_f32_bf16 v{A+2*r}, v{P+4*g+r}, v122'); a(f'v_dot2c_f32_bf16 v{A+2*r+1}, v{P+4*g+r}, v123')
    for r in range(4 * c, 4 * c + 4):
        a(f'v_pk_fma_f32 v[{ACC+2*r}:{ACC+2*r+1}], v[{ACC+2*r}:{ACC+2*r+1}], v[{RM+2*r}:{RM+1+2*r}], v[{RX+2*r}:{RX+2*r+1}]')

def late_sum(a, loads):
    l0, l1 = a.newlabel('ls'), a.newlabel('lsj')
    dm = list(a.vm)
    a(f's_cmp_lg_u32 {sLD}, 0'); a.raw(f's_cbranch_scc1 {l0}')
    a.vm = dm + loads; red_sum(a, 1); a.raw(f's_branch {l1}')
    a.label(l0)
    a.vm = loads + dm; red_sum(a, 1)
    a.label(l1)

def allred8(a, r, t):
    a(f'v_add_f32_dpp v{r}, v{r}, v{r} row_ror:8 row_mask:0xf bank_mask:0xf')
    a(f'v_mov_b32 v{t}, v{r}'); a(f'v_permlane16_swap_b32 v{r}, v{t}'); a(f'v_add_f32 v{r}, v{r}, v{t}')
    a(f'v_mov_b32 v{t}, v{r}'); a(f'v_permlane32_swap_b32 v{r}, v{t}'); a(f'v_add_f32 v{r}, v{r}, v{t}')

def red_addr(a):
    lane_fields(a, 125, [(0, 3, 32)], 124, add=slot_lds(5))
    a(f's_lshl_b32 {sT1}, {sW}, 3'); a(f'v_add_u32 v124, {sT1}, v125')
    lane_fields(a, 126, [(3, 3, 256), (0, 3, 16)], 127)
    a(f's_lshr_b32 s{sP}, s2, 1'); a(f's_lshl_b32 s{sP}, s{sP}, 14')
    a(f's_and_b32 {sT1}, s2, 1'); a(f's_lshl_b32 {sT1}, {sT1}, 7'); a(f's_add_u32 s{sP}, s{sP}, {sT1}')
    a(f's_add_u32 s{sP}, s{sP}, {sC}'); a(f's_add_u32 s{sP}, s{sP}, {WS_H2}')
    a(f's_lshl_b32 s{sP+2}, s2, 13'); a(f's_lshl_b32 {sT1}, {sW}, 11'); a(f's_add_u32 s{sP+2}, s{sP+2}, {sT1}'); a(f's_add_u32 s{sP+2}, s{sP+2}, {WS_X1}')
    a(f'v_lshlrev_b32 v{vSIG}, 10, v0')
    a(f's_bfe_u32 {sSIG}, s2, 0x10004'); a(f's_mul_i32 {sSIG}, {sSIG}, {14*8}'); a(f's_lshr_b32 {sT0}, s2, 5'); a(f's_add_u32 {sSIG}, {sSIG}, {sT0}')
    a(f's_lshl_b32 {sSIG}, {sSIG}, 7'); a(f's_and_b32 {sT0}, s2, 15'); a(f's_lshl_b32 {sT0}, {sT0}, 2'); a(f's_add_u32 {sSIG}, {sSIG}, {sT0}')
    a(f's_add_u32 {sSIG}, {sSIG}, {F_B}')

def red_ln(a):
    X1 = 112
    for r in range(4): a(f'v_pk_add_f32 v[{T+2*r}:{T+2*r+1}], v[{ACC+2*r}:{ACC+2*r+1}], v[{ACC+8+2*r}:{ACC+9+2*r}]')
    for r in range(2): a(f'v_pk_add_f32 v[{T+2*r}:{T+2*r+1}], v[{T+2*r}:{T+2*r+1}], v[{T+4+2*r}:{T+5+2*r}]')
    a(f'v_pk_add_f32 v[{T}:{T+1}], v[{T}:{T+1}], v[{T+2}:{T+3}]')
    a(f'v_add_f32 v{T}, v{T}, v{T+1}')
    for r in range(8): a(f'v_cvt_pk_bf16_f32 v{X1+r}, v{ACC+2*r}, v{ACC+2*r+1}')
    allred8(a, T, T + 1)
    a(f'v_mul_f32 v{T}, {hx(-1.0/128)}, v{T}')
    for r in range(8): a(f'v_pk_add_f32 v[{ACC+2*r}:{ACC+2*r+1}], v[{ACC+2*r}:{ACC+2*r+1}], v[{T}:{T+1}] op_sel_hi:[1,0]')
    for h in range(2): a(f'v_pk_mul_f32 v[{T+2+2*h}:{T+3+2*h}], v[{ACC+2*h}:{ACC+2*h+1}], v[{ACC+2*h}:{ACC+2*h+1}]')
    for r in range(2, 8):
        h = r % 2
        a(f'v_pk_fma_f32 v[{T+2+2*h}:{T+3+2*h}], v[{ACC+2*r}:{ACC+2*r+1}], v[{ACC+2*r}:{ACC+2*r+1}], v[{T+2+2*h}:{T+3+2*h}]')
    a(f'v_pk_add_f32 v[{T+2}:{T+3}], v[{T+2}:{T+3}], v[{T+4}:{T+5}]')
    a(f'v_add_f32 v{T+1}, v{T+2}, v{T+3}')
    allred8(a, T + 1, T + 2)
    a(f'ds_write_b64 v124, v[{T}:{T+1}]')
    for i in range(2): a(f'buffer_store_dwordx4 v[{X1+4*i}:{X1+4*i+3}], v{vL16}, {srd("WS")}, s{sP+2} offen offset:{1024*i} {SC}', 'x1')
    barrier(a)
    a(f'ds_read_b128 v[{T+4}:{T+7}], v125'); a(f'ds_read_b128 v[{T+8}:{T+11}], v125 offset:16')
    a(f'v_pk_add_f32 v[{T+12}:{T+13}], v[{T+4}:{T+5}], v[{T+6}:{T+7}]')
    a(f'v_pk_add_f32 v[{T+14}:{T+15}], v[{T+8}:{T+9}], v[{T+10}:{T+11}]')
    a(f'v_pk_add_f32 v[{T+12}:{T+13}], v[{T+12}:{T+13}], v[{T+14}:{T+15}]')
    a(f'v_mul_f32 v{T+12}, {hx(0.25)}, v{T+12}')
    for w in range(4): a(f'v_sub_f32 v{T+4+2*w}, v{T+4+2*w}, v{T+12}')
    a(f'v_mul_f32 v{T+14}, v{T+4}, v{T+4}')
    for w in range(1, 4): a(f'v_fmac_f32 v{T+14}, v{T+4+2*w}, v{T+4+2*w}')
    a(f'v_fmamk_f32 v{T+13}, v{T+14}, {hx(128.0)}, v{T+13}')
    a(f'v_mov_b32 v{T+14}, {hx(1e-5)}')
    a(f'v_fmamk_f32 v{T+13}, v{T+13}, {hx(1.0/512)}, v{T+14}')
    a(f'v_rsq_f32 v{T+13}, v{T+13}')
    a(f'v_sub_f32 v{T+12}, v{T+12}, v{T}')
    a(f'v_mul_f32 v{T+12}, v{T+12}, v{T+13}')
    for i in range(2):
        for r in range(4 * i, 4 * i + 4):
            a(f'v_pk_fma_f32 v[{ACC+2*r}:{ACC+2*r+1}], v[{ACC+2*r}:{ACC+2*r+1}], v[{T+12}:{T+13}], v[{T+12}:{T+13}] op_sel:[0,1,0] op_sel_hi:[1,1,0]')
        for r in range(4 * i, 4 * i + 4):
            a(f'v_pk_fma_f32 v[{ACC+2*r}:{ACC+2*r+1}], v[{ACC+2*r}:{ACC+2*r+1}], v[{RM+32+2*r}:{RM+33+2*r}], v[{RM+16+2*r}:{RM+17+2*r}]')
        for r in range(4 * i, 4 * i + 4): a(f'v_cvt_pk_bf16_f32 v{T+r}, v{ACC+2*r}, v{ACC+2*r+1}')
        a(f'buffer_store_dwordx4 v[{T+4*i}:{T+4*i+3}], v126, {srd("WS")}, s{sP} offen offset:{2048*i} {SC}', 'h2')

def w1_reads(b):
    return [f'ds_read_b64_tr_b16 {ar(128*b + 16*k + 4*t + 2*r, 2)}, v{vTW1 + t % 2} offset:{4096*k + 2048*r + 256*(t//2)}'
            for k in range(8) for t in range(4) for r in range(2)]
class Weave:
    def __init__(self, a, extra, every): self.a, self.extra, self.every, self.n = a, list(extra), every, 0
    def __getattr__(self, k): return getattr(self.a, k)
    def pop(self):
        while self.extra:
            x, tag = self.extra.pop(0); self.a(x, tag)
            if x.startswith('buffer'): break
    def __call__(self, t, tag=None):
        self.a(t, tag); self.n += 1
        if self.n % self.every == 0: self.pop()
    def flush(self):
        while self.extra: self.pop()
W2_LEFT = []
def w2_sig(k): return k - 4 if k < 10 else k - 14
def w2_dma(k, so='{so}'):
    return [f's_add_u32 m0, {sC}, {slot_lds(w2_sig(k))}', f's_add_u32 {so}, {sH}, {32*1024*k}'] + \
           [dma(so, vW4 + p, 'W2', 1024 * p) for p in range(4)]
def w2_reg(k, t): return ('v', 32 + 16 * k + 4 * t) if k < 4 else ('a', 16 * (k - 4) + 4 * t)
def w2_reads(k):
    return [w_read(vr(w2_reg(k, t)[1] + 2 * r, 2, w2_reg(k, t)[0]), w2_sig(k), t, r) for t in range(4) for r in range(2)]
NB2 = 16
def b2_reg(i, k): return 192 + 4 * ((14 * i + k) % NB2)
def b2_load(i, k):
    out = [f's_add_u32 {sT0}, {sH1}, {57344*i + 4096*(k//4)}'] if k % 4 == 0 else []
    return out + [f'buffer_load_dwordx4 {vr(b2_reg(i,k),4)}, v{vL16}, {srd("WS")}, {sT0} offen offset:{1024*(k%4)} {SC}']
def h1_touch(a, i):
    a(f's_mul_i32 {sT2}, {sF}, {14*128}'); a(f's_add_u32 {sT2}, {sT2}, {sH1}'); a(f's_add_u32 {sT2}, {sT2}, {57344*i}')
    touch(a, 'WS', vT + 2, 14, sT2, vT + 3)
PF2 = 10
def g2_head(a):
    h1_touch(a, 0)
    for k in range(PF2):
        for x in b2_load(0, k): a(x)

def mlp_addr(a):
    a(f'v_lshlrev_b32 v{vT+2}, 7, v0'); a(f'v_min_u32 v{vT+1}, {6*128}, v{vT+2}')
    a(f's_mul_i32 {sT0}, {sW}, {7*128}'); a(f's_lshl_b32 {sWV}, {sE}, 12'); a(f's_add_u32 {sWV}, {sWV}, {sT0}'); a(f's_add_u32 {sWV}, {sWV}, {F_C}')
    a(f's_mul_i32 {sH1}, {sE}, {4*57344}'); a(f's_mul_i32 {sT0}, {sW}, {14*1024}'); a(f's_add_u32 {sH1}, {sH1}, {sT0}'); a(f's_add_u32 {sH1}, {sH1}, {WS_H1}')
    a(f's_lshr_b32 {sT1}, {sW}, 1'); a(f's_lshl1_add_u32 {sT2}, {sRH}, {sT1}'); a(f's_lshl2_add_u32 {sR32}, {sG}, {sT2}')
    a(f's_and_b32 {sT3}, {sW}, 1')
    a(f's_lshl_b32 {sH2}, {sR32}, 16'); a(f's_lshl_b32 {sT0}, {sT3}, 13'); a(f's_add_u32 {sH2}, {sH2}, {sT0}'); a(f's_add_u32 {sH2}, {sH2}, {WS_H2}')
    a(f's_lshl1_add_u32 {sT3}, {sFS}, {sT3}')
    a(f's_mul_i32 s{sP}, {sR32}, {4*57344}'); a(f's_lshl_b32 {sT0}, {sT3}, 11'); a(f's_add_u32 s{sP}, s{sP}, {sT0}'); a(f's_add_u32 s{sP}, s{sP}, {WS_H1}')
    for q in range(1, 4): a(f's_add_u32 s{sP+q}, s{sP}, {57344*q}')
    a(f's_lshl_b32 {sSIG}, {sR32}, 12'); a(f's_lshl_b32 {sT0}, {sT3}, 7'); a(f's_add_u32 {sSIG}, {sSIG}, {sT0}'); a(f's_add_u32 {sSIG}, {sSIG}, {F_C}')
    a(f's_lshl_b32 {sD}, {sW}, 13')
    a(f's_lshl_b32 {sT1}, {sT1}, 14'); a(f'v_add_u32 v{vH}, {sT1}, v{vL16}')

vPK = 176
def silu(i):
    o = 128 + 16 * (i % 2); t = 160; ops = []
    for h in range(8):
        m = []
        for r in (2 * h, 2 * h + 1):
            n = len(ops)
            ops += [(f'v_exp_f32 v{t+r}, v{o+r}', []), (f'v_add_f32 v{t+r}, 1.0, v{t+r}', [n]), (f'v_rcp_f32 v{t+r}, v{t+r}', [n + 1]),
                    (f'v_mul_f32 v{t+r}, v{o+r}, v{t+r}', [n + 2])]
            m.append(n + 3)
        ops.append((f'v_cvt_pk_bf16_f32 v{vPK+8*(i%2)+h}, v{t+2*h}, v{t+2*h+1}', m))
    return ops
def h1_store(i, ap):
    o = vPK + 8 * (i % 2) + 4 * ap
    return f'buffer_store_dwordx4 v[{o}:{o+3}], v{vL16}, {srd("WS")}, s{sP+i} offen offset:{1024*ap} {SC}'

def phase_g1(a):
    def h2_dma(i, hf, so='{so}'):
        return [f's_add_u32 m0, {sD}, {32768*(i%2) + 4096*hf}', f's_add_u32 {so}, {sH2}, {16384*i + 4096*hf}'] + \
               [dma(so, vL16, 'WS', 1024 * p, SC) for p in range(4)]
    a(f's_lshl2_add_u32 {sT1}, {sFS}, {sW}'); a(f's_mul_i32 {sT1}, {sT1}, {19*128}')
    a(f's_min_u32 {sT1}, {sT1}, {131072 - 19*128}'); a(f's_andn2_b32 {sT2}, {sH2}, 0x1ffff'); a(f's_add_u32 {sT2}, {sT1}, {sT2}')
    flag_check(a, 'B', 1)
    barrier(a); stamp(a, 'syncB')
    for hf in range(2):
        for x in h2_dma(0, hf, sT1): a(x, ('h2', 0))
    touch(a, 'WS', vT + 2, 19, sT2, vT + 3)
    flag_base(a, sWV)
    S = Sched2(2)
    breg = lambda i, k: 96 + 4 * (k % 8)
    bread = lambda i, k: f'ds_read_b128 {vr(breg(i,k),4)}, v{vH} offset:{32768*(i%2) + 1024*k}'
    for i in range(4):
        for k in range(16):
            for t in range(4): S.mfma(m16(vr(128 + 16 * (i % 2) + 4 * t, 4), ar(16 * k + 4 * t, 4), vr(breg(i, k), 4), k == 0))
    LA = 28; bar = {}
    a.wait_tag(('h2', 0)); barrier(a)
    for i in range(4):
        if i: bar[i] = S.scal(64 * i - (22 if i == 2 else 12), lambda a, i=i: (a.wait_tag(('h2', i)), barrier(a)), force=True)
        g = 0
        for k in range(16):
            g = max(64 * i + 4 * k - LA, bar.get(i, -99), g + 2 if i else -99)
            if g <= 0: a(bread(i, k))
            else: g = S.mem(g, bread(i, k))
            assert g <= 64 * i + 4 * k - 8 or g <= 0
    left = list(W2_LEFT)
    for i in (2, 3):
        for ap in range(2): S.mem(64 * i + 1 + ap, h1_store(i - 2, ap), ('h1', i - 2))
        S.block(64 * i + OPT['sigc'], lambda a, i=i: wave_signal(a, ('h1', i - 2), i - 1, 1))
    for i in range(4):
        g = bar.get(i, 0) + 1
        if i < 3:
            for hf in range(2): g = S.group(g, h2_dma(i + 1, hf), ('h2', i + 1), stride=3)
        else:
            for k in (10, 11): g = S.group(g, w2_dma(k), ('w2', k), stride=3)
        ge = g
        for _ in range(-(-len(left) // (3 - i)) if i < 3 else 0):
            k = left.pop(0); g = S.group(g + 1, w2_dma(k), ('w2', k), stride=2 if i == 0 else 3)
        print('gemm1 stage', i, 'DMA ends', ge - 64 * i, g - 64 * i)
    assert not left
    S.block(192 + OPT['pollc'], lambda a: (barrier(a), [a(x) for x in flag_loads('C')]))
    for i in range(1, 4):
        at = fill(S, silu(i - 1), 64 * i + 3, 64 * i + 63)
        assert max(at.values()) <= 64 * i + 64, max(at.values())
    for nm, gg in (('g0', 1), ('t_g50', 50), ('t_g64', 64), ('g128', 128), ('t_g192', 192), ('g256', 256)): S.block(gg, lambda a, nm=nm: stamp(a, nm))
    S.emit(a, 'gemm1')
    for ap in range(2): a(h1_store(2, ap), ('h1', 2))
    flag_check(a, 'C', 1); stamp(a, 'syncC')
    g2_head(a)
    a.wait_tag(('w2', 11))

vRW, vRR, vXR, vOA, vGB, vRD = 6, 11, 20, 21, 96, 100
def g2_addr(a):
    a(f'v_lshrrev_b32 v{vT}, 4, v0'); a(f'v_and_b32 v{vH+1}, 15, v0')
    a(f'v_xor_b32 v{vRW}, v{vT}, v{vH+1}'); a(f'v_lshlrev_b32 v{vRW}, 4, v{vRW}'); a(f'v_lshl_add_u32 v{vRW}, v{vT}, 8, v{vRW}')
    a(f's_add_u32 {sT1}, {sC}, {L_A}'); a(f'v_add_u32 v{vRW}, {sT1}, v{vRW}')
    for t in range(1, 4): a(f'v_xor_b32 v{vRW+t}, {64*t}, v{vRW}')
    a(f's_lshl_b32 {sT1}, {sW}, 2'); a(f'v_add_u32 v{vT}, {sT1}, v{vT}')
    a(f'v_xor_b32 v{vRR}, v{vT}, v{vH+1}'); a(f'v_lshlrev_b32 v{vRR}, 4, v{vRR}'); a(f'v_lshl_add_u32 v{vRR}, v{vH+1}, 8, v{vRR}')
    a(f'v_add_u32 v{vRR}, {L_A}, v{vRR}')
    a(f'v_lshlrev_b32 v{vOA}, 3, v{vH+1}'); a(f'v_lshl_add_u32 v{vOA}, v{vT}, 10, v{vOA}')
    lane_fields(a, vXR, [(3, 1, 512), (0, 2, 128), (2, 1, 8), (4, 2, 16)], vT, add=slot_lds(4))
    a(f's_lshr_b32 {sT1}, {sW}, 1'); a(f's_lshl_b32 {sT1}, {sT1}, 10'); a(f's_and_b32 {sT2}, {sW}, 1'); a(f's_lshl_b32 {sT2}, {sT2}, 6')
    a(f's_add_u32 {sT1}, {sT1}, {sT2}'); a(f'v_add_u32 v{vXR}, {sT1}, v{vXR}')
    a(f'v_lshlrev_b32 v{vH+1}, 4, v{vH+1}')
    a(f's_lshl_b32 {sA}, {sE}, 16'); a(f's_lshl_b32 {sT1}, {sF}, 7'); a(f's_add_u32 {sB}, {sA}, {sT1}')
    a(f's_lshl_b32 {sT1}, {sW}, 14'); a(f's_add_u32 {sA}, {sA}, {sT1}'); a(f's_lshl_b32 {sT1}, {sF}, 10'); a(f's_add_u32 {sA}, {sA}, {sT1}')
    a(f's_add_u32 {sA}, {sA}, {WS_X1}')
    a(f's_lshl_b32 {sLD}, {sF}, 8'); a(f's_add_u32 {sLD}, {sLD}, {WS_MOD + 2048*5}')

def phase_g2(a):
    for x in flag_loads('C'): a(x)
    for k in range(4, 12):
        for x in w2_reads(k): a(x, ('ar', k))
    for k in (12, 13):
        for x in w2_dma(k, sT1): a(x, ('w2', k))
    S = Sched2(2)
    acc = lambda i, t: 128 + 16 * (i % 2) + 4 * t
    for i in range(4):
        for k in range(14):
            for t in range(4):
                kind, r = w2_reg(k, t)
                S.mfma(m16(vr(acc(i, t), 4), vr(r, 4, kind), vr(b2_reg(i, k), 4), k == 0))
    g = 1
    for n in range(PF2, 56):
        i, k = divmod(n, 14); g = max(g, 4 * (n - PF2) + 2)
        if k == 0:
            S.block(g - 1, lambda a, i=i: stamp(a, f't_pre{i}'))
            S.block(g - 1, lambda a, i=i: (flag_check(a, 'C', i + 1), stamp(a, f't_chk{i}'), h1_touch(a, i)))
        g = S.chain(g, b2_load(i, k))
    S.block(1, lambda a: wave_signal(a, ('h1', 2), 3, 1))
    g = 20
    for k in range(12, 14):
        g = S.scal(g, lambda a, k=k: a.wait_tag(('w2', k)))
        for x in w2_reads(k): g = S.mem(g, x, ('ar', k))
        assert g <= 4 * k - 3, (k, g)
    S.block(g + 6, lambda a: (a.wait_all(vm=False), [a(x) for x in flag_loads('C')]))
    g = S.group(g + 1, [f's_add_u32 m0, {sC}, {slot_lds(4)}', dma(sA, vL16, 'WS', 0, SC), f's_add_u32 {sA}, {sA}, {8192-1024}', dma(sA, vL16, 'WS', 1024, SC)], 'xe')
    S.mem(g + 1, f'buffer_load_dwordx4 v[{vGB}:{vGB+3}], v{vH+1}, {srd("WS")}, {sLD} offen {SC}')
    at = fill(S, silu(3), 1, OPT['silu3'])
    gl = max(at.values())
    assert gl < 55
    for ap in range(2): gl = S.mem(gl + 1, h1_store(3, ap), ('h1', 3))
    S.block(gl + OPT['sig4'], lambda a: wave_signal(a, ('h1', 3), 4, 1))
    def wr(i): return [f'ds_write_b128 v{vRW+t}, v[{acc(i,t)}:{acc(i,t)+3}] offset:{16384*i + 1024*t}' for t in range(4)]
    def rd(i): return [f'ds_read_b128 v[{vRD+4*w}:{vRD+4*w+3}], v{vRR} offset:{16384*i + 4096*w}' for w in range(4)] + \
                      [f'ds_read_b64 v[{vRD+16}:{vRD+17}], v{vXR} offset:{4096*i}']
    def fin(i):
        X = vRD + 16; out = []
        for e in range(4): out += [f'v_add_f32 v{vRD+e}, v{vRD+e}, v{vRD+4+e}', f'v_add_f32 v{vRD+8+e}, v{vRD+8+e}, v{vRD+12+e}']
        out += [f'v_lshlrev_b32 v{X+2}, 16, v{X}', f'v_and_b32 v{X+3}, {sMASK}, v{X}', f'v_lshlrev_b32 v{X+4}, 16, v{X+1}', f'v_and_b32 v{X+5}, {sMASK}, v{X+1}']
        for e in range(4): out.append(f'v_add_f32 v{vRD+e}, v{vRD+e}, v{vRD+8+e}')
        for e in range(4): out.append(f'v_fmac_f32 v{X+2+e}, v{vRD+e}, v{vGB+e}')
        out += [f'v_cvt_pk_bf16_f32 v{X+6+h}, v{X+2+2*h}, v{X+3+2*h}' for h in range(2)]
        out += [f's_add_u32 {sT1}, {sB}, {16384*i}', f'buffer_store_dwordx2 v[{X+6}:{X+7}], v{vOA}, {srd("OUT")}, {sT1} offen']
        return out
    def bar(a): a.wait_tag('xe'); barrier(a)
    for i in range(3):
        g = S.chain(56 * (i + 1) + 4, wr(i), stride=3)
        g = S.scal(g + 8, bar)
        g = S.chain(g, rd(i))
        if i == 0: S.block(g + 7, lambda a: (a.wait_all(vm=False), [a(x) for x in flag_loads('C')]))
        g = S.chain(g + 8, fin(i))
        assert g < 56 * (i + 2) + 4, g
    S.block(40, lambda a: stamp(a, 't_f40')); S.block(56, lambda a: stamp(a, 't_f56')); S.block(90, lambda a: stamp(a, 't_f90'))
    S.block(1, lambda a: stamp(a, 'f0')); S.block(112, lambda a: stamp(a, 'f112')); S.block(224, lambda a: stamp(a, 'f224'))
    S.emit(a, 'gemm2')
    for x in wr(3): a(x)
    barrier(a)
    for x in rd(3) + fin(3): a(x)

def k_mega(a):
    a.raw('s_cmp_ge_u32 s2, 256')
    a.raw('s_cbranch_scc1 L_end')
    stamp_names.append([])
    if OPT['stamps']: a('s_memrealtime s[98:99]'); a('s_memtime s[96:97]')
    else: stamp(a, 'start')
    names = ['WM', 'C', 'X', 'WS', 'DBG', 'WQ', 'K', 'V', 'WO', 'W1', 'W2', 'OUT']
    for n in names: a(f's_load_dwordx2 s[{SRD[n]}:{SRD[n]+1}], s[0:1], {KOFF[n]}')
    a(f's_lshr_b32 {sRB}, s2, 3')
    lc = a.newlabel('nocode')
    a(f's_cmp_ge_u32 {sRB}, 29')
    a.raw(f's_cbranch_scc0 {lc}')
    a.raw('s_getpc_b64 s[66:67]')
    a.label('L_pc')
    a.raw(f's_sub_u32 {sT0}, {sRB}, 29'); a.raw(f's_lshl_b32 {sT0}, {sT0}, 15')
    a.raw(f'v_lshl_add_u32 v2, v0, 7, {sT0}')
    a.raw('v_min_u32 v2, L_code_end - L_pc - 4, v2')
    a.raw('v_mov_b32 v3, s67'); a.raw('v_add_co_u32 v2, vcc, s66, v2'); a.raw('s_nop 1'); a.raw('v_addc_co_u32 v3, vcc, 0, v3, vcc')
    a.raw('global_load_dword v28, v[2:3], off')
    a.label(lc)
    a('v_lshrrev_b32 v1, 6, v0')
    for n in names:
        a(f's_mov_b32 s{SRD[n]+2}, {SIZE[n]}'); a(f's_mov_b32 s{SRD[n]+3}, 0x20000')
    a(f's_and_b32 {sG}, s2, 7')
    a(f'v_readfirstlane_b32 {sW}, v1')
    a('v_and_b32 v0, 63, v0')
    a(f's_mov_b32 {sMASK}, 0xffff0000')
    if OPT['stamps']:
        stamp_names[-1].append('start')
        a('v_writelane_b32 v1, s98, 0'); a('v_writelane_b32 v1, s96, 32')
        stamp(a, 'args')
    a(f's_lshl_b32 {sN}, {sRB}, 2'); a(f's_add_u32 {sN}, {sN}, {sW}')
    a(f's_lshl_b32 {sT2}, {sN}, 14'); a(f's_lshl_b32 {sT3}, {sG}, 11')
    a(f'v_lshlrev_b32 v{vT}, 4, v0'); a(f'v_lshlrev_b32 v{vL4}, 2, v0'); a(f'v_mov_b32 v{vONE}, 1')
    lnp, lj = a.newlabel('noprod'), a.newlabel('prodj')
    a.wait_all()
    a('s_cmp_lt_u32 s2, 48')
    a.raw(f's_cbranch_scc0 {lnp}')
    phase_mod(a)
    a.raw(f's_branch {lj}')
    a.label(lnp)
    a.vm = []; a.lg = []
    a(f's_sub_u32 {sA}, {sN}, 24'); a(f's_min_u32 {sA}, {sA}, 95')
    a(f's_lshr_b32 {sT1}, {sA}, 4'); a(f's_and_b32 {sT0}, {sA}, 15')
    a(f's_mul_i32 {sT0}, {sT0}, {32*6144}'); a(f's_lshl_b32 {sT1}, {sT1}, 10'); a(f's_add_u32 {sT0}, {sT0}, {sT1}')
    a(f's_lshl_b32 {sT1}, {sG}, 7'); a(f's_add_u32 {sT0}, {sT0}, {sT1}')
    lane_fields(a, 2, [(0, 6, 6144)], 3)
    touch(a, 'WM', 2, 32, sT0)
    clear_flags(a)
    if OPT['xwait']: a.raw('s_waitcnt vmcnt(0)'); a.vm = []
    for i in range(4):
        for t in x_load(i): a(t)
    a('v_lshlrev_b32 v2, 7, v0'); a(f's_lshl_b32 {sT0}, {sA}, 12')
    touch(a, 'X', 2, 32, sT0)
    a.vm.pop()
    for i in range(4, 12):
        for t in x_load(i): a(t)
    a.label(lj)
    for i in range(12, 16):
        for t in x_load(i): a(t)
    stamp(a, 'xissue')
    a(f's_lshl_b32 {sT0}, {sN}, 15'); a(f's_lshl_b32 {sT1}, {sG}, 10'); a(f's_add_u32 {sT0}, {sT0}, {sT1}')
    lane_fields(a, 2, [(3, 3, 8192), (0, 3, 128)], 3)
    touch(a, 'WQ', 2, 32, sT0)
    main_setup(a)
    ln1_stats(a); stamp(a, 'stats')
    ln1_apply(a)
    a(f's_lshl_b32 {sT0}, {sN}, 10'); a(f's_lshl_b32 {sT1}, {sG}, 19'); a(f's_add_u32 {sT0}, {sT0}, {sT1}'); a(f's_add_u32 {sT0}, {sT0}, {1536*256}')
    a(f'v_lshlrev_b32 v{vT}, 7, v0')
    touch(a, 'K', vT, 8, sT0); touch(a, 'V', vT, 8, sT0)

    stamp(a, 'apply')
    phase_main(a)
    assert a.vm[-1][1] == ('p1', 1)
    red_operands(a)
    a._wait(vm=OPT['pre2'])
    for x in flag_loads('A'): a(x)
    wave_signal(a, ('p1', 1), 2, 8); stamp(a, 'p1done')
    l0, l1, l2 = (a.newlabel(x) for x in ('c0', 'c1', 'c1j'))
    pl = lambda c: [({('v', PL + 32 * c + 4 * g + r) for r in range(4)}, None) for g in range(8)]
    a(f's_mov_b32 {sT2}, 0')
    for q in range(8):
        a(f's_lshr_b32 s{sFV+q}, s{sFV+q}, 1'); a(f's_lshl1_add_u32 {sT2}, {sT2}, s{sFV+q}')
    a(f's_lshr_b32 {sT3}, 0x80, {sG}'); a(f's_or_b32 {sT2}, {sT2}, {sT3}')
    a(f's_cmp_lg_u32 {sLD}, 0')
    a.raw(f's_cbranch_scc1 {l0}')
    sspin(a, 'A', 1)
    for x in part_loads(0): a.raw(x)
    a.label(l0)
    a.vm += pl(0)
    a(f's_mov_b32 {sLD}, 0')
    a(f's_cmp_lg_u32 {sT2}, 0xff')
    a.raw(f's_cbranch_scc1 {l1}')
    for x in part_loads(1): a.raw(x)
    a.raw(f's_mov_b32 {sLD}, 1')
    a.label(l1)
    a.raw('s_barrier')
    for x in w1_reads(0): a(x)
    for b in range(2): a(f'v_add_u32 v{vTW1+b}, 0x10000, v{vTW1+b}')
    red_addr(a)
    stamp(a, 't_w1')
    l3, l4 = a.newlabel('w'), a.newlabel('wj')
    a(f's_cmp_lg_u32 {sLD}, 0'); a.raw(f's_cbranch_scc1 {l3}')
    a.raw('s_waitcnt vmcnt(0)'); a.label(l3); a.raw('s_waitcnt vmcnt(8)'); a.vm = []
    red_sum(a, 0); stamp(a, 't_sum0')
    for i in range(4):
        for x in w1_dma(1, i, sT1): a(x, ('w1', 1))
    a.wait_all(vm=False)
    a(f's_cmp_lg_u32 {sLD}, 0')
    a.raw(f's_cbranch_scc1 {l2}')
    sspin(a, 'A', 2)
    for x in part_loads(1): a.raw(x)
    a.label(l2)
    stamp(a, 'syncA')
    late_sum(a, pl(1)); stamp(a, 'sum')
    red_ln(a); stamp(a, 'red')
    for k in range(2):
        for x in w2_dma(k, sT1): a(x, ('w2', k))
    a.wait_tag(('w1', 1))
    signal(a, 'h2', 14, 0); stamp(a, 'h2done')
    rest = [2, 3, 8, 9][:OPT['w2b']]
    wv = Weave(a, [(x, ('w2', k)) for k in rest for x in w2_dma(k, sT1)], 4)
    for x in w1_reads(1): wv(x)
    wv.flush()
    W2_LEFT[:] = [k for k in range(4, 10) if k not in rest]
    flag_base(a, sWAIT)
    for x in flag_loads('B'): a(x)
    mlp_addr(a); g2_addr(a)
    for k in range(4):
        a.wait_tag(('w2', k))
        for x in w2_reads(k): a(x)
    stamp(a, 't_w2')
    l1, l2 = a.newlabel('nog1'), a.newlabel('nog1j')
    a(f's_cmp_ge_u32 {sRB}, 28')
    a.raw(f's_cbranch_scc1 {l1}')
    phase_g1(a)
    a.raw(f's_branch {l2}')
    a.label(l1)
    save = (list(a.vm), list(a.lg))
    a.raw('s_waitcnt lgkmcnt(0)'); a.raw('s_barrier')
    for k in W2_LEFT + [10, 11]:
        for x in w2_dma(k, sT1): a.raw(x)
    a.vm = []; a.lg = []
    a(f's_lshl2_add_u32 {sT0}, s2, {sW}'); a(f's_lshl_b32 {sT0}, {sT0}, 12'); a(f's_add_u32 s{sP+3}, {sT0}, {WS_DUMMY - 896*4096}')
    a(f's_add_u32 {sSIG}, s{sP+3}, 2048')
    flag_base(a, sWV)
    sspin(a, 'C', 1)
    g2_head(a)
    a.raw('s_waitcnt vmcnt(0)')
    a.vm, a.lg = save
    a.label(l2)
    stamp(a, 'h1done')
    phase_g2(a)
    stamp_flush(a); a.label('L_end'); a.raw('s_endpgm')
    a.label('L_code_end')
    slow_path(a)
    for l0, l1, kind, lvl in late_spins:
        a.label(l0); sspin(a, kind, lvl); a.raw(f's_branch {l1}')
    a.label('L_mod2')
    spin(a, 'DBG', '0', vL4, vPOLL, 2, 132, f'v{vT+1}')
    a.raw('s_branch L_mod2j')

def main(out):
    ref = open(f'cdna_kernels/{NAME}.s.ref').read().splitlines()
    head = [l for l in ref if l.startswith(';') and '@launch' not in l]
    name = NAME + '_kernel'
    a = Asm(); k_mega(a)
    print('nop states', a.nnop, 'lines', len(a.lines))
    s = '\n'.join(head) + '\n'
    s += f'; @launch grid=(256,1,1) block=(256,1,1) lds={LDS_BYTES}\n'
    s += '.amdgcn_target "amdgcn-amd-amdhsa--gfx950"\n.text\n'
    s += f'.globl {name}\n.p2align 8\n.type {name},@function\n{name}:\n' + a.text()
    s += f""".section .rodata,"a"
.p2align 6
.amdhsa_kernel {name}
  .amdhsa_next_free_vgpr 512
  .amdhsa_next_free_sgpr 102
  .amdhsa_accum_offset 256
  .amdhsa_group_segment_fixed_size 0
  .amdhsa_kernarg_size 104
  .amdhsa_user_sgpr_count 2
  .amdhsa_user_sgpr_kernarg_segment_ptr 1
  .amdhsa_system_sgpr_workgroup_id_x 1
.end_amdhsa_kernel
"""
    open(out, 'w').write(s)
    if OPT['stamps']:
        import json; json.dump(stamp_names, open(out + '.stamps', 'w'))

if __name__ == '__main__':
    for o in sys.argv[2:]:
        k, v = o.split('='); OPT[k] = v if k in ('probe', 'abl') else int(v)
    main(sys.argv[1] if len(sys.argv) > 1 else f'cdna_kernels/{NAME}.s')
```

```python
import sys, struct, math
from asmlib import Asm, Sched2, fill

NAME = 'adaLN_cond__sliding_block_cached__dense_activation_silu__prompt'
def f2u(x): return struct.unpack('<I', struct.pack('<f', x))[0]
def hx(x): return '0x%08x' % f2u(x)
LOG2E = 1.4426950408889634

SRD = dict(X=4, K=8, V=12, WQ=16, WO=20, W1=24, W2=28, C=32, WM=36, OUT=40, DBG=44, WS=48)
KOFF = dict(X=0, K=8, V=16, WQ=24, WO=32, W1=48, W2=56, C=64, WM=72, OUT=80, DBG=88, WS=96)
SIZE = dict(X=2048*512*2, K=8*2048*128*2, V=8*2048*128*2, WQ=512*4096*2, WO=4096*512*2, W1=512*1792*2,
            W2=1792*512*2, C=1024, WM=512*3072*2, OUT=2048*512*2, DBG=256, WS=1 << 28)
def srd(n): return f's[{SRD[n]}:{SRD[n]+3}]'
sW, sG, sRB = 's52', 's53', 's54'
sT0, sT1, sT2, sT3 = 's55', 's56', 's57', 's58'
sMASK = 's59'
sA, sB, sC, sD = 's60', 's61', 's62', 's63'
sST = 64
sN = 's99'
sBAD = 's[64:65]'
sP = 66
sSIG, sWAIT, sLD = 's70', 's71', 's72'
sRH, sR32, sFS = 's73', 's74', 's75'
sE, sF, sH = 's76', 's77', 's78'
sW1, sRD, sH1, sWV, sH2 = 's79', 's80', 's81', 's84', 's85'

WS_MOD = 0
WS_FLG = 0x10000
WS_STAMP = 0x80000
WS_DUMMY = 0x100000
WS_X1 = 0x200000
WS_H2 = 0x400000
WS_H1 = 0x600000
WS_P1 = 0x1000000
SC = 'sc1'
F_A, F_B, F_C = WS_FLG, WS_FLG + 0x20000, WS_FLG + 0x28000

L_B, L_A = 32768, 65536
LDS_BYTES = 163840
def slot_lds(sig): return L_A + 16384 * sig

def vr(b, n=1, k='v'): return f'{k}{b}' if n == 1 else f'{k}[{b}:{b+n-1}]'
def ar(b, n=1): return vr(b, n, 'a')

OPT = dict(stamps=0, probe='', pwg=100, pmul=4, st0=16, abl='', qpace=160, wpace=24, r2=0, stsp=18, siga=48, polla=30, nlast=2, w1st=3, wq0=2, xwait=1, xd=4, tlb=0, sigc=50, pollc=40, sig4=36, pre2=2, silu3=36, w2b=4, pfl=0, word=1)
stamp_names = []
def stamp(a, name):
    if OPT['probe']:
        pa, pb = OPT['probe'].split(':')
        if name == pa: a('s_memrealtime s[100:101]')
        if name == pb: a('s_memrealtime s[96:97]')
    if not OPT['stamps']: return
    if OPT['stamps'] == 3:
        if not name.startswith('t_') and name not in ('args', 'wo32', 'p1done', 'syncA', 'h2done', 'syncB', 'g0', 'g128', 'g256', 'syncC', 'h1done', 'f0', 'f112', 'f224', 'end'): return
    elif name.startswith('t_'): return
    elif name.startswith('m_') != (OPT['stamps'] == 2) and name not in ('args', 'xissue', 'stats', 'modok', 'apply', 'end', 'q16'): return
    i = len(stamp_names[-1]); stamp_names[-1].append(name)
    a('s_memrealtime s[100:101]')
    a(f'v_writelane_b32 v1, s100, {i}')
    a('s_memtime s[100:101]')
    a(f'v_writelane_b32 v1, s100, {32+i}')
def stamp_flush(a):
    if OPT['probe']:
        a.wait_all(); stamp(a, 'end')
        a('s_memrealtime s[94:95]'); a.wait_all()
        a(f's_cmp_lg_u32 s2, {OPT["pwg"]}'); a.raw('s_cbranch_scc1 L_end')
        a('s_sub_u32 s92, s96, s100'); a(f's_mul_i32 s92, s92, {OPT["pmul"]}'); a('s_min_u32 s92, s92, 100000')
        a.label('L_probe')
        a.raw('s_memrealtime s[90:91]'); a.raw('s_waitcnt lgkmcnt(0)'); a.raw('s_sub_u32 s90, s90, s94'); a.raw('s_cmp_lt_u32 s90, s92'); a.raw('s_cbranch_scc1 L_probe')
    if not OPT['stamps']: return
    a.wait_all()
    stamp(a, 'end')
    a(f's_lshl_b32 s100, s2, 10'); a(f's_lshl_b32 s101, {sW}, 8'); a('s_add_u32 s100, s100, s101')
    a(f's_add_u32 s100, s100, {WS_STAMP}')
    a('v_lshlrev_b32 v0, 2, v0')
    a(f'buffer_store_dword v1, v0, {srd("WS")}, s100 offen')

class Collect:
    def __init__(self): self.l = []
    def __call__(self, t, tag=None): self.l.append(t)
def collect(fn, *args, **kw):
    c = Collect(); fn(c, *args, **kw); return c.l

def lane_fields(a, dst, spec, tmp, add=None):
    first = True
    for sh, nb, sc in spec:
        t = dst if first else tmp
        src = t
        if sh == 0 and nb == 6: src = 0
        elif sh == 0: a(f'v_and_b32 v{t}, {(1 << nb) - 1}, v0')
        elif sh + nb == 6: a(f'v_lshrrev_b32 v{t}, {sh}, v0')
        else: a(f'v_bfe_u32 v{t}, v0, {sh}, {nb}')
        if sc & (sc - 1) == 0:
            if first:
                if sc > 1 or src != t: a(f'v_lshlrev_b32 v{t}, {sc.bit_length()-1}, v{src}')
            else: a(f'v_lshl_add_u32 v{dst}, v{src}, {sc.bit_length()-1}, v{dst}')
        else:
            a(f'v_mul_u32_u24 v{t}, {sc}, v{src}')
            if not first: a(f'v_add_u32 v{dst}, v{dst}, v{t}')
        first = False
    if add is not None: a(f'v_add_u32 v{dst}, {add}, v{dst}')

def dma(soff, voff, srdn, imm, fl=''):
    return f'buffer_load_dwordx4 v{voff}, {srd(srdn)}, {soff} offen offset:{imm} {fl + " " if fl else ""}lds'
def barrier(a):
    a.wait_all(vm=False); a.raw('s_barrier')
def set_exec(a, nl):
    if nl == 64: return
    if nl < 32: a.raw(f's_mov_b64 exec, {hex((1 << nl) - 1)}')
    else: a.raw('s_mov_b32 exec_lo, -1'); a.raw(f's_mov_b32 exec_hi, {hex((1 << (nl - 32)) - 1)}')
def touch(a, n, vaddr, nl, soff, dst=28):
    if nl < 64: set_exec(a, nl)
    a.raw(f'buffer_load_dword v{dst}, v{vaddr}, {srd(n)}, {soff} offen'); a.fake_vm(1, None)
    if nl < 64: a.raw('s_mov_b64 exec, -1')

def spin(a, srdn, soff, vaddr, vdst, nl, imm=0, lvl=1):
    loop, out = a.newlabel('poll'), a.newlabel('pollout')
    set_exec(a, nl)
    a.raw('s_mov_b32 s98, 0x200000')
    a.label(loop)
    a.raw(f'buffer_load_dword v{vdst}, v{vaddr}, {srd(srdn)}, {soff} offen offset:{imm} {SC}')
    a.raw('s_sub_u32 s98, s98, 1')
    a.raw(f's_cbranch_scc1 {out}')
    a.raw('s_waitcnt vmcnt(0)')
    a.raw(f'v_cmp_gt_u32 vcc, {lvl}, v{vdst}')
    a.raw('s_nop 0')
    a.raw(f's_cbranch_vccnz {loop}')
    a.label(out)
    a.raw('s_waitcnt vmcnt(0)')
    a.raw('s_mov_b64 exec, -1')
def signal(a, tag, nl, imm):
    a.wait_tag(tag); barrier(a)
    l0 = a.newlabel('sig')
    a(f's_cmp_lg_u32 {sW}, 0')
    a.raw(f's_cbranch_scc1 {l0}')
    set_exec(a, nl)
    a.raw(f'buffer_store_dword v{vONE}, v{vSIG}, {srd("WS")}, {sSIG} offen offset:{imm} {SC}')
    a.raw('s_mov_b64 exec, -1')
    a.label(l0)
def wave_signal(a, tag, lvl, nl, cond=False):
    a(f'v_mov_b32 v{vONE}, {lvl}')
    a.wait_tag(tag)
    l0 = a.newlabel('ws')
    if cond: a(f's_cmp_ge_u32 {sRB}, 28'); a.raw(f's_cbranch_scc1 {l0}')
    set_exec(a, nl)
    a.raw(f'buffer_store_dword v{vONE}, v{vSIG}, {srd("WS")}, {sSIG} offen {SC}')
    a.raw('s_mov_b64 exec, -1')
    if cond: a.label(l0)
    else: a.fake_vm(1, None)
sFP, sFV = 86, 88
late_spins = []
def flag_base(a, soff):
    a(f's_add_u32 s{sFP}, s{SRD["WS"]}, {soff}'); a(f's_addc_u32 s{sFP+1}, s{SRD["WS"]+1}, 0')
def flag_loads(kind):
    if kind == 'C': return [f's_load_dword s{sFV+n}, s[{sFP}:{sFP+1}], {128*n} glc' for n in range(7)]
    out = [f's_load_dwordx8 s[{sFV}:{sFV+7}], s[{sFP}:{sFP+1}], 0 glc']
    if kind == 'B': out.append(f's_load_dwordx8 s[32:39], s[{sFP}:{sFP+1}], 32 glc')
    return out
def flag_test(em, kind, lvl):
    n = 7 if kind == 'C' else 8
    if kind == 'B':
        for q in range(8): em(f's_min_u32 s{sFV+q}, s{sFV+q}, s{32+q}')
    for st in (1, 2, 4):
        for q in range(0, n - st, 2 * st): em(f's_min_u32 s{sFV+q}, s{sFV+q}, s{sFV+q+st}')
    em(f's_cmp_lt_u32 s{sFV}, {lvl}')
def sspin(a, kind, lvl):
    loop, out = a.newlabel('sp'), a.newlabel('spout')
    a.raw('s_mov_b32 s98, 0x200000')
    a.label(loop)
    for x in flag_loads(kind): a.raw(x)
    a.raw('s_sub_u32 s98, s98, 1')
    a.raw('s_waitcnt lgkmcnt(0)')
    a.raw(f's_cbranch_scc1 {out}')
    flag_test(a.raw, kind, lvl)
    a.raw(f's_cbranch_scc1 {loop}')
    a.label(out)
def flag_check(a, kind, lvl):
    l0, l1 = a.newlabel('fc'), a.newlabel('fcj')
    flag_test(a, kind, lvl); a.raw(f's_cbranch_scc1 {l0}'); a.label(l1)
    late_spins.append((l0, l1, kind, lvl))
def await_flags(a, nl, imm, srdn='WS', soff=None):
    l1 = a.newlabel('aw')
    a(f's_cmp_lg_u32 {sW}, 1')
    a.raw(f's_cbranch_scc1 {l1}')
    spin(a, srdn, soff or sWAIT, vL4, vPOLL, nl, imm)
    a.label(l1)
    barrier(a)

vW4, vKD, vVD = 2, 6, 10
vTRA, vTRB, vTV, vK, vH = 12, 14, 16, 18, 22
vTRC, vTW1 = 16, 18
vT = 24
vSIG, vPOLL, vONE, vL4 = 28, 29, 30, 31
vQ, vS, vP, vR, vO = 32, 96, 112, 120, 128
aK, aV, aL, aONE, aX = 0, 64, 128, 144, 160

def m16(d, A, B, first): return f'v_mfma_f32_16x16x32_bf16 {d}, {A}, {B}, {"0" if first else d}'
def m32(d, A, B, first): return f'v_mfma_f32_32x32x16_bf16 {d}, {A}, {B}, {"0" if first else d}'

XR = 64
def x_load(i):
    return [f's_add_u32 {sT3}, {sT3}, 1024', f's_and_b32 {sT3}, {sT3}, 0x3c00', f's_add_u32 {sT0}, {sT2}, {sT3}',
            f'buffer_load_dwordx4 v[{XR+4*i}:{XR+4*i+3}], v{vT}, {srd("X")}, {sT0} offen']

def phase_mod(a):
    a.comment('mod = silu(c) @ w_mod, 64 columns per producer')
    W = 128; SL = 32; SH = 48; ACC = 8
    a(f's_lshl_b32 {sA}, s2, 7')
    a(f's_mul_i32 {sT1}, {sW}, {128*6144}')
    a(f's_add_u32 {sA}, {sA}, {sT1}')
    lane_fields(a, 2, [(3, 3, 16 * 6144), (0, 3, 16)], 3)
    lane_fields(a, 3, [(3, 3, 32)], 4)
    a(f's_lshl_b32 {sB}, {sW}, 8')
    for i in range(2): a(f'buffer_load_dwordx4 v[{16+4*i}:{19+4*i}], v3, {srd("C")}, {sB} offen offset:{16*i}')
    def wl(i):
        a(f'buffer_load_dwordx4 v[{W+4*i}:{W+4*i+3}], v2, {srd("WM")}, {sA} offen')
        if i < 15: a(f's_add_u32 {sA}, {sA}, 6144')
    for i in range(8): wl(i)
    for i in range(8): a(f'v_mov_b32 v{ACC+i}, 0')
    for r in range(8):
        a(f'v_lshlrev_b32 v{SH+2*r}, 16, v{16+r}'); a(f'v_and_b32 v{SH+2*r+1}, {sMASK}, v{16+r}')
    for i in range(16): a(f'v_mul_f32 v{SL+i}, {hx(-LOG2E)}, v{SH+i}')
    for i in range(16): a(f'v_exp_f32 v{SL+i}, v{SL+i}')
    for i in range(16): a(f'v_add_f32 v{SL+i}, 1.0, v{SL+i}')
    for i in range(16): a(f'v_rcp_f32 v{SL+i}, v{SL+i}')
    for i in range(16): a(f'v_mul_f32 v{SH+i}, v{SH+i}, v{SL+i}')
    for i in range(16): a(f'v_cvt_pk_bf16_f32 v{SL+i}, v{SH+i}, 0')
    for i in range(16): a(f'v_lshlrev_b32 v{SH+i}, 16, v{SL+i}')
    stamp(a, 'm_silu')
    for i in range(8, 12): wl(i)
    for i in range(16):
        for r in range(4):
            a(f'v_dot2c_f32_bf16 v{ACC+2*r}, v{W+4*i+r}, v{SL+i}')
            a(f'v_dot2c_f32_bf16 v{ACC+2*r+1}, v{W+4*i+r}, v{SH+i}')
        if i < 4: wl(12 + i)
    stamp(a, 'm_dot16')
    for i in range(4): a(f'v_permlane32_swap_b32 v{ACC+i}, v{ACC+4+i}')
    for i in range(4): a(f'v_add_f32 v{ACC+i}, v{ACC+i}, v{ACC+4+i}')
    for i in range(2): a(f'v_permlane16_swap_b32 v{ACC+i}, v{ACC+2+i}')
    for i in range(2): a(f'v_add_f32 v{ACC+i}, v{ACC+i}, v{ACC+2+i}')
    lane_fields(a, 4, [(0, 3, 32), (4, 2, 8)], 5)
    a(f'v_add_u32 v4, {sB}, v4')
    for i in range(2): a(f'v_add_f32_dpp v{ACC+i}, v{ACC+i}, v{ACC+i} row_ror:8 row_mask:0xf bank_mask:0xf')
    a(f'ds_write_b64 v4, v[{ACC}:{ACC+1}]')
    a(f's_lshr_b32 {sT1}, s2, 3')
    a(f's_mov_b32 {sB}, {hx(LOG2E/math.sqrt(128.0))}')
    a(f's_cmp_eq_u32 {sT1}, 2'); a(f's_cselect_b32 {sB}, 1.0, {sB}')
    a(f's_cmp_ge_u32 {sT1}, 3'); a(f's_cselect_b32 {sB}, {hx(-LOG2E)}, {sB}')
    a(f's_cmp_eq_u32 {sT1}, 5'); a(f's_cselect_b32 {sB}, {hx(-1.0/LOG2E)}, {sB}')
    a(f's_mov_b32 {sC}, 0')
    a(f's_cmp_eq_u32 {sT1}, 1'); a(f's_cselect_b32 {sC}, 1.0, {sC}')
    a(f's_cmp_eq_u32 {sT1}, 4'); a(f's_cselect_b32 {sC}, 1.0, {sC}')
    barrier(a)
    stamp(a, 'm_bar')
    lab = a.newlabel('modskip')
    a(f's_cmp_lg_u32 {sW}, 0')
    a.raw(f's_cbranch_scc1 {lab}')
    for i in range(4): a(f'ds_read_b32 v{ACC+i}, v{vL4} offset:{256*i}')
    lane_fields(a, 4, [(2, 1, 1024), (3, 3, 16), (0, 2, 4)], 5)
    a(f's_lshl_b32 {sT0}, {sG}, 7'); a(f's_lshl_b32 {sT1}, s2, 8'); a(f's_sub_u32 {sT0}, {sT1}, {sT0}')
    a('s_cmp_ge_u32 s2, 16'); a(f's_cselect_b32 {sT1}, {sT1}, {sT0}'); a('s_cselect_b64 vcc, -1, 0')
    a(f'v_cndmask_b32 v4, v4, v{vL4}, vcc')
    a(f'v_add_f32 v8, v8, v9'); a('v_add_f32 v10, v10, v11'); a('v_add_f32 v8, v8, v10')
    a('v_cvt_pk_bf16_f32 v8, v8, v8'); a(f'v_and_b32 v8, {sMASK}, v8')
    a(f'v_add_f32 v8, {sC}, v8')
    a('v_cvt_pk_bf16_f32 v8, v8, v8'); a(f'v_and_b32 v8, {sMASK}, v8')
    a(f'v_mul_f32 v8, {sB}, v8')
    a(f'buffer_store_dword v8, v4, {srd("WS")}, {sT1} offen offset:{WS_MOD} {SC}')
    stamp(a, 'm_st')
    a.label(lab)
    a.vm = []
    XD = OPT['xd']
    for i in range(XD):
        for t in x_load(i): a(t)
    lab = a.newlabel('modskip')
    a(f's_cmp_lg_u32 {sW}, 0')
    a.raw(f's_cbranch_scc1 {lab}')
    a.raw('s_cmp_ge_u32 s2, 16'); a.raw(f's_cselect_b32 {sT1}, 4, 0'); a.raw('s_cselect_b32 s3, 0, 1')
    a.raw(f'v_mov_b32 v{vPOLL}, 1')
    a.raw('s_mov_b64 exec, 1')
    a.raw(f's_waitcnt vmcnt({XD})')
    a.raw(f'buffer_atomic_add v{vPOLL}, v0, {srd("DBG")}, {sT1} offen offset:128 sc0 sc1')
    a.raw('s_mov_b64 exec, -1')
    a.label(lab)
def mod_go(a):
    lab = a.newlabel('nogo')
    a('s_cmp_eq_u32 s3, 0')
    a.raw(f's_cbranch_scc1 {lab}')
    a.raw(f'v_readfirstlane_b32 {sT1}, v{vPOLL}')
    a.raw('s_nop 1')
    a.raw(f's_cmp_lg_u32 {sT1}, 15')
    a.raw(f's_cbranch_scc1 {lab}')
    a.raw('s_mov_b64 exec, 1')
    a.raw(f'buffer_store_dword v{vONE}, v0, {srd("DBG")}, 0 offen {SC}')
    a.raw('s_mov_b64 exec, -1')
    a.label(lab)
    stamp(a, 'm_stdone')

def butterfly16(a, rs):
    for r in rs:
        for i in range(8): a(f'v_permlane32_swap_b32 v{r+i}, v{r+i+8}')
        for i in range(8): a(f'v_add_f32 v{r+i}, v{r+i}, v{r+i+8}')
    for r in rs:
        for i in range(4): a(f'v_permlane16_swap_b32 v{r+i}, v{r+i+4}')
        for i in range(4): a(f'v_add_f32 v{r+i}, v{r+i}, v{r+i+4}')
    for sh in (8, 4, 2, 1):
        for r in rs:
            for i in range(4):
                a(f'v_add_f32_dpp v{r+i}, v{r+i}, v{r+i} row_ror:{sh} row_mask:0xf bank_mask:0xf')

def wq_sig(n): return (n + 4) % 6
def wq_dma(n, so='{so}'):
    c, k = divmod(n, 16)
    return [f's_add_u32 m0, {sC}, {slot_lds(wq_sig(n))}', f's_add_u32 {so}, {sA}, {k*32*8192 + c*128}'] + \
           [dma(so, vW4 + p, 'WQ', 1024 * p) for p in range(4)]
def wo_sig(n):
    return 2 + n % 4 if n < 6 else n % 6 if n < 22 else n - 20 if n < 26 else (n - 10) % 6
def wo_dma(n, so='{so}'):
    c, k = divmod(n, 16)
    return [f's_add_u32 m0, {sC}, {slot_lds(wo_sig(n))}', f's_add_u32 {so}, {sB}, {k*32*1024 + c*128}'] + \
           [dma(so, vW4 + p, 'WO', 1024 * p) for p in range(4)]
def kv_buf(t): return L_B if t % 2 == 0 else L_A
def kv_dma(t, which, so='{so}'):
    out = [f's_add_u32 m0, {sC}, {kv_buf(t) + (0 if which == "K" else 16384)}', f's_add_u32 {so}, {sD}, {t*16384}']
    return out + [dma(so, vKD + p if which == 'K' else vVD + p % 2, which, 1024 * p) for p in range(4)]
def w_read(dst, sig, t, r):
    reg, base = (vTRC, 16384 * (sig + 4)) if sig < 0 else (vTRA, 16384 * sig) if sig < 4 else (vTRB, 16384 * (sig - 4))
    return f'ds_read_b64_tr_b16 {dst}, v{reg + t % 2} offset:{base + 2048*r + 256*(t//2)}'
def w64_offsets(a, dst, tmp, pitch, kq_rows, prow):
    lane_fields(a, dst, [(2, 2, pitch), (4, 1, 64), (5, 1, kq_rows * pitch)], tmp)
    a(f'v_lshrrev_b32 v{tmp}, 4, v0'); a(f'v_and_b32 v{tmp}, 2, v{tmp}'); a(f'v_xor_b32 v{tmp}, v{tmp}, v0')
    a(f'v_and_b32 v{tmp}, 3, v{tmp}'); a(f'v_lshl_add_u32 v{dst}, v{tmp}, 4, v{dst}')
    for p in range(1, 4): a(f'v_add_u32 v{dst+p}, {prow(p)*pitch - 1024*p}, v{dst}')

def main_setup(a):
    a.comment('address set-up')
    t = vT + 1
    a(f's_lshl_b32 {sC}, {sW}, 12')
    w64_offsets(a, vW4, t, 8192, 8, lambda p: 16 * (p & 1) + 4 * (p >> 1))
    a(f's_lshl_b32 {sA}, {sG}, 10'); a(f's_lshl_b32 {sT1}, {sW}, 8'); a(f's_add_u32 {sA}, {sA}, {sT1}')
    a(f's_lshl_b32 {sB}, {sG}, 19'); a(f's_add_u32 {sD}, {sB}, {1536*256}'); a(f's_add_u32 {sD}, {sD}, {sC}')
    a(f's_add_u32 {sB}, {sB}, {sT1}')
    lane_fields(a, vVD, [(0, 2, 16), (2, 2, 256), (4, 2, 64)], t)
    a(f'v_xor_b32 v{vVD+1}, 32, v{vVD}')
    a(f'v_lshrrev_b32 v{t}, 4, v0')
    a(f'v_and_b32 v{t+1}, 15, v0')
    a(f'v_xor_b32 v{t+2}, v{t+1}, v{t}')
    a(f'v_lshlrev_b32 v{t+2}, 4, v{t+2}')
    a(f'v_lshl_add_u32 v{vKD}, v{t}, 8, v{t+2}')
    for p in range(1, 4): a(f'v_xor_b32 v{vKD+p}, {64*p}, v{vKD}')
    a(f'v_mov_b32 v{vH}, v{vKD}'); a(f'v_mov_b32 v{vH+1}, v{vKD+1}')
    lane_fields(a, t + 2, [(5, 1, 1), (4, 1, 2)], t)
    a(f'v_xor_b32 v{t+2}, v{t+2}, v{t+1}')
    a(f'v_lshlrev_b32 v{t+2}, 4, v{t+2}')
    a(f'v_lshl_add_u32 v{vK}, v{t+1}, 8, v{t+2}')
    a(f'v_add_u32 v{vK}, {L_B}, v{vK}')
    for s in range(1, 4): a(f'v_xor_b32 v{vK+s}, {64*s}, v{vK}')
    lane_fields(a, t + 1, [(2, 2, 64), (4, 1, 32), (0, 2, 8)], t)
    a(f'v_lshrrev_b32 v{t}, 4, v0')
    a(f'v_lshl_add_u32 v{vTV}, v{t}, 10, v{t+1}'); a(f'v_add_u32 v{vTV}, {L_B}, v{vTV}'); a(f'v_xor_b32 v{vTV+1}, 32, v{vTV}')
    a(f's_add_u32 {sT1}, {sC}, {L_A}')
    a(f'v_lshl_add_u32 v{vTRA}, v{t}, 9, v{t+1}'); a(f'v_add_u32 v{vTRA}, {sT1}, v{vTRA}'); a(f'v_xor_b32 v{vTRA+1}, 32, v{vTRA}')
    for b in range(2): a(f'v_add_u32 v{vTRB+b}, 0x10000, v{vTRA+b}')

def mod_loads():
    return [f'buffer_load_dwordx4 v[{48+8*vec+4*hf}:{51+8*vec+4*hf}], v{vT+1}, {srd("WS")}, 0 offen offset:{WS_MOD + 2048*vec + 1024*hf} {SC}'
            for vec in range(2) for hf in range(2)]
def clear_flags(a):
    lab = a.newlabel('nz')
    a(f's_lshr_b32 {sT0}, s2, 4'); a(f's_cmp_lg_u32 {sT0}, 3')
    a.raw(f's_cbranch_scc1 {lab}')
    for r in range(4): a.raw(f'v_mov_b32 v{32+r}, 0')
    a.raw(f's_lshl2_add_u32 {sT1}, s2, {sW}'); a.raw(f's_sub_u32 {sT1}, {sT1}, 192'); a.raw(f's_mul_i32 {sT0}, {sT1}, 5120'); a.raw(f's_add_u32 {sT0}, {sT0}, {WS_FLG}')
    for i in range(5):
        if i == 4: a.raw(f's_add_u32 {sT0}, {sT0}, 4096')
        a.raw(f'buffer_store_dwordx4 v[32:35], v{vT}, {srd("WS")}, {sT0} offen offset:{1024*(i%4)} {SC}')
    a.label(lab)
def cleared_signal(a):
    lab = a.newlabel('nz')
    a(f's_lshr_b32 {sT0}, s2, 4'); a(f's_cmp_lg_u32 {sT0}, 3')
    a.raw(f's_cbranch_scc1 {lab}')
    a.raw('s_mov_b64 exec, 1')
    a.raw(f'buffer_atomic_add v{vONE}, v0, {srd("DBG")}, 0 offen offset:136 {SC}')
    a.raw('s_mov_b64 exec, -1')
    a.label(lab)

def ln1_stats(a):
    a.comment('LN1 statistics (rows are held in rotated order)')
    D = 128; R = 32; R2 = 48
    a(f'v_mov_b32 v{vT+1}, 0x3f803f80')
    for i in range(32): a(f'v_mov_b32 v{R+i}, 0')
    for i in range(16):
        for r in range(4):
            a(f'v_dot2c_f32_bf16 v{R+i}, v{XR+4*i+r}, v{vT+1}')
            a(f'v_dot2c_f32_bf16 v{R2+i}, v{XR+4*i+r}, v{XR+4*i+r}')
            if r == 0 and i == OPT['xd']: mod_go(a)
            if r == 0 and i + OPT['xd'] < 16:
                for t in x_load(i + OPT['xd']): a(t)
            if r == 0 and i + OPT['xd'] == 16:
                stamp(a, 'xissue')
                a(f's_lshl_b32 {sT0}, {sN}, 15'); a(f's_lshl_b32 {sT1}, {sG}, 10'); a(f's_add_u32 {sT0}, {sT0}, {sT1}')
                lane_fields(a, vT + 2, [(3, 3, 8192), (0, 3, 128)], vT + 3)
                touch(a, 'WQ', vT + 2, 32, sT0)
        for r in range(4):
            a(f'v_lshlrev_b32 v{D+8*i+2*r}, 16, v{XR+4*i+r}')
            a(f'v_and_b32 v{D+8*i+2*r+1}, {sMASK}, v{XR+4*i+r}')
    stamp(a, 'm_pass1')
    a(f'buffer_load_dword v{vPOLL}, off, {srd("DBG")}, 0 {SC}')
    for n in range(OPT['wq0']):
        for x in wq_dma(n, sT1): a(x, ('wq', n))
    butterfly16(a, [R, R2])
    a(f'v_mov_b32 v{vT+1}, {hx(1e-5)}')
    for i in range(4): a(f'v_mul_f32 v{R+i}, {hx(-1.0/512)}, v{R+i}')
    for i in range(4): a(f'v_mul_f32 v{R2+i}, {hx(1.0/512)}, v{R2+i}')
    for i in range(4): a(f'v_fma_f32 v{R2+i}, -v{R+i}, v{R+i}, v{R2+i}')
    for i in range(4): a(f'v_max_f32 v{R2+i}, 0, v{R2+i}')
    for i in range(4): a(f'v_add_f32 v{R2+i}, v{vT+1}, v{R2+i}')
    for i in range(4): a(f'v_rsq_f32 v{R2+i}, v{R2+i}')
    for i in range(4): a(f'v_mul_f32 v{R+i}, v{R+i}, v{R2+i}')
    for q in range(4):
        for i in range(4):
            a(f'v_readlane_b32 s{sST+2*(i+4*q)}, v{R2+i}, {16*q}'); a(f'v_readlane_b32 s{sST+2*(i+4*q)+1}, v{R+i}, {16*q}')
    a(f'v_lshlrev_b32 v{vT+1}, 4, v0')
    a(f'v_cmp_eq_u32 vcc, 0, v{vPOLL}'); a(f's_mov_b32 {sT3}, 0'); a('s_cbranch_vccnz L_nomod')
    for x in mod_loads(): a.raw(x)
    a.raw(f's_mov_b32 {sT3}, 1')
    a.label('L_nomod')
    for i in range(16):
        d = D + 8 * i; sp = f's[{sST+2*i}:{sST+2*i+1}]'
        for r in range(4):
            a(f'v_pk_fma_f32 v[{d+2*r}:{d+2*r+1}], v[{d+2*r}:{d+2*r+1}], {sp}, {sp} op_sel:[0,0,1] op_sel_hi:[1,0,1]')
    a(f's_lshl_b32 {sT0}, {sW}, 14')
    lane_fields(a, vT + 3, [(0, 6, 256), (0, 3, 16)], vT, add=sT0)
    a(f's_lshl_b32 {sT0}, {sG}, 5')
    for i in range(16):
        a(f's_add_u32 {sT0}, {sT0}, 16'); a(f's_and_b32 {sT0}, {sT0}, 0xf0'); a(f'v_xor_b32 v{32+i}, {sT0}, v{vT+3}')

def ln1_apply(a):
    a.comment('h = xn*A + B -> LDS')
    D = 128; M = 48
    lab = a.newlabel('havemod')
    a(f's_cmp_lg_u32 {sT3}, 0'); a.raw(f's_cbranch_scc1 {lab}')
    spin(a, 'DBG', '0', vL4, vPOLL, 1)
    for x in mod_loads(): a.raw(x)
    a.label(lab)
    stamp(a, 'modok')
    a.vm += [({('v', M + 4 * q + r) for r in range(4)}, None) for q in range(4)]
    a = Weave(a, [(x, ('wq', n)) for n in range(OPT['wq0'], 6) for x in wq_dma(n, sT1)], 144 // (4 * (6 - OPT['wq0'])))
    for i in range(16):
        d = D + 8 * i; t = XR + 4 * (i % 8)
        for r in range(4):
            a(f'v_pk_fma_f32 v[{d+2*r}:{d+2*r+1}], v[{d+2*r}:{d+2*r+1}], v[{M+8+2*r}:{M+9+2*r}], v[{M+2*r}:{M+1+2*r}]')
        for r in range(4): a(f'v_cvt_pk_bf16_f32 v{t+r}, v{d+2*r}, v{d+2*r+1}')
        a(f'ds_write_b128 v{32+i}, v[{t}:{t+3}]')
    a.flush()

class Proj:
    LA = 14
    def __init__(self, S, name, sig, ring, res, nlast, bread):
        self.S, self.name, self.sig, self.bread, self.res = S, name, sig, bread, res
        self.g0 = len(S.m); self.use = {}; self.reg = {}; self.done = {}; self.rel = {}; self.need = {}
        acc = self.acc = lambda c, t, qt: vO + 64 * c + 16 * qt + 4 * t
        for n in range(32):
            for t in range(4):
                self.reg[n, t] = (res[n][0], res[n][1] + 4 * t) if n in res else ('v', ring + 4 * ((4 * n + t) % 8))
        def mm(n, t, qt):
            c, k = divmod(n, 16); kind, r = self.reg[n, t]
            g = S.mfma(m16(vr(acc(c, t, qt), 4), vr(r, 4, kind), ar(16 * k + 4 * qt, 4), k == 0))
            self.use.setdefault((n, t), g); self.done[c, qt] = g
        for n in range(32 - nlast):
            for t in range(4):
                for qt in range(4): mm(n, t, qt)
        for qt in range(4):
            for t in range(4):
                for n in range(32 - nlast, 32): mm(n, t, qt)
    def step(self, n): return self.g0 + int(16 * n)
    def a_reads(self, n, t):
        kind, r = self.reg[n, t]
        return [w_read(vr(r + 2 * rr, 2, kind), self.sig(n), t, rr) for rr in range(2)]
    def head(self, a):
        for qt in range(4): a(self.bread(0, qt))
        if 0 not in self.res:
            a.wait_tag((self.name, 0))
            for t in range(4):
                for x in self.a_reads(0, t): a(x, ('ar', 0))
    def reads(self):
        S = self.S
        for n in sorted(range(32), key=lambda n: n in self.res):
            if 0 < n < 16:
                for qt in range(4): S.mem(self.step(n - 1) + 4 * qt, self.bread(n, qt))
            self.rel[n] = self.step(n)
            if n == 0 and 0 not in self.res: continue
            if n in self.res and self.res[n][2] is None: continue
            g = g1 = self.g0 + self.res[n][2] if n in self.res else self.step(n) - self.LA
            for t in range(4):
                g = max(g, g1 + 4 * t)
                for x in self.a_reads(n, t): g = S.mem(g, x, ('ar', n))
                assert g <= self.use[n, t] - 6, (self.name, n, t, g, self.use[n, t])
            S.scal(g1, lambda a, n=n: a.wait_tag((self.name, n)), force=True)
            self.rel[n] = g + 5; self.need[n] = g1
    def stream(self, groups):
        slack = []
        for n, g, items, tag, stride in groups:
            pre = [] if n is None else [lambda a, n=n: a.wait_lds_tag(('ar', n))]
            ge = self.S.group(max(g, self.g0 + 1, -1 if n is None else self.rel[n]), pre + items, tag, stride)
            if tag[0] == self.name: slack.append(self.need[tag[1]] - ge)
        print(self.name, 'DMA slack (gaps)', slack)

def o_convert(qt, packed):
    out = []
    for ap in range(4):
        o = vO + 32 * qt + 8 * ap; t = vS + 4 * ((4 * qt + ap) % 4) if packed else vQ + 16 * ap + 4 * qt
        if packed:
            rp = vR + (qt & ~1); sel = 'op_sel_hi:[1,0]' if qt % 2 == 0 else 'op_sel:[0,1] op_sel_hi:[1,1]'
            for r in range(4): out.append(f'v_pk_mul_f32 v[{o+2*r}:{o+2*r+1}], v[{o+2*r}:{o+2*r+1}], v[{rp}:{rp+1}] {sel}')
        else:
            t = vT
            for r in range(8): out.append(f'v_mul_f32 v{o+r}, v{o+r}, v{vR+qt}')
        for r in range(4): out.append(f'v_cvt_pk_bf16_f32 v{t+r}, v{o+2*r}, v{o+2*r+1}')
        out.append(f'ds_write_b128 v{vH}, v[{t}:{t+3}] offset:{16384*qt + 1024*ap}')
    return out
def l_check(qt):
    return [f'v_accvgpr_read_b32 v{vR+qt}, a{aL+4*qt}',
            f'v_med3_f32 v124, v{vR+qt}, v125, v126',
            f'v_cmp_neq_f32 vcc, v124, v{vR+qt}',
            f'v_rcp_f32 v{vR+qt}, v{vR+qt}',
            f's_or_b64 {sBAD}, {sBAD}, vcc']

def phase_main(a):
    S = Sched2(2)
    hread = lambda k, qt: f'ds_read_b128 {ar(16*k + 4*qt, 4)}, v{vH + k % 2} offset:{16384*qt + 1024*k}'
    Pq = Proj(S, 'wq', wq_sig, 96, {30: ('a', aX, 16 * 28 - 4), 31: ('a', aX + 16, 16 * 29 - 4)}, 2, hread)
    G = len(S.m)
    sreg = lambda m: vS + 8 * (m % 2)
    preg = lambda m: vP + 4 * (m % 2)
    kreg = lambda u, kt, s: aK + 32 * (u % 2) + 16 * kt + 4 * s
    vreg = lambda u, t: aV + 32 * (u % 2) + 4 * t
    qk_g, pv_g, ms = {}, {}, {}
    def qk(m):
        u, qt = divmod(m, 4); qk_g[m] = len(S.m)
        for kt in range(2):
            for s in range(4):
                S.mfma(m16(vr(sreg(m) + 4 * kt, 4), ar(kreg(u, kt, s), 4), vr(vQ + 16 * s + 4 * qt, 4), s == 0))
    def pv(m):
        u, qt = divmod(m, 4); pv_g[m] = len(S.m)
        S.mfma(m16(ar(aL + 4 * qt, 4), ar(aONE, 4), vr(preg(m), 4), u == 0))
        for t in range(8):
            S.mfma(m16(vr(vO + 32 * qt + 4 * t, 4), ar(vreg(u, t), 4), vr(preg(m), 4), u == 0))
    qk(0)
    for m in range(64):
        ms[m] = len(S.m)
        if m < 63: qk(m + 1)
        if m >= 1: pv(m - 1)
    ms[64] = len(S.m)
    pv(63)
    Gend = len(S.m)
    for m in range(64):
        g0 = ms[m]; full = 0 < m < 63
        for e in range(8):
            g = g0 + 2 * e if full else (g0 + e if m == 63 else g0 + 1 + (7 * e) // 8)
            S.valu(g, f'v_exp_f32 v{sreg(m)+e}, v{sreg(m)+e}', force=True)
            if e % 2: S.valu(g + 1 if (full or e < 7) else g + (1 if m == 0 else 1), f'v_cvt_pk_bf16_f32 v{preg(m)+e//2}, v{sreg(m)+e-1}, v{sreg(m)+e}', force=True)
    S.scal(Pq.step(16) + 3, barrier)
    Pq.reads()
    grp = [(n, 0, wq_dma(n + 6), ('wq', n + 6), 2) for n in range(26)]
    grp.insert(24, (None, 0, kv_dma(0, 'K'), ('kvK', 0), 2))
    grp.append((None, 0, kv_dma(0, 'V'), ('kv', 0), 2))
    Pq.stream(grp)
    def q_conv(c, qt, g):
        for ap in range(2):
            q = vQ + 16 * (2 * c + ap) + 4 * qt; o = Pq.acc(c, 2 * ap, qt)
            for r in range(4): g = S.valu(g, f'v_cvt_pk_bf16_f32 v{q+r}, v{o+2*r}, v{o+2*r+1}', limit=g + (99 if c == 0 else 1))
        for ap in range(2):
            q = vQ + 16 * (2 * c + ap) + 4 * qt
            for r in range(2): g = S.valu(g + 1, f'v_permlane16_swap_b32 v{q+r}, v{q+2+r}', limit=g + (99 if c == 0 else 1))
        return g
    g = Pq.step(16) + 6
    for qt in range(4): g = q_conv(0, qt, g)
    S.chain(Pq.step(26) + 2, [f'v_mov_b32 v{vT+2}, 0x3f803f80'] + [f'v_accvgpr_write_b32 a{aONE+r}, v{vT+2}' for r in range(4)])
    LA = 12
    def kv_bar(t, tag):
        def f(a): a.wait_tag((tag, t)); barrier(a)
        return f
    bar = {}
    for u in range(16):
        t = u // 2; base = kv_buf(t) - L_B + 8192 * (u % 2)
        if u == 0:
            bar[0] = S.scal(G - 34, kv_bar(0, 'kvK'))
            kp = [max(bar[0], G - 34 + 2 * i) for i in range(8)]
            gb = S.scal(G - 14, kv_bar(0, 'kv')); vp = [gb + (5 * i) // 4 for i in range(16)]
        else:
            kp = [ms[4*u-3] + o for o in ((7, 9, 11, 15) if u % 2 else (9, 11, 13, 15))] + [ms[4*u-2] + o for o in (1, 3, 7, 9)]
            vp = [ms[4*u-2] + o for o in (11, 15)] + [ms[m] + o for m in (4*u-1, 4*u) for o in (1, 3, 7, 9, 11, 15)] + [ms[4*u+1] + o for o in (1, 3)]
            if u % 2 == 0: bar[t] = S.scal(kp[0], kv_bar(t, 'kv'), force=True)
        for i in range(8):
            kt, s = divmod(i, 4)
            g = S.mem(kp[i], f'ds_read_b128 {ar(kreg(u,kt,s),4)}, v{vK+s} offset:{base + 4096*kt}')
            assert g <= qk_g[4 * u] + i - 6 and (u == 0 or g == kp[i]), ('K', u, i, g)
        for i in range(16):
            tt, r = divmod(i, 2)
            g = S.mem(vp[i], f'ds_read_b64_tr_b16 {ar(vreg(u,tt)+2*r,2)}, v{vTV + tt % 2} offset:{base + 16384 + 4096*r + 256*(tt//2)}')
            assert g <= pv_g[4 * u] + 1 + tt - 5 and (u == 0 or g == vp[i]), ('V', u, i, g, pv_g[4 * u])
    npre = 6
    def pf_wo(a):
        a(f's_lshl_b32 {sT2}, {sN}, 12'); a(f's_lshl_b32 {sT3}, {sG}, 19'); a(f's_add_u32 {sT2}, {sT2}, {sT3}')
        touch(a, 'WO', vT + 3, 32, sT2)
    g = S.chain(S.gend + 1, collect(w64_offsets, vW4, vT, 1024, 4, lambda p: 8 * p))
    assert g < G - 20, g
    S.chain(Pq.step(22), [f'v_lshlrev_b32 v{vH+1}, 4, v0', f'v_add_u32 v{vH}, {sC}, v{vH+1}', f'v_lshlrev_b32 v{vT+3}, 7, v0'])
    def pre_reads(n, g):
        g = S.scal(g, lambda a: a.wait_tag(('wo', n)))
        for t_ in range(4):
            for r in range(2): g = S.mem(g + 1, w_read(ar(aX + 16 * n + 4 * t_ + 2 * r, 2), wo_sig(n), t_, r), ('pr', n))
        return g
    plan = {1: ((), (0, 1, 2, 3)), 2: ((0,), (4,)), 3: ((1,), (5,)), 4: ((2,), (24,)), 5: ((3,), (25,)), 6: ((4,), (22,)), 7: ((5,), (23,))}
    def pf(n, mul, add, nl):
        def f(a):
            a(f's_mul_i32 {sT2}, {sN}, {mul}'); a(f's_add_u32 {sT2}, {sT2}, {add}')
            touch(a, n, vT + 3, nl, sT2)
        return f
    warm = {1: pf_wo}
    for q in range(6): warm[q + 2] = pf('W1' if (q < 3) != bool(OPT['word']) else 'W2', 112 * 128, 38 * 128 * (q % 3), 38 if q % 3 < 2 else 36)
    for t in range(8):
        g = bar[t] + 1 if t else G + 12
        if t < 7:
            g = S.group(g, kv_dma(t + 1, 'K') + [x for x in kv_dma(t + 1, 'V') if not x.startswith('s_add_u32 {so}')], ('kv', t + 1), stride=2)
            assert g < bar[t + 1] - 25, ('kv', t, g, bar[t + 1])
        if t: S.block(g + 12, warm[t])
        rd, ld = plan.get(t, ((), ()))
        for n in rd: g = pre_reads(n, g + 1)
        for n in ld:
            prev = [m for m in range(min(n, 6)) if wo_sig(m) == wo_sig(n)]
            pre = [lambda a, m=prev[-1]: a.wait_lds_tag(('pr', m))] if prev else []
            g = S.group(g + (5 if prev else 1), pre + wo_dma(n), ('wo', n), stride=2)
        print('interval', t, 'side work ends', g, 'next barrier', bar.get(t + 1))
    for qt in range(4): q_conv(1, qt, Pq.done[1, qt] + 4)
    S.block(ms[2], cleared_signal)
    g = S.chain(ms[12], [f'v_and_b32 v{vT+2}, 4, v{vL4}', f'v_lshl_add_u32 v{vT+1}, v{vT+2}, 3, 32',
                         f'buffer_load_dword v{vPOLL}, v{vT+2}, {srd("DBG")}, 0 offen offset:132 {SC}'])
    def chk2(a):
        a(f'v_cmp_gt_u32 vcc, v{vT+1}, v{vPOLL}'); a('s_cbranch_vccnz L_mod2'); a.label('L_mod2j')
    S.block(sorted(b for b in bar.values() if b > g)[1] + 1, chk2)
    if OPT['tlb']:
        def tl(a):
            a(f'v_lshlrev_b32 v{vT}, 20, v0'); a(f's_mul_i32 {sT2}, {sRB}, {OPT["tlb"] - 1}')
            touch(a, 'WS', vT, 32, sT2)
        S.block(ms[57], tl)
    S.chain(ms[50], [f'v_mov_b32 v125, {hx(2.0**-40)}', f'v_mov_b32 v126, {hx(2.0**40)}', f's_mov_b64 {sBAD}, 0'])
    g = S.chain(pv_g[60] + 5, l_check(0))
    ins = o_convert(0, False); gs = max(g + 1, ms[62] + 4)
    prev = gs
    for i, x in enumerate(ins):
        gi = max(prev, gs + (i * (Gend - gs - 1)) // len(ins))
        if x.startswith('ds_'): prev = S.mem(gi + 1, x, force=True)
        else: prev = S.valu(gi, x, force=True)
    for nm, gg in (('q16', Pq.step(16)), ('qend', G), ('a8', ms[32]), ('a16', Gend)):
        S.block(gg, lambda a, nm=nm: stamp(a, nm))
    barrier(a)
    Pq.head(a)
    def drop(item, g):
        ab = OPT['abl']
        if not ab: return False
        if callable(item):
            nm = getattr(item, '__qualname__', '')
            return ('B' in ab and 'kv_bar' in nm and g > G) or ('T' in ab and '.pf.' in nm)
        if g < G: return ('q' in ab and item.startswith('buffer')) or ('r' in ab and item.startswith('ds_read'))
        return ('E' in ab and item.startswith('v_exp')) or ('C' in ab and item.startswith('v_cvt')) or ('R' in ab and item.startswith('ds_read')) \
            or ('D' in ab and item.startswith('buffer')) or ('W' in ab and (srd('WO') in item or (item.startswith('ds_read') and int(item.split('[')[1].split(':')[0]) >= aX)))
    S.emit(a, 'qproj+attn', drop)
    for qt in range(1, 4):
        for x in l_check(qt) + o_convert(qt, True): a(x)
    a(f's_cmp_lg_u64 {sBAD}, 0')
    a.raw('s_cbranch_scc1 L_slow')
    a.label('L_join')
    S = Sched2(2)
    oread = lambda k, qt: f'ds_read_b128 {ar(16*k + 4*qt, 4)}, v{vH+1} offset:{16384*qt + 1024*k}'
    nl = OPT['nlast']
    res = {n: ('a', aX + 16 * n, None) for n in range(6)}
    for n in range(22, 26): res[n] = ('v', 32 + 16 * (n - 22), 16 * (n - 22) + 2)
    for n in range(32 - nl, 32):
        q = n - (32 - nl); res[n] = ('v', 32 + 16 * q, 16 * 28 + 16 * q - 4 if nl == 2 else 16 * 25 + 12 * q - 4)
    Po = Proj(S, 'wo', wo_sig, 96, res, nl, oread)
    gb1 = S.scal(Po.step(16) + 3, barrier)
    Po.reads()
    def p_cvt(c, qt, ap, g, lim):
        o = Po.acc(c, 2 * ap, qt)
        for r in range(4): g = S.valu(g, f'v_cvt_pk_bf16_f32 v{o+r}, v{o+2*r}, v{o+2*r+1}', limit=g + lim)
        return g
    lastst = [0, 0]
    def p_store(c, qt, ap, g):
        o = Po.acc(c, 2 * ap, qt)
        g = max(g, S.scal(max(g - 3, lastst[ap] + 1), f's_add_u32 s{sP+1+ap}, s{sP}, {(8*c + 4*ap + qt) << 20}'))
        lastst[ap] = S.mem(g, f'buffer_store_dwordx4 v[{o}:{o+3}], v{vT}, {srd("WS")}, s{sP+1+ap} offen {SC}', ('p1', c))
        return lastst[ap]
    for q in range(8): gs = p_store(0, q // 2, q % 2, p_cvt(0, q // 2, q % 2, Po.step(16) + 6 + OPT['stsp'] * q, 99) + 1)
    grp = [(None, 0, wo_dma(6), ('wo', 6), 2), (None, 0, wo_dma(7), ('wo', 7), 2)]
    grp += [(n, 0, wo_dma(n - 14), ('wo', n - 14), 2) for n in range(22, 26)]
    grp += [(n, 0, wo_dma(n + 6), ('wo', n + 6), 2) for n in range(6, 16)]
    grp += [(n, Po.step(16) + OPT['wpace'] * (n - 16), wo_dma(n + 10), ('wo', n + 10), OPT['wpace'] // 4 - 1) for n in range(16, 22)]
    grp += [(26, 0, red_dma(), 'rd', 0)]
    grp += [(None, 0, w1_dma(0, i), ('w1', 0), OPT['w1st']) for i in range(4)]
    Po.stream(grp)
    print('c0 stores end at step', (gs - Po.g0) / 16, 'side DMA ends', (S.gend - Po.g0) / 16)
    g = S.chain(2, collect(tail_setup))
    assert g < Po.step(16), g
    S.block(Po.step(16), lambda a: flag_base(a, sWV))
    S.block(gs + OPT['siga'], lambda a: wave_signal(a, ('p1', 0), 1, 8))
    S.block(max(Po.rel[n] for n in range(26, 32)), barrier)
    ge = Po.done[1, 0] + 4
    S.mem(ge - OPT['polla'], f'buffer_load_dword v{vPOLL}, v{vT+1}, {srd("WS")}, {sWV} offen {SC}', force=True)
    assert gs + OPT['siga'] < ge
    def early(a):
        lab = a.newlabel('early')
        a(f'v_cmp_gt_u32 vcc, 1, v{vPOLL}'); a(f's_cbranch_vccnz {lab}')
        for x in part_loads(0): a.raw(x)
        a.raw(f's_mov_b32 {sLD}, 1')
        a.label(lab)
    S.block(ge, early)
    for qt in range(4):
        g = Po.done[1, qt] + 4
        for ap in range(2): g = p_store(1, qt, ap, p_cvt(1, qt, ap, g, 1) + 1)
    for nm, gg in (('wo0', 1), ('wo16', Po.step(16)), ('wo24', Po.step(24)), ('wo32', len(S.m))):
        S.block(gg, lambda a, nm=nm: stamp(a, nm))
    barrier(a)
    Po.head(a)
    def drop2(item, g):
        ab = OPT['abl']
        if callable(item): return False
        if 'p' in ab and item.startswith('buffer_store'):
            a(item.replace(' sc1', ''), ('p1', 0 if g < Po.step(29) else 1)); return True
        return ('1' in ab and srd('W1') in item) or ('s' in ab and item.startswith('buffer_store') and g < Po.step(29))
    S.emit(a, 'wo', drop2)

def slow_path(a):
    a.label('L_slow')
    a.fence()
    vM = vT; vAD = 124; vF = 120; vTR = 125
    a(f's_sub_u32 {sT2}, {sD}, {sC}')
    lane_fields(a, vAD, [(0, 4, 256), (5, 1, 16), (4, 1, 32)], vTR)
    a(f's_sub_u32 {sT0}, {sC}, {L_B}')
    for b in range(2): a(f'v_add_u32 v{vTR+b}, {sT0}, v{vTV+b}')
    a('v_mov_b32 v120, 0')
    for qt in range(4): a(f'v_mov_b32 v{vM+qt}, 0xff800000')
    for r in range(16): a(f'v_accvgpr_write_b32 a{aL+r}, v120')
    for r in range(128): a(f'v_mov_b32 v{vO+r}, 0')
    a('s_mov_b32 s98, 0')
    loop = a.newlabel('slowloop')
    a.fence()
    a.label(loop)
    for hf in range(2):
        a(f's_add_u32 m0, {sC}, {16384*hf}')
        a(f's_add_u32 {sT0}, {sT2}, {4096*hf}')
        for p in range(4): a(dma(sT0, vVD + p % 2, 'V', 1024 * p))
    for kt in range(2):
        a(f's_add_u32 {sT0}, {sT2}, {4096*kt}')
        for s in range(4): a(f'buffer_load_dwordx4 {ar(aK+16*kt+4*s,4)}, v{vAD}, {srd("K")}, {sT0} offen offset:{64*s}')
    a.wait_all()
    for tt in range(8):
        for r in range(2):
            a(f'ds_read_b64_tr_b16 {ar(aV+4*tt+2*r,2)}, v{vTR + tt % 2} offset:{16384*r + 256*(tt//2)}')
    for qt in range(4):
        b = vS; t = vF
        for kt in range(2):
            for s in range(4): a(m16(vr(b + 4 * kt, 4), ar(aK + 16 * kt + 4 * s, 4), vr(vQ + 16 * s + 4 * qt, 4), s == 0))
        a(f'v_max3_f32 v{t}, v{b}, v{b+1}, v{vM+qt}')
        for r in range(2, 8, 2): a(f'v_max3_f32 v{t}, v{b+r}, v{b+r+1}, v{t}')
        for sw in ('16', '32'):
            a(f'v_mov_b32 v{t+1}, v{t}'); a(f'v_permlane{sw}_swap_b32 v{t}, v{t+1}'); a(f'v_max_f32 v{t}, v{t}, v{t+1}')
        a(f'v_sub_f32 v{t+1}, v{vM+qt}, v{t}')
        a(f'v_exp_f32 v{t+1}, v{t+1}')
        a(f'v_mov_b32 v{vM+qt}, v{t}')
        a(f'v_accvgpr_read_b32 v{t+2}, a{aL+4*qt}')
        a(f'v_mul_f32 v{t+2}, v{t+2}, v{t+1}')
        for r in range(4): a(f'v_accvgpr_write_b32 a{aL+4*qt+r}, v{t+2}')
        for r in range(32): a(f'v_mul_f32 v{vO+32*qt+r}, v{vO+32*qt+r}, v{t+1}')
        for r in range(8): a(f'v_sub_f32 v{b+r}, v{b+r}, v{t}')
        for r in range(8): a(f'v_exp_f32 v{b+r}, v{b+r}')
        for r in range(4): a(f'v_cvt_pk_bf16_f32 v{vP+r}, v{b+2*r}, v{b+2*r+1}')
        a(m16(ar(aL + 4 * qt, 4), ar(aONE, 4), vr(vP, 4), False))
        for tt in range(8): a(m16(vr(vO + 32 * qt + 4 * tt, 4), ar(aV + 4 * tt, 4), vr(vP, 4), False))
    a(f's_add_u32 {sT2}, {sT2}, 8192')
    a.fence()
    a('s_add_u32 s98, s98, 1')
    a('s_cmp_lt_u32 s98, 16')
    a.raw(f's_cbranch_scc1 {loop}')
    for qt in range(4):
        a(f'v_accvgpr_read_b32 v{vR+qt}, a{aL+4*qt}'); a(f'v_rcp_f32 v{vR+qt}, v{vR+qt}')
    for qt in range(4):
        for x in o_convert(qt, True): a(x)
    a.fence()
    a.raw('s_branch L_join')

vW1, vL16, vRX, vRM, vPA = 6, 10, 11, 20, 21
def tail_setup(a):
    t = vT + 2
    lane_fields(a, vT, [(3, 1, 16384), (4, 2, 128), (0, 3, 16)], t)
    lane_fields(a, vPA, [(5, 1, 1 << 22), (0, 5, 16)], t)
    a(f's_lshl_b32 {sT2}, {sRB}, 15'); a(f's_lshl_b32 {sT0}, {sW}, 9'); a(f's_add_u32 {sT2}, {sT2}, {sT0}'); a(f's_add_u32 {sT2}, {sT2}, {WS_P1}')
    a(f's_lshl_b32 s{sP}, {sG}, 11'); a(f's_add_u32 s{sP}, s{sP}, {sT2}')
    a(f's_lshr_b32 {sRD}, {sG}, 1'); a(f's_lshl_b32 {sRD}, {sRD}, 20'); a(f's_add_u32 {sRD}, {sRD}, {sT2}')
    a(f's_and_b32 {sT0}, {sG}, 1'); a(f's_lshl_b32 {sT0}, {sT0}, 14'); a(f's_add_u32 {sRD}, {sRD}, {sT0}')
    a(f's_mov_b32 {sLD}, 0')
    a(f'v_and_b32 v{vT+1}, 7, v0'); a(f'v_max_u32 v{vT+1}, 1, v{vT+1}'); a(f'v_xor_b32 v{vT+1}, {sG}, v{vT+1}'); a(f'v_lshlrev_b32 v{vT+1}, 2, v{vT+1}')
    a(f'v_lshlrev_b32 v{vL16}, 4, v0')
    a(f'v_lshlrev_b32 v{vSIG}, 9, v0')
    a(f's_lshl_b32 {sT2}, {sW}, 7'); a(f's_add_u32 {sT2}, {sT2}, {F_A}')
    a(f's_lshl_b32 {sSIG}, {sRB}, 12'); a(f's_lshl_b32 {sT0}, {sG}, 2'); a(f's_add_u32 {sSIG}, {sSIG}, {sT0}'); a(f's_add_u32 {sSIG}, {sSIG}, {sT2}')
    a(f's_lshl_b32 {sWV}, s2, 9'); a(f's_add_u32 {sWV}, {sWV}, {sT2}'); a(f's_lshl_b32 {sWAIT}, s2, 7'); a(f's_add_u32 {sWAIT}, {sWAIT}, {F_B}')
    a(f's_mul_i32 {sRH}, {sRB}, 37'); a(f's_lshr_b32 {sRH}, {sRH}, 9')
    a(f's_mul_i32 {sFS}, {sRH}, 14'); a(f's_sub_u32 {sFS}, {sRB}, {sFS}')
    a(f's_lshl_b32 {sW1}, {sFS}, 8'); a(f's_mul_i32 {sT0}, {sW}, {32*3584}'); a(f's_add_u32 {sW1}, {sW1}, {sT0}')
    w64_offsets(a, vW1, t, 3584, 4, lambda p: 8 * p)
    a(f's_and_b32 {sF}, {sRB}, 7'); a(f's_lshr_b32 {sE}, {sRB}, 3'); a(f's_lshl_b32 {sT0}, {sG}, 2'); a(f's_add_u32 {sE}, {sE}, {sT0}')
    a(f's_mul_i32 {sH}, {sW}, {448*1024}'); a(f's_lshl_b32 {sT0}, {sF}, 7'); a(f's_add_u32 {sH}, {sH}, {sT0}')
    lane_fields(a, vRX, [(4, 2, 1024), (0, 4, 16)], t)
    lane_fields(a, vRM, [(5, 1, 2048), (0, 5, 16)], t)
    a(f's_and_b32 {sT0}, {sW}, 1'); a(f's_lshl_b32 {sT0}, {sT0}, 15'); a(f's_sub_u32 {sT0}, {sT0}, {sC}')
    for b in range(2):
        a(f'v_subrev_u32 v{vTRC+b}, 0x10000, v{vTRA+b}'); a(f'v_add_u32 v{vTW1+b}, {sT0}, v{vTRC+b}')
def w1_dma(b, i, so='{so}'):
    return [f's_add_u32 m0, {sC}, {65536*b + 16384*i}', f's_add_u32 {so}, {sW1}, {128*3584*(2*b + i%2) + 128*(i//2)}'] + \
           [dma(so, vW1 + p, 'W1', 1024 * p) for p in range(4)]
def red_dma():
    return [f's_add_u32 m0, {sC}, {slot_lds(4)}', f's_lshl_b32 {sT1}, s2, 13', f's_lshl_b32 {sT0}, {sW}, 8', f's_add_u32 {sT1}, {sT1}, {sT0}',
            dma(sT1, vRX, 'X', 0), f's_add_u32 {sT1}, {sT1}, 3072', dma(sT1, vRX, 'X', 1024),
            f's_lshl_b32 {sT1}, {sW}, 9', f's_add_u32 {sT1}, {sT1}, {WS_MOD + 4096 - 2048}', dma(sT1, vRM, 'WS', 2048, SC),
            f's_add_u32 {sT1}, {sT1}, 3072', dma(sT1, vRM, 'WS', 3072, SC)]
PL = 128
def part_loads(c):
    out = []; fl = ['sc1', 'sc1 nt', 'sc0 sc1', 'sc0 sc1 nt'][OPT['pfl']]
    for g in range(8):
        if g % 2 == 0: out.append(f's_add_u32 {sT0}, {sRD}, {(c << 23) + 2048*g}')
        out.append(f'buffer_load_dwordx4 v[{PL+32*c+4*g}:{PL+32*c+4*g+3}], v{vPA}, {srd("WS")}, {sT0} offen offset:{2048*(g%2)} {fl}')
    return out

RX, RM, ACC, T = 64, 192, 80, 96
def red_operands(a):
    a.wait_tag('rd')
    lane_fields(a, 120, [(0, 3, 256), (5, 1, 64), (3, 2, 8)], 121)
    lane_fields(a, 121, [(5, 1, 128), (3, 2, 16)], 122)
    a(f's_add_u32 {sT0}, {sC}, {slot_lds(4)}')
    a(f'v_add_u32 v120, {sT0}, v120'); a(f'v_add_u32 v121, {sT0}, v121')
    for c in range(2):
        for hf in range(2): a(f'ds_read_b64 v[{T+4*c+2*hf}:{T+4*c+2*hf+1}], v120 offset:{128*c + 32*hf}')
    for vec in range(3):
        for c in range(2):
            for hf in range(2):
                b = RM + 16 * vec + 8 * c + 4 * hf
                a(f'ds_read_b128 v[{b}:{b+3}], v121 offset:{2048 + 512*vec + 256*c + 64*hf}')
    for r in range(8):
        a(f'v_lshlrev_b32 v{RX+2*r}, 16, v{T+r}'); a(f'v_and_b32 v{RX+2*r+1}, {sMASK}, v{T+r}')
    a('v_mov_b32 v122, 0x3f80'); a('v_mov_b32 v123, 0x3f800000')
def red_sum(a, c):
    P = PL + 32 * c; A = ACC + 8 * c
    for r in range(4):
        a(f'v_lshlrev_b32 v{A+2*r}, 16, v{P+r}'); a(f'v_and_b32 v{A+2*r+1}, {sMASK}, v{P+r}')
    for g in range(1, 8):
        for r in range(4):
            a(f'v_dot2c_f32_bf16 v{A+2*r}, v{P+4*g+r}, v122'); a(f'v_dot2c_f32_bf16 v{A+2*r+1}, v{P+4*g+r}, v123')
    for r in range(4 * c, 4 * c + 4):
        a(f'v_pk_fma_f32 v[{ACC+2*r}:{ACC+2*r+1}], v[{ACC+2*r}:{ACC+2*r+1}], v[{RM+2*r}:{RM+1+2*r}], v[{RX+2*r}:{RX+2*r+1}]')

def late_sum(a, loads):
    l0, l1 = a.newlabel('ls'), a.newlabel('lsj')
    dm = list(a.vm)
    a(f's_cmp_lg_u32 {sLD}, 0'); a.raw(f's_cbranch_scc1 {l0}')
    a.vm = dm + loads; red_sum(a, 1); a.raw(f's_branch {l1}')
    a.label(l0)
    a.vm = loads + dm; red_sum(a, 1)
    a.label(l1)

def allred8(a, r, t):
    a(f'v_add_f32_dpp v{r}, v{r}, v{r} row_ror:8 row_mask:0xf bank_mask:0xf')
    a(f'v_mov_b32 v{t}, v{r}'); a(f'v_permlane16_swap_b32 v{r}, v{t}'); a(f'v_add_f32 v{r}, v{r}, v{t}')
    a(f'v_mov_b32 v{t}, v{r}'); a(f'v_permlane32_swap_b32 v{r}, v{t}'); a(f'v_add_f32 v{r}, v{r}, v{t}')

def red_addr(a):
    lane_fields(a, 125, [(0, 3, 32)], 124, add=slot_lds(5))
    a(f's_lshl_b32 {sT1}, {sW}, 3'); a(f'v_add_u32 v124, {sT1}, v125')
    lane_fields(a, 126, [(3, 3, 256), (0, 3, 16)], 127)
    a(f's_lshr_b32 s{sP}, s2, 1'); a(f's_lshl_b32 s{sP}, s{sP}, 14')
    a(f's_and_b32 {sT1}, s2, 1'); a(f's_lshl_b32 {sT1}, {sT1}, 7'); a(f's_add_u32 s{sP}, s{sP}, {sT1}')
    a(f's_add_u32 s{sP}, s{sP}, {sC}'); a(f's_add_u32 s{sP}, s{sP}, {WS_H2}')
    a(f's_lshl_b32 s{sP+2}, s2, 13'); a(f's_lshl_b32 {sT1}, {sW}, 11'); a(f's_add_u32 s{sP+2}, s{sP+2}, {sT1}'); a(f's_add_u32 s{sP+2}, s{sP+2}, {WS_X1}')
    a(f'v_lshlrev_b32 v{vSIG}, 10, v0')
    a(f's_bfe_u32 {sSIG}, s2, 0x10004'); a(f's_mul_i32 {sSIG}, {sSIG}, {14*8}'); a(f's_lshr_b32 {sT0}, s2, 5'); a(f's_add_u32 {sSIG}, {sSIG}, {sT0}')
    a(f's_lshl_b32 {sSIG}, {sSIG}, 7'); a(f's_and_b32 {sT0}, s2, 15'); a(f's_lshl_b32 {sT0}, {sT0}, 2'); a(f's_add_u32 {sSIG}, {sSIG}, {sT0}')
    a(f's_add_u32 {sSIG}, {sSIG}, {F_B}')

def red_ln(a):
    X1 = 112
    for r in range(4): a(f'v_pk_add_f32 v[{T+2*r}:{T+2*r+1}], v[{ACC+2*r}:{ACC+2*r+1}], v[{ACC+8+2*r}:{ACC+9+2*r}]')
    for r in range(2): a(f'v_pk_add_f32 v[{T+2*r}:{T+2*r+1}], v[{T+2*r}:{T+2*r+1}], v[{T+4+2*r}:{T+5+2*r}]')
    a(f'v_pk_add_f32 v[{T}:{T+1}], v[{T}:{T+1}], v[{T+2}:{T+3}]')
    a(f'v_add_f32 v{T}, v{T}, v{T+1}')
    for r in range(8): a(f'v_cvt_pk_bf16_f32 v{X1+r}, v{ACC+2*r}, v{ACC+2*r+1}')
    allred8(a, T, T + 1)
    a(f'v_mul_f32 v{T}, {hx(-1.0/128)}, v{T}')
    for r in range(8): a(f'v_pk_add_f32 v[{ACC+2*r}:{ACC+2*r+1}], v[{ACC+2*r}:{ACC+2*r+1}], v[{T}:{T+1}] op_sel_hi:[1,0]')
    for h in range(2): a(f'v_pk_mul_f32 v[{T+2+2*h}:{T+3+2*h}], v[{ACC+2*h}:{ACC+2*h+1}], v[{ACC+2*h}:{ACC+2*h+1}]')
    for r in range(2, 8):
        h = r % 2
        a(f'v_pk_fma_f32 v[{T+2+2*h}:{T+3+2*h}], v[{ACC+2*r}:{ACC+2*r+1}], v[{ACC+2*r}:{ACC+2*r+1}], v[{T+2+2*h}:{T+3+2*h}]')
    a(f'v_pk_add_f32 v[{T+2}:{T+3}], v[{T+2}:{T+3}], v[{T+4}:{T+5}]')
    a(f'v_add_f32 v{T+1}, v{T+2}, v{T+3}')
    allred8(a, T + 1, T + 2)
    a(f'ds_write_b64 v124, v[{T}:{T+1}]')
    for i in range(2): a(f'buffer_store_dwordx4 v[{X1+4*i}:{X1+4*i+3}], v{vL16}, {srd("WS")}, s{sP+2} offen offset:{1024*i} {SC}', 'x1')
    barrier(a)
    a(f'ds_read_b128 v[{T+4}:{T+7}], v125'); a(f'ds_read_b128 v[{T+8}:{T+11}], v125 offset:16')
    a(f'v_pk_add_f32 v[{T+12}:{T+13}], v[{T+4}:{T+5}], v[{T+6}:{T+7}]')
    a(f'v_pk_add_f32 v[{T+14}:{T+15}], v[{T+8}:{T+9}], v[{T+10}:{T+11}]')
    a(f'v_pk_add_f32 v[{T+12}:{T+13}], v[{T+12}:{T+13}], v[{T+14}:{T+15}]')
    a(f'v_mul_f32 v{T+12}, {hx(0.25)}, v{T+12}')
    for w in range(4): a(f'v_sub_f32 v{T+4+2*w}, v{T+4+2*w}, v{T+12}')
    a(f'v_mul_f32 v{T+14}, v{T+4}, v{T+4}')
    for w in range(1, 4): a(f'v_fmac_f32 v{T+14}, v{T+4+2*w}, v{T+4+2*w}')
    a(f'v_fmamk_f32 v{T+13}, v{T+14}, {hx(128.0)}, v{T+13}')
    a(f'v_mov_b32 v{T+14}, {hx(1e-5)}')
    a(f'v_fmamk_f32 v{T+13}, v{T+13}, {hx(1.0/512)}, v{T+14}')
    a(f'v_rsq_f32 v{T+13}, v{T+13}')
    a(f'v_sub_f32 v{T+12}, v{T+12}, v{T}')
    a(f'v_mul_f32 v{T+12}, v{T+12}, v{T+13}')
    for i in range(2):
        for r in range(4 * i, 4 * i + 4):
            a(f'v_pk_fma_f32 v[{ACC+2*r}:{ACC+2*r+1}], v[{ACC+2*r}:{ACC+2*r+1}], v[{T+12}:{T+13}], v[{T+12}:{T+13}] op_sel:[0,1,0] op_sel_hi:[1,1,0]')
        for r in range(4 * i, 4 * i + 4):
            a(f'v_pk_fma_f32 v[{ACC+2*r}:{ACC+2*r+1}], v[{ACC+2*r}:{ACC+2*r+1}], v[{RM+32+2*r}:{RM+33+2*r}], v[{RM+16+2*r}:{RM+17+2*r}]')
        for r in range(4 * i, 4 * i + 4): a(f'v_cvt_pk_bf16_f32 v{T+r}, v{ACC+2*r}, v{ACC+2*r+1}')
        a(f'buffer_store_dwordx4 v[{T+4*i}:{T+4*i+3}], v126, {srd("WS")}, s{sP} offen offset:{2048*i} {SC}', 'h2')

def w1_reads(b):
    return [f'ds_read_b64_tr_b16 {ar(128*b + 16*k + 4*t + 2*r, 2)}, v{vTW1 + t % 2} offset:{4096*k + 2048*r + 256*(t//2)}'
            for k in range(8) for t in range(4) for r in range(2)]
class Weave:
    def __init__(self, a, extra, every): self.a, self.extra, self.every, self.n = a, list(extra), every, 0
    def __getattr__(self, k): return getattr(self.a, k)
    def pop(self):
        while self.extra:
            x, tag = self.extra.pop(0); self.a(x, tag)
            if x.startswith('buffer'): break
    def __call__(self, t, tag=None):
        self.a(t, tag); self.n += 1
        if self.n % self.every == 0: self.pop()
    def flush(self):
        while self.extra: self.pop()
W2_LEFT = []
def w2_sig(k): return k - 4 if k < 10 else k - 14
def w2_dma(k, so='{so}'):
    return [f's_add_u32 m0, {sC}, {slot_lds(w2_sig(k))}', f's_add_u32 {so}, {sH}, {32*1024*k}'] + \
           [dma(so, vW4 + p, 'W2', 1024 * p) for p in range(4)]
def w2_reg(k, t): return ('v', 32 + 16 * k + 4 * t) if k < 4 else ('a', 16 * (k - 4) + 4 * t)
def w2_reads(k):
    return [w_read(vr(w2_reg(k, t)[1] + 2 * r, 2, w2_reg(k, t)[0]), w2_sig(k), t, r) for t in range(4) for r in range(2)]
NB2 = 16
def b2_reg(i, k): return 192 + 4 * ((14 * i + k) % NB2)
def b2_load(i, k):
    out = [f's_add_u32 {sT0}, {sH1}, {57344*i + 4096*(k//4)}'] if k % 4 == 0 else []
    return out + [f'buffer_load_dwordx4 {vr(b2_reg(i,k),4)}, v{vL16}, {srd("WS")}, {sT0} offen offset:{1024*(k%4)} {SC}']
def h1_touch(a, i):
    a(f's_mul_i32 {sT2}, {sF}, {14*128}'); a(f's_add_u32 {sT2}, {sT2}, {sH1}'); a(f's_add_u32 {sT2}, {sT2}, {57344*i}')
    touch(a, 'WS', vT + 2, 14, sT2, vT + 3)
PF2 = 10
def g2_head(a):
    h1_touch(a, 0)
    for k in range(PF2):
        for x in b2_load(0, k): a(x)

def mlp_addr(a):
    a(f'v_lshlrev_b32 v{vT+2}, 7, v0'); a(f'v_min_u32 v{vT+1}, {6*128}, v{vT+2}')
    a(f's_mul_i32 {sT0}, {sW}, {7*128}'); a(f's_lshl_b32 {sWV}, {sE}, 12'); a(f's_add_u32 {sWV}, {sWV}, {sT0}'); a(f's_add_u32 {sWV}, {sWV}, {F_C}')
    a(f's_mul_i32 {sH1}, {sE}, {4*57344}'); a(f's_mul_i32 {sT0}, {sW}, {14*1024}'); a(f's_add_u32 {sH1}, {sH1}, {sT0}'); a(f's_add_u32 {sH1}, {sH1}, {WS_H1}')
    a(f's_lshr_b32 {sT1}, {sW}, 1'); a(f's_lshl1_add_u32 {sT2}, {sRH}, {sT1}'); a(f's_lshl2_add_u32 {sR32}, {sG}, {sT2}')
    a(f's_and_b32 {sT3}, {sW}, 1')
    a(f's_lshl_b32 {sH2}, {sR32}, 16'); a(f's_lshl_b32 {sT0}, {sT3}, 13'); a(f's_add_u32 {sH2}, {sH2}, {sT0}'); a(f's_add_u32 {sH2}, {sH2}, {WS_H2}')
    a(f's_lshl1_add_u32 {sT3}, {sFS}, {sT3}')
    a(f's_mul_i32 s{sP}, {sR32}, {4*57344}'); a(f's_lshl_b32 {sT0}, {sT3}, 11'); a(f's_add_u32 s{sP}, s{sP}, {sT0}'); a(f's_add_u32 s{sP}, s{sP}, {WS_H1}')
    for q in range(1, 4): a(f's_add_u32 s{sP+q}, s{sP}, {57344*q}')
    a(f's_lshl_b32 {sSIG}, {sR32}, 12'); a(f's_lshl_b32 {sT0}, {sT3}, 7'); a(f's_add_u32 {sSIG}, {sSIG}, {sT0}'); a(f's_add_u32 {sSIG}, {sSIG}, {F_C}')
    a(f's_lshl_b32 {sD}, {sW}, 13')
    a(f's_lshl_b32 {sT1}, {sT1}, 14'); a(f'v_add_u32 v{vH}, {sT1}, v{vL16}')

vPK = 176
def silu(i):
    o = 128 + 16 * (i % 2); t = 160; ops = []
    for h in range(8):
        m = []
        for r in (2 * h, 2 * h + 1):
            n = len(ops)
            ops += [(f'v_exp_f32 v{t+r}, v{o+r}', []), (f'v_add_f32 v{t+r}, 1.0, v{t+r}', [n]), (f'v_rcp_f32 v{t+r}, v{t+r}', [n + 1]),
                    (f'v_mul_f32 v{t+r}, v{o+r}, v{t+r}', [n + 2])]
            m.append(n + 3)
        ops.append((f'v_cvt_pk_bf16_f32 v{vPK+8*(i%2)+h}, v{t+2*h}, v{t+2*h+1}', m))
    return ops
def h1_store(i, ap):
    o = vPK + 8 * (i % 2) + 4 * ap
    return f'buffer_store_dwordx4 v[{o}:{o+3}], v{vL16}, {srd("WS")}, s{sP+i} offen offset:{1024*ap} {SC}'

def phase_g1(a):
    def h2_dma(i, hf, so='{so}'):
        return [f's_add_u32 m0, {sD}, {32768*(i%2) + 4096*hf}', f's_add_u32 {so}, {sH2}, {16384*i + 4096*hf}'] + \
               [dma(so, vL16, 'WS', 1024 * p, SC) for p in range(4)]
    a(f's_lshl2_add_u32 {sT1}, {sFS}, {sW}'); a(f's_mul_i32 {sT1}, {sT1}, {19*128}')
    a(f's_min_u32 {sT1}, {sT1}, {131072 - 19*128}'); a(f's_andn2_b32 {sT2}, {sH2}, 0x1ffff'); a(f's_add_u32 {sT2}, {sT1}, {sT2}')
    flag_check(a, 'B', 1)
    barrier(a); stamp(a, 'syncB')
    for hf in range(2):
        for x in h2_dma(0, hf, sT1): a(x, ('h2', 0))
    touch(a, 'WS', vT + 2, 19, sT2, vT + 3)
    flag_base(a, sWV)
    S = Sched2(2)
    breg = lambda i, k: 96 + 4 * (k % 8)
    bread = lambda i, k: f'ds_read_b128 {vr(breg(i,k),4)}, v{vH} offset:{32768*(i%2) + 1024*k}'
    for i in range(4):
        for k in range(16):
            for t in range(4): S.mfma(m16(vr(128 + 16 * (i % 2) + 4 * t, 4), ar(16 * k + 4 * t, 4), vr(breg(i, k), 4), k == 0))
    LA = 28; bar = {}
    a.wait_tag(('h2', 0)); barrier(a)
    for i in range(4):
        if i: bar[i] = S.scal(64 * i - (22 if i == 2 else 12), lambda a, i=i: (a.wait_tag(('h2', i)), barrier(a)), force=True)
        g = 0
        for k in range(16):
            g = max(64 * i + 4 * k - LA, bar.get(i, -99), g + 2 if i else -99)
            if g <= 0: a(bread(i, k))
            else: g = S.mem(g, bread(i, k))
            assert g <= 64 * i + 4 * k - 8 or g <= 0
    left = list(W2_LEFT)
    for i in (2, 3):
        for ap in range(2): S.mem(64 * i + 1 + ap, h1_store(i - 2, ap), ('h1', i - 2))
        S.block(64 * i + OPT['sigc'], lambda a, i=i: wave_signal(a, ('h1', i - 2), i - 1, 1))
    for i in range(4):
        g = bar.get(i, 0) + 1
        if i < 3:
            for hf in range(2): g = S.group(g, h2_dma(i + 1, hf), ('h2', i + 1), stride=3)
        else:
            for k in (10, 11): g = S.group(g, w2_dma(k), ('w2', k), stride=3)
        ge = g
        for _ in range(-(-len(left) // (3 - i)) if i < 3 else 0):
            k = left.pop(0); g = S.group(g + 1, w2_dma(k), ('w2', k), stride=2 if i == 0 else 3)
        print('gemm1 stage', i, 'DMA ends', ge - 64 * i, g - 64 * i)
    assert not left
    S.block(192 + OPT['pollc'], lambda a: (barrier(a), [a(x) for x in flag_loads('C')]))
    for i in range(1, 4):
        at = fill(S, silu(i - 1), 64 * i + 3, 64 * i + 63)
        assert max(at.values()) <= 64 * i + 64, max(at.values())
    for nm, gg in (('g0', 1), ('t_g50', 50), ('t_g64', 64), ('g128', 128), ('t_g192', 192), ('g256', 256)): S.block(gg, lambda a, nm=nm: stamp(a, nm))
    S.emit(a, 'gemm1')
    for ap in range(2): a(h1_store(2, ap), ('h1', 2))
    flag_check(a, 'C', 1); stamp(a, 'syncC')
    g2_head(a)
    a.wait_tag(('w2', 11))

vRW, vRR, vXR, vOA, vGB, vRD = 6, 11, 20, 21, 96, 100
def g2_addr(a):
    a(f'v_lshrrev_b32 v{vT}, 4, v0'); a(f'v_and_b32 v{vH+1}, 15, v0')
    a(f'v_xor_b32 v{vRW}, v{vT}, v{vH+1}'); a(f'v_lshlrev_b32 v{vRW}, 4, v{vRW}'); a(f'v_lshl_add_u32 v{vRW}, v{vT}, 8, v{vRW}')
    a(f's_add_u32 {sT1}, {sC}, {L_A}'); a(f'v_add_u32 v{vRW}, {sT1}, v{vRW}')
    for t in range(1, 4): a(f'v_xor_b32 v{vRW+t}, {64*t}, v{vRW}')
    a(f's_lshl_b32 {sT1}, {sW}, 2'); a(f'v_add_u32 v{vT}, {sT1}, v{vT}')
    a(f'v_xor_b32 v{vRR}, v{vT}, v{vH+1}'); a(f'v_lshlrev_b32 v{vRR}, 4, v{vRR}'); a(f'v_lshl_add_u32 v{vRR}, v{vH+1}, 8, v{vRR}')
    a(f'v_add_u32 v{vRR}, {L_A}, v{vRR}')
    a(f'v_lshlrev_b32 v{vOA}, 3, v{vH+1}'); a(f'v_lshl_add_u32 v{vOA}, v{vT}, 10, v{vOA}')
    lane_fields(a, vXR, [(3, 1, 512), (0, 2, 128), (2, 1, 8), (4, 2, 16)], vT, add=slot_lds(4))
    a(f's_lshr_b32 {sT1}, {sW}, 1'); a(f's_lshl_b32 {sT1}, {sT1}, 10'); a(f's_and_b32 {sT2}, {sW}, 1'); a(f's_lshl_b32 {sT2}, {sT2}, 6')
    a(f's_add_u32 {sT1}, {sT1}, {sT2}'); a(f'v_add_u32 v{vXR}, {sT1}, v{vXR}')
    a(f'v_lshlrev_b32 v{vH+1}, 4, v{vH+1}')
    a(f's_lshl_b32 {sA}, {sE}, 16'); a(f's_lshl_b32 {sT1}, {sF}, 7'); a(f's_add_u32 {sB}, {sA}, {sT1}')
    a(f's_lshl_b32 {sT1}, {sW}, 14'); a(f's_add_u32 {sA}, {sA}, {sT1}'); a(f's_lshl_b32 {sT1}, {sF}, 10'); a(f's_add_u32 {sA}, {sA}, {sT1}')
    a(f's_add_u32 {sA}, {sA}, {WS_X1}')
    a(f's_lshl_b32 {sLD}, {sF}, 8'); a(f's_add_u32 {sLD}, {sLD}, {WS_MOD + 2048*5}')

def phase_g2(a):
    for x in flag_loads('C'): a(x)
    for k in range(4, 12):
        for x in w2_reads(k): a(x, ('ar', k))
    for k in (12, 13):
        for x in w2_dma(k, sT1): a(x, ('w2', k))
    S = Sched2(2)
    acc = lambda i, t: 128 + 16 * (i % 2) + 4 * t
    for i in range(4):
        for k in range(14):
            for t in range(4):
                kind, r = w2_reg(k, t)
                S.mfma(m16(vr(acc(i, t), 4), vr(r, 4, kind), vr(b2_reg(i, k), 4), k == 0))
    g = 1
    for n in range(PF2, 56):
        i, k = divmod(n, 14); g = max(g, 4 * (n - PF2) + 2)
        if k == 0:
            S.block(g - 1, lambda a, i=i: stamp(a, f't_pre{i}'))
            S.block(g - 1, lambda a, i=i: (flag_check(a, 'C', i + 1), stamp(a, f't_chk{i}'), h1_touch(a, i)))
        g = S.chain(g, b2_load(i, k))
    S.block(1, lambda a: wave_signal(a, ('h1', 2), 3, 1))
    g = 20
    for k in range(12, 14):
        g = S.scal(g, lambda a, k=k: a.wait_tag(('w2', k)))
        for x in w2_reads(k): g = S.mem(g, x, ('ar', k))
        assert g <= 4 * k - 3, (k, g)
    S.block(g + 6, lambda a: (a.wait_all(vm=False), [a(x) for x in flag_loads('C')]))
    g = S.group(g + 1, [f's_add_u32 m0, {sC}, {slot_lds(4)}', dma(sA, vL16, 'WS', 0, SC), f's_add_u32 {sA}, {sA}, {8192-1024}', dma(sA, vL16, 'WS', 1024, SC)], 'xe')
    S.mem(g + 1, f'buffer_load_dwordx4 v[{vGB}:{vGB+3}], v{vH+1}, {srd("WS")}, {sLD} offen {SC}')
    at = fill(S, silu(3), 1, OPT['silu3'])
    gl = max(at.values())
    assert gl < 55
    for ap in range(2): gl = S.mem(gl + 1, h1_store(3, ap), ('h1', 3))
    S.block(gl + OPT['sig4'], lambda a: wave_signal(a, ('h1', 3), 4, 1))
    def wr(i): return [f'ds_write_b128 v{vRW+t}, v[{acc(i,t)}:{acc(i,t)+3}] offset:{16384*i + 1024*t}' for t in range(4)]
    def rd(i): return [f'ds_read_b128 v[{vRD+4*w}:{vRD+4*w+3}], v{vRR} offset:{16384*i + 4096*w}' for w in range(4)] + \
                      [f'ds_read_b64 v[{vRD+16}:{vRD+17}], v{vXR} offset:{4096*i}']
    def fin(i):
        X = vRD + 16; out = []
        for e in range(4): out += [f'v_add_f32 v{vRD+e}, v{vRD+e}, v{vRD+4+e}', f'v_add_f32 v{vRD+8+e}, v{vRD+8+e}, v{vRD+12+e}']
        out += [f'v_lshlrev_b32 v{X+2}, 16, v{X}', f'v_and_b32 v{X+3}, {sMASK}, v{X}', f'v_lshlrev_b32 v{X+4}, 16, v{X+1}', f'v_and_b32 v{X+5}, {sMASK}, v{X+1}']
        for e in range(4): out.append(f'v_add_f32 v{vRD+e}, v{vRD+e}, v{vRD+8+e}')
        for e in range(4): out.append(f'v_fmac_f32 v{X+2+e}, v{vRD+e}, v{vGB+e}')
        out += [f'v_cvt_pk_bf16_f32 v{X+6+h}, v{X+2+2*h}, v{X+3+2*h}' for h in range(2)]
        out += [f's_add_u32 {sT1}, {sB}, {16384*i}', f'buffer_store_dwordx2 v[{X+6}:{X+7}], v{vOA}, {srd("OUT")}, {sT1} offen']
        return out
    def bar(a): a.wait_tag('xe'); barrier(a)
    for i in range(3):
        g = S.chain(56 * (i + 1) + 4, wr(i), stride=3)
        g = S.scal(g + 8, bar)
        g = S.chain(g, rd(i))
        if i == 0: S.block(g + 7, lambda a: (a.wait_all(vm=False), [a(x) for x in flag_loads('C')]))
        g = S.chain(g + 8, fin(i))
        assert g < 56 * (i + 2) + 4, g
    S.block(40, lambda a: stamp(a, 't_f40')); S.block(56, lambda a: stamp(a, 't_f56')); S.block(90, lambda a: stamp(a, 't_f90'))
    S.block(1, lambda a: stamp(a, 'f0')); S.block(112, lambda a: stamp(a, 'f112')); S.block(224, lambda a: stamp(a, 'f224'))
    S.emit(a, 'gemm2')
    for x in wr(3): a(x)
    barrier(a)
    for x in rd(3) + fin(3): a(x)

def k_mega(a):
    a.raw('s_cmp_ge_u32 s2, 256')
    a.raw('s_cbranch_scc1 L_end')
    stamp_names.append([])
    if OPT['stamps']: a('s_memrealtime s[98:99]'); a('s_memtime s[96:97]')
    else: stamp(a, 'start')
    names = ['WM', 'C', 'X', 'WS', 'DBG', 'WQ', 'K', 'V', 'WO', 'W1', 'W2', 'OUT']
    for n in names: a(f's_load_dwordx2 s[{SRD[n]}:{SRD[n]+1}], s[0:1], {KOFF[n]}')
    a(f's_lshr_b32 {sRB}, s2, 3')
    lc = a.newlabel('nocode')
    a(f's_cmp_ge_u32 {sRB}, 29')
    a.raw(f's_cbranch_scc0 {lc}')
    a.raw('s_getpc_b64 s[66:67]')
    a.label('L_pc')
    a.raw(f's_sub_u32 {sT0}, {sRB}, 29'); a.raw(f's_lshl_b32 {sT0}, {sT0}, 15')
    a.raw(f'v_lshl_add_u32 v2, v0, 7, {sT0}')
    a.raw('v_min_u32 v2, L_code_end - L_pc - 4, v2')
    a.raw('v_mov_b32 v3, s67'); a.raw('v_add_co_u32 v2, vcc, s66, v2'); a.raw('s_nop 1'); a.raw('v_addc_co_u32 v3, vcc, 0, v3, vcc')
    a.raw('global_load_dword v28, v[2:3], off')
    a.label(lc)
    a('v_lshrrev_b32 v1, 6, v0')
    for n in names:
        a(f's_mov_b32 s{SRD[n]+2}, {SIZE[n]}'); a(f's_mov_b32 s{SRD[n]+3}, 0x20000')
    a(f's_and_b32 {sG}, s2, 7')
    a(f'v_readfirstlane_b32 {sW}, v1')
    a('v_and_b32 v0, 63, v0')
    a(f's_mov_b32 {sMASK}, 0xffff0000')
    if OPT['stamps']:
        stamp_names[-1].append('start')
        a('v_writelane_b32 v1, s98, 0'); a('v_writelane_b32 v1, s96, 32')
        stamp(a, 'args')
    a(f's_lshl_b32 {sN}, {sRB}, 2'); a(f's_add_u32 {sN}, {sN}, {sW}')
    a(f's_lshl_b32 {sT2}, {sN}, 14'); a(f's_lshl_b32 {sT3}, {sG}, 11')
    a(f'v_lshlrev_b32 v{vT}, 4, v0'); a(f'v_lshlrev_b32 v{vL4}, 2, v0'); a(f'v_mov_b32 v{vONE}, 1')
    a('s_mov_b32 s3, 0')
    lnp, lj = a.newlabel('noprod'), a.newlabel('prodj')
    a.wait_all()
    a('s_cmp_lt_u32 s2, 48')
    a.raw(f's_cbranch_scc0 {lnp}')
    phase_mod(a)
    a.raw(f's_branch {lj}')
    a.label(lnp)
    a.vm = []; a.lg = []
    a(f's_sub_u32 {sA}, {sN}, 24'); a(f's_min_u32 {sA}, {sA}, 95')
    a(f's_lshr_b32 {sT1}, {sA}, 4'); a(f's_and_b32 {sT0}, {sA}, 15')
    a(f's_mul_i32 {sT0}, {sT0}, {32*6144}'); a(f's_lshl_b32 {sT1}, {sT1}, 10'); a(f's_add_u32 {sT0}, {sT0}, {sT1}')
    a(f's_lshl_b32 {sT1}, {sG}, 7'); a(f's_add_u32 {sT0}, {sT0}, {sT1}')
    lane_fields(a, 2, [(0, 6, 6144)], 3)
    touch(a, 'WM', 2, 32, sT0)
    clear_flags(a)
    if OPT['xwait']: a.raw('s_waitcnt vmcnt(0)'); a.vm = []
    a('v_lshlrev_b32 v2, 7, v0'); a(f's_lshl_b32 {sT0}, {sA}, 12')
    touch(a, 'X', 2, 32, sT0)
    for i in range(OPT['xd']):
        for t in x_load(i): a(t)
    a.label(lj)
    main_setup(a)
    ln1_stats(a); stamp(a, 'stats')
    ln1_apply(a)
    a(f's_lshl_b32 {sT0}, {sN}, 10'); a(f's_lshl_b32 {sT1}, {sG}, 19'); a(f's_add_u32 {sT0}, {sT0}, {sT1}'); a(f's_add_u32 {sT0}, {sT0}, {1536*256}')
    a(f'v_lshlrev_b32 v{vT}, 7, v0')
    touch(a, 'K', vT, 8, sT0); touch(a, 'V', vT, 8, sT0)

    stamp(a, 'apply')
    phase_main(a)
    assert a.vm[-1][1] == ('p1', 1)
    red_operands(a)
    a._wait(vm=OPT['pre2'])
    for x in flag_loads('A'): a(x)
    wave_signal(a, ('p1', 1), 2, 8); stamp(a, 'p1done')
    l0, l1, l2 = (a.newlabel(x) for x in ('c0', 'c1', 'c1j'))
    pl = lambda c: [({('v', PL + 32 * c + 4 * g + r) for r in range(4)}, None) for g in range(8)]
    a(f's_mov_b32 {sT2}, 0')
    for q in range(8):
        a(f's_lshr_b32 s{sFV+q}, s{sFV+q}, 1'); a(f's_lshl1_add_u32 {sT2}, {sT2}, s{sFV+q}')
    a(f's_lshr_b32 {sT3}, 0x80, {sG}'); a(f's_or_b32 {sT2}, {sT2}, {sT3}')
    a(f's_cmp_lg_u32 {sLD}, 0')
    a.raw(f's_cbranch_scc1 {l0}')
    sspin(a, 'A', 1)
    for x in part_loads(0): a.raw(x)
    a.label(l0)
    a.vm += pl(0)
    a(f's_mov_b32 {sLD}, 0')
    a(f's_cmp_lg_u32 {sT2}, 0xff')
    a.raw(f's_cbranch_scc1 {l1}')
    for x in part_loads(1): a.raw(x)
    a.raw(f's_mov_b32 {sLD}, 1')
    a.label(l1)
    a.raw('s_barrier')
    for x in w1_reads(0): a(x)
    for b in range(2): a(f'v_add_u32 v{vTW1+b}, 0x10000, v{vTW1+b}')
    red_addr(a)
    stamp(a, 't_w1')
    l3, l4 = a.newlabel('w'), a.newlabel('wj')
    a(f's_cmp_lg_u32 {sLD}, 0'); a.raw(f's_cbranch_scc1 {l3}')
    a.raw('s_waitcnt vmcnt(0)'); a.label(l3); a.raw('s_waitcnt vmcnt(8)'); a.vm = []
    red_sum(a, 0); stamp(a, 't_sum0')
    for i in range(4):
        for x in w1_dma(1, i, sT1): a(x, ('w1', 1))
    a.wait_all(vm=False)
    a(f's_cmp_lg_u32 {sLD}, 0')
    a.raw(f's_cbranch_scc1 {l2}')
    sspin(a, 'A', 2)
    for x in part_loads(1): a.raw(x)
    a.label(l2)
    stamp(a, 'syncA')
    late_sum(a, pl(1)); stamp(a, 'sum')
    red_ln(a); stamp(a, 'red')
    for k in range(2):
        for x in w2_dma(k, sT1): a(x, ('w2', k))
    a.wait_tag(('w1', 1))
    signal(a, 'h2', 14, 0); stamp(a, 'h2done')
    rest = [2, 3, 8, 9][:OPT['w2b']]
    wv = Weave(a, [(x, ('w2', k)) for k in rest for x in w2_dma(k, sT1)], 4)
    for x in w1_reads(1): wv(x)
    wv.flush()
    W2_LEFT[:] = [k for k in range(4, 10) if k not in rest]
    flag_base(a, sWAIT)
    for x in flag_loads('B'): a(x)
    mlp_addr(a); g2_addr(a)
    for k in range(4):
        a.wait_tag(('w2', k))
        for x in w2_reads(k): a(x)
    stamp(a, 't_w2')
    l1, l2 = a.newlabel('nog1'), a.newlabel('nog1j')
    a(f's_cmp_ge_u32 {sRB}, 28')
    a.raw(f's_cbranch_scc1 {l1}')
    phase_g1(a)
    a.raw(f's_branch {l2}')
    a.label(l1)
    save = (list(a.vm), list(a.lg))
    a.raw('s_waitcnt lgkmcnt(0)'); a.raw('s_barrier')
    for k in W2_LEFT + [10, 11]:
        for x in w2_dma(k, sT1): a.raw(x)
    a.vm = []; a.lg = []
    a(f's_lshl2_add_u32 {sT0}, s2, {sW}'); a(f's_lshl_b32 {sT0}, {sT0}, 12'); a(f's_add_u32 s{sP+3}, {sT0}, {WS_DUMMY - 896*4096}')
    a(f's_add_u32 {sSIG}, s{sP+3}, 2048')
    flag_base(a, sWV)
    sspin(a, 'C', 1)
    g2_head(a)
    a.raw('s_waitcnt vmcnt(0)')
    a.vm, a.lg = save
    a.label(l2)
    stamp(a, 'h1done')
    phase_g2(a)
    stamp_flush(a); a.label('L_end'); a.raw('s_endpgm')
    a.label('L_code_end')
    slow_path(a)
    for l0, l1, kind, lvl in late_spins:
        a.label(l0); sspin(a, kind, lvl); a.raw(f's_branch {l1}')
    a.label('L_mod2')
    spin(a, 'DBG', '0', vL4, vPOLL, 2, 132, f'v{vT+1}')
    a.raw('s_branch L_mod2j')

def main(out):
    ref = open(f'cdna_kernels/{NAME}.s.ref').read().splitlines()
    head = [l for l in ref if l.startswith(';') and '@launch' not in l]
    name = NAME + '_kernel'
    a = Asm(); k_mega(a)
    print('nop states', a.nnop, 'lines', len(a.lines))
    s = '\n'.join(head) + '\n'
    s += f'; @launch grid=(256,1,1) block=(256,1,1) lds={LDS_BYTES}\n'
    s += '.amdgcn_target "amdgcn-amd-amdhsa--gfx950"\n.text\n'
    s += f'.globl {name}\n.p2align 8\n.type {name},@function\n{name}:\n' + a.text()
    s += f""".section .rodata,"a"
.p2align 6
.amdhsa_kernel {name}
  .amdhsa_next_free_vgpr 512
  .amdhsa_next_free_sgpr 102
  .amdhsa_accum_offset 256
  .amdhsa_group_segment_fixed_size 0
  .amdhsa_kernarg_size 104
  .amdhsa_user_sgpr_count 2
  .amdhsa_user_sgpr_kernarg_segment_ptr 1
  .amdhsa_system_sgpr_workgroup_id_x 1
.end_amdhsa_kernel
"""
    open(out, 'w').write(s)
    if OPT['stamps']:
        import json; json.dump(stamp_names, open(out + '.stamps', 'w'))

if __name__ == '__main__':
    for o in sys.argv[2:]:
        k, v = o.split('='); OPT[k] = v if k in ('probe', 'abl') else int(v)
    main(sys.argv[1] if len(sys.argv) > 1 else f'cdna_kernels/{NAME}.s')
```

```python
import sys, struct, math
from asmlib import Asm, Sched2, fill

NAME = 'adaLN_cond__sliding_block_cached__dense_activation_silu__prompt'
def f2u(x): return struct.unpack('<I', struct.pack('<f', x))[0]
def hx(x): return '0x%08x' % f2u(x)
LOG2E = 1.4426950408889634

SRD = dict(X=4, K=8, V=12, WQ=16, WO=20, W1=24, W2=28, C=32, WM=36, OUT=40, DBG=44, WS=48)
KOFF = dict(X=0, K=8, V=16, WQ=24, WO=32, W1=48, W2=56, C=64, WM=72, OUT=80, DBG=88, WS=96)
SIZE = dict(X=2048*512*2, K=8*2048*128*2, V=8*2048*128*2, WQ=512*4096*2, WO=4096*512*2, W1=512*1792*2,
            W2=1792*512*2, C=1024, WM=512*3072*2, OUT=2048*512*2, DBG=256, WS=1 << 28)
def srd(n): return f's[{SRD[n]}:{SRD[n]+3}]'
sW, sG, sRB = 's52', 's53', 's54'
sT0, sT1, sT2, sT3 = 's55', 's56', 's57', 's58'
sMASK = 's59'
sA, sB, sC, sD = 's60', 's61', 's62', 's63'
sST = 64
sN, sN2, sL, sPID, sGO, sOWN = 's99', 's97', 's3', 's96', 's72', 's96'
sROT = 's98'
sBAD = 's[64:65]'
sP = 66
sSIG, sWAIT, sLD = 's70', 's71', 's72'
sRH, sR32, sFS = 's73', 's74', 's75'
sE, sF, sH = 's76', 's77', 's78'
sW1, sRD, sH1, sWV, sH2 = 's79', 's80', 's81', 's84', 's85'

WS_MOD = 0
WS_FLG = 0x10000
WS_STAMP = 0x80000
WS_DUMMY = 0x100000
WS_X1 = 0x200000
WS_H2 = 0x400000
WS_H1 = 0x600000
WS_P1 = 0x1000000
SC = 'sc1'
F_A, F_B, F_C = WS_FLG, WS_FLG + 0x20000, WS_FLG + 0x28000

L_B, L_A = 32768, 65536
LDS_BYTES = 163840
def slot_lds(sig): return L_A + 16384 * sig

def vr(b, n=1, k='v'): return f'{k}{b}' if n == 1 else f'{k}[{b}:{b+n-1}]'
def ar(b, n=1): return vr(b, n, 'a')

OPT = dict(stamps=0, probe='', pwg=100, pmul=4, st0=16, abl='', qpace=160, wpace=24, r2=0, stsp=18, siga=48, polla=30, nlast=2, w1st=3, wq0=2, xwait=1, xd=4, wqt=6, wqe=10, qd=0, tlb=0, sigc=50, pollc=40, sig4=36, pre2=2, silu3=36, w2b=4, pfl=0, word=1)
stamp_names = []
def stamp(a, name):
    if OPT['probe']:
        pa, pb = OPT['probe'].split(':')
        if name == pa: a('s_memrealtime s[100:101]')
        if name == pb: a('s_memrealtime s[0:1]')
    if not OPT['stamps']: return
    if OPT['stamps'] == 3:
        if not name.startswith('t_') and name not in ('args', 'wo32', 'p1done', 'syncA', 'h2done', 'syncB', 'g0', 'g128', 'g256', 'syncC', 'h1done', 'f0', 'f112', 'f224', 'end'): return
    elif name.startswith('t_'): return
    elif name.startswith('m_') != (OPT['stamps'] == 2) and name not in ('args', 'xissue', 'stats', 'modok', 'apply', 'end', 'q16'): return
    i = len(stamp_names[-1]); stamp_names[-1].append(name)
    a('s_memrealtime s[100:101]')
    a(f'v_writelane_b32 v1, s100, {i}')
    a('s_memtime s[100:101]')
    a(f'v_writelane_b32 v1, s100, {32+i}')
def stamp_flush(a):
    if OPT['probe']:
        a.wait_all(); stamp(a, 'end')
        a('s_memrealtime s[94:95]'); a.wait_all()
        a(f's_cmp_lg_u32 s2, {OPT["pwg"]}'); a.raw('s_cbranch_scc1 L_end')
        a('s_sub_u32 s92, s0, s100'); a(f's_mul_i32 s92, s92, {OPT["pmul"]}'); a('s_min_u32 s92, s92, 100000')
        a.label('L_probe')
        a.raw('s_memrealtime s[90:91]'); a.raw('s_waitcnt lgkmcnt(0)'); a.raw('s_sub_u32 s90, s90, s94'); a.raw('s_cmp_lt_u32 s90, s92'); a.raw('s_cbranch_scc1 L_probe')
    if not OPT['stamps']: return
    a.wait_all()
    stamp(a, 'end')
    a(f's_lshl_b32 s100, s2, 10'); a(f's_lshl_b32 s101, {sW}, 8'); a('s_add_u32 s100, s100, s101')
    a(f's_add_u32 s100, s100, {WS_STAMP}')
    a('v_lshlrev_b32 v0, 2, v0')
    a(f'buffer_store_dword v1, v0, {srd("WS")}, s100 offen')

class Collect:
    def __init__(self): self.l = []
    def __call__(self, t, tag=None): self.l.append(t)
def collect(fn, *args, **kw):
    c = Collect(); fn(c, *args, **kw); return c.l

def lane_fields(a, dst, spec, tmp, add=None):
    first = True
    for sh, nb, sc in spec:
        t = dst if first else tmp
        src = t
        if sh == 0 and nb == 6: src = 0
        elif sh == 0: a(f'v_and_b32 v{t}, {(1 << nb) - 1}, v0')
        elif sh + nb == 6: a(f'v_lshrrev_b32 v{t}, {sh}, v0')
        else: a(f'v_bfe_u32 v{t}, v0, {sh}, {nb}')
        if sc & (sc - 1) == 0:
            if first:
                if sc > 1 or src != t: a(f'v_lshlrev_b32 v{t}, {sc.bit_length()-1}, v{src}')
            else: a(f'v_lshl_add_u32 v{dst}, v{src}, {sc.bit_length()-1}, v{dst}')
        else:
            a(f'v_mul_u32_u24 v{t}, {sc}, v{src}')
            if not first: a(f'v_add_u32 v{dst}, v{dst}, v{t}')
        first = False
    if add is not None: a(f'v_add_u32 v{dst}, {add}, v{dst}')

def dma(soff, voff, srdn, imm, fl=''):
    return f'buffer_load_dwordx4 v{voff}, {srd(srdn)}, {soff} offen offset:{imm} {fl + " " if fl else ""}lds'
def barrier(a):
    a.wait_all(vm=False); a.raw('s_barrier')
def set_exec(a, nl):
    if nl == 64: return
    if nl < 32: a.raw(f's_mov_b64 exec, {hex((1 << nl) - 1)}')
    else: a.raw('s_mov_b32 exec_lo, -1'); a.raw(f's_mov_b32 exec_hi, {hex((1 << (nl - 32)) - 1)}')
def touch(a, n, vaddr, nl, soff, dst=28):
    if nl < 64: set_exec(a, nl)
    a.raw(f'buffer_load_dword v{dst}, v{vaddr}, {srd(n)}, {soff} offen'); a.fake_vm(1, None)
    if nl < 64: a.raw('s_mov_b64 exec, -1')

def spin(a, srdn, soff, vaddr, vdst, nl, imm=0, lvl=1):
    loop, out = a.newlabel('poll'), a.newlabel('pollout')
    set_exec(a, nl)
    a.raw('s_mov_b32 s98, 0x200000')
    a.label(loop)
    a.raw(f'buffer_load_dword v{vdst}, v{vaddr}, {srd(srdn)}, {soff} offen offset:{imm} {SC}')
    a.raw('s_sub_u32 s98, s98, 1')
    a.raw(f's_cbranch_scc1 {out}')
    a.raw('s_waitcnt vmcnt(0)')
    a.raw(f'v_cmp_gt_u32 vcc, {lvl}, v{vdst}')
    a.raw('s_nop 0')
    a.raw(f's_cbranch_vccnz {loop}')
    a.label(out)
    a.raw('s_waitcnt vmcnt(0)')
    a.raw('s_mov_b64 exec, -1')
def signal(a, tag, nl, imm):
    a.wait_tag(tag); barrier(a)
    l0 = a.newlabel('sig')
    a(f's_cmp_lg_u32 {sW}, 0')
    a.raw(f's_cbranch_scc1 {l0}')
    set_exec(a, nl)
    a.raw(f'buffer_store_dword v{vONE}, v{vSIG}, {srd("WS")}, {sSIG} offen offset:{imm} {SC}')
    a.raw('s_mov_b64 exec, -1')
    a.label(l0)
def wave_signal(a, tag, lvl, nl, cond=False):
    a(f'v_mov_b32 v{vONE}, {lvl}')
    a.wait_tag(tag)
    l0 = a.newlabel('ws')
    if cond: a(f's_cmp_ge_u32 {sRB}, 28'); a.raw(f's_cbranch_scc1 {l0}')
    set_exec(a, nl)
    a.raw(f'buffer_store_dword v{vONE}, v{vSIG}, {srd("WS")}, {sSIG} offen {SC}')
    a.raw('s_mov_b64 exec, -1')
    if cond: a.label(l0)
    else: a.fake_vm(1, None)
sFP, sFV = 86, 88
late_spins = []
def flag_base(a, soff):
    a(f's_add_u32 s{sFP}, s{SRD["WS"]}, {soff}'); a(f's_addc_u32 s{sFP+1}, s{SRD["WS"]+1}, 0')
def flag_loads(kind):
    if kind == 'C': return [f's_load_dword s{sFV+n}, s[{sFP}:{sFP+1}], {128*n} glc' for n in range(7)]
    out = [f's_load_dwordx8 s[{sFV}:{sFV+7}], s[{sFP}:{sFP+1}], 0 glc']
    if kind == 'B': out.append(f's_load_dwordx8 s[32:39], s[{sFP}:{sFP+1}], 32 glc')
    return out
def flag_test(em, kind, lvl):
    n = 7 if kind == 'C' else 8
    if kind == 'B':
        for q in range(8): em(f's_min_u32 s{sFV+q}, s{sFV+q}, s{32+q}')
    for st in (1, 2, 4):
        for q in range(0, n - st, 2 * st): em(f's_min_u32 s{sFV+q}, s{sFV+q}, s{sFV+q+st}')
    em(f's_cmp_lt_u32 s{sFV}, {lvl}')
def sspin(a, kind, lvl):
    loop, out = a.newlabel('sp'), a.newlabel('spout')
    a.raw('s_mov_b32 s98, 0x200000')
    a.label(loop)
    for x in flag_loads(kind): a.raw(x)
    a.raw('s_sub_u32 s98, s98, 1')
    a.raw('s_waitcnt lgkmcnt(0)')
    a.raw(f's_cbranch_scc1 {out}')
    flag_test(a.raw, kind, lvl)
    a.raw(f's_cbranch_scc1 {loop}')
    a.label(out)
def flag_check(a, kind, lvl):
    l0, l1 = a.newlabel('fc'), a.newlabel('fcj')
    flag_test(a, kind, lvl); a.raw(f's_cbranch_scc1 {l0}'); a.label(l1)
    late_spins.append((l0, l1, kind, lvl))
def await_flags(a, nl, imm, srdn='WS', soff=None):
    l1 = a.newlabel('aw')
    a(f's_cmp_lg_u32 {sW}, 1')
    a.raw(f's_cbranch_scc1 {l1}')
    spin(a, srdn, soff or sWAIT, vL4, vPOLL, nl, imm)
    a.label(l1)
    barrier(a)

vW4, vKD, vVD = 2, 6, 10
vTRA, vTRB, vTV, vK, vH = 12, 14, 16, 18, 22
vTRC, vTW1 = 16, 18
vT = 24
vSIG, vPOLL, vONE, vL4 = 28, 29, 30, 31
vQ, vS, vP, vR, vO = 32, 96, 112, 120, 128
aK, aV, aL, aONE, aX = 0, 64, 128, 144, 160

def m16(d, A, B, first): return f'v_mfma_f32_16x16x32_bf16 {d}, {A}, {B}, {"0" if first else d}'
def m32(d, A, B, first): return f'v_mfma_f32_32x32x16_bf16 {d}, {A}, {B}, {"0" if first else d}'

XR = 64
def x_load(i):
    return [f's_add_u32 {sT3}, {sT3}, 1024', f's_and_b32 {sT3}, {sT3}, 0x3c00', f's_add_u32 {sT0}, {sT2}, {sT3}',
            f'buffer_load_dwordx4 v[{XR+4*i}:{XR+4*i+3}], v{vT}, {srd("X")}, {sT0} offen']

def phase_mod(a):
    a.comment('mod = silu(c) @ w_mod, 64 columns per producer')
    W = 128; SL = 32; SH = 48; ACC = 8
    a(f's_lshl_b32 {sA}, {sPID}, 7')
    a(f's_mul_i32 {sT1}, {sW}, {128*6144}')
    a(f's_add_u32 {sA}, {sA}, {sT1}')
    lane_fields(a, 2, [(3, 3, 16 * 6144), (0, 3, 16)], 3)
    lane_fields(a, 3, [(3, 3, 32)], 4)
    a(f's_lshl_b32 {sB}, {sW}, 8')
    for i in range(2): a(f'buffer_load_dwordx4 v[{16+4*i}:{19+4*i}], v3, {srd("C")}, {sB} offen offset:{16*i}')
    def wl(i):
        a(f'buffer_load_dwordx4 v[{W+4*i}:{W+4*i+3}], v2, {srd("WM")}, {sA} offen')
        if i < 15: a(f's_add_u32 {sA}, {sA}, 6144')
    for i in range(8): wl(i)
    for i in range(8): a(f'v_mov_b32 v{ACC+i}, 0')
    for r in range(8):
        a(f'v_lshlrev_b32 v{SH+2*r}, 16, v{16+r}'); a(f'v_and_b32 v{SH+2*r+1}, {sMASK}, v{16+r}')
    for i in range(16): a(f'v_mul_f32 v{SL+i}, {hx(-LOG2E)}, v{SH+i}')
    for i in range(16): a(f'v_exp_f32 v{SL+i}, v{SL+i}')
    for i in range(16): a(f'v_add_f32 v{SL+i}, 1.0, v{SL+i}')
    for i in range(16): a(f'v_rcp_f32 v{SL+i}, v{SL+i}')
    for i in range(16): a(f'v_mul_f32 v{SH+i}, v{SH+i}, v{SL+i}')
    for i in range(16): a(f'v_cvt_pk_bf16_f32 v{SL+i}, v{SH+i}, 0')
    for i in range(16): a(f'v_lshlrev_b32 v{SH+i}, 16, v{SL+i}')
    stamp(a, 'm_silu')
    for i in range(8, 12): wl(i)
    for i in range(16):
        for r in range(4):
            a(f'v_dot2c_f32_bf16 v{ACC+2*r}, v{W+4*i+r}, v{SL+i}')
            a(f'v_dot2c_f32_bf16 v{ACC+2*r+1}, v{W+4*i+r}, v{SH+i}')
        if i < 4: wl(12 + i)
    stamp(a, 'm_dot16')
    for i in range(4): a(f'v_permlane32_swap_b32 v{ACC+i}, v{ACC+4+i}')
    for i in range(4): a(f'v_add_f32 v{ACC+i}, v{ACC+i}, v{ACC+4+i}')
    for i in range(2): a(f'v_permlane16_swap_b32 v{ACC+i}, v{ACC+2+i}')
    for i in range(2): a(f'v_add_f32 v{ACC+i}, v{ACC+i}, v{ACC+2+i}')
    lane_fields(a, 4, [(0, 3, 32), (4, 2, 8)], 5)
    a(f'v_add_u32 v4, {sB}, v4')
    for i in range(2): a(f'v_add_f32_dpp v{ACC+i}, v{ACC+i}, v{ACC+i} row_ror:8 row_mask:0xf bank_mask:0xf')
    a(f'ds_write_b64 v4, v[{ACC}:{ACC+1}]')
    a(f's_lshr_b32 {sT1}, {sPID}, 3')
    a(f's_mov_b32 {sB}, {hx(LOG2E/math.sqrt(128.0))}')
    a(f's_cmp_eq_u32 {sT1}, 2'); a(f's_cselect_b32 {sB}, 1.0, {sB}')
    a(f's_cmp_ge_u32 {sT1}, 3'); a(f's_cselect_b32 {sB}, {hx(-LOG2E)}, {sB}')
    a(f's_cmp_eq_u32 {sT1}, 5'); a(f's_cselect_b32 {sB}, {hx(-1.0/LOG2E)}, {sB}')
    a(f's_mov_b32 {sC}, 0')
    a(f's_cmp_eq_u32 {sT1}, 1'); a(f's_cselect_b32 {sC}, 1.0, {sC}')
    a(f's_cmp_eq_u32 {sT1}, 4'); a(f's_cselect_b32 {sC}, 1.0, {sC}')
    barrier(a)
    stamp(a, 'm_bar')
    lab = a.newlabel('modskip')
    a(f's_cmp_lg_u32 {sW}, 0')
    a.raw(f's_cbranch_scc1 {lab}')
    for i in range(4): a(f'ds_read_b32 v{ACC+i}, v{vL4} offset:{256*i}')
    lane_fields(a, 4, [(2, 1, 1024), (3, 3, 16), (0, 2, 4)], 5)
    a(f's_and_b32 {sT0}, s2, 7'); a(f's_lshl_b32 {sT0}, {sT0}, 7'); a(f's_lshl_b32 {sT1}, {sPID}, 8'); a(f's_sub_u32 {sT0}, {sT1}, {sT0}')
    a(f's_cmp_ge_u32 {sPID}, 16'); a(f's_cselect_b32 {sT1}, {sT1}, {sT0}'); a('s_cselect_b64 vcc, -1, 0')
    a(f'v_cndmask_b32 v4, v4, v{vL4}, vcc')
    a(f'v_add_f32 v8, v8, v9'); a('v_add_f32 v10, v10, v11'); a('v_add_f32 v8, v8, v10')
    a('v_cvt_pk_bf16_f32 v8, v8, v8'); a(f'v_and_b32 v8, {sMASK}, v8')
    a(f'v_add_f32 v8, {sC}, v8')
    a('v_cvt_pk_bf16_f32 v8, v8, v8'); a(f'v_and_b32 v8, {sMASK}, v8')
    a(f'v_mul_f32 v8, {sB}, v8')
    a(f'buffer_store_dword v8, v4, {srd("WS")}, {sT1} offen offset:{WS_MOD} {SC}')
    stamp(a, 'm_st')
    a.label(lab)
    a.vm = []
    XD = OPT['xd']
    for i in range(XD):
        for t in x_load(i): a(t)
    lab = a.newlabel('modskip')
    a(f's_cmp_lg_u32 {sW}, 0')
    a.raw(f's_cbranch_scc1 {lab}')
    a.raw(f's_cmp_ge_u32 {sPID}, 16'); a.raw(f's_cselect_b32 {sT1}, 4, 0'); a.raw(f's_cselect_b32 {sGO}, 0, 1')
    a.raw(f'v_mov_b32 v{vPOLL}, 1')
    a.raw('s_mov_b64 exec, 1')
    a.raw(f's_waitcnt vmcnt({XD})')
    a.raw(f'buffer_atomic_add v{vPOLL}, v0, {srd("DBG")}, {sT1} offen offset:128 sc0 sc1')
    a.raw('s_mov_b64 exec, -1')
    a.label(lab)
def mod_go(a):
    lab = a.newlabel('nogo')
    a(f's_cmp_eq_u32 {sGO}, 0')
    a.raw(f's_cbranch_scc1 {lab}')
    a.raw(f'v_readfirstlane_b32 {sT1}, v{vPOLL}')
    a.raw('s_nop 1')
    a.raw(f's_cmp_lg_u32 {sT1}, 15')
    a.raw(f's_cbranch_scc1 {lab}')
    a.raw('s_mov_b64 exec, 1')
    a.raw(f'buffer_store_dword v{vONE}, v0, {srd("DBG")}, 0 offen {SC}')
    a.raw('s_mov_b64 exec, -1')
    a.label(lab)
    stamp(a, 'm_stdone')

def butterfly16(a, rs):
    for r in rs:
        for i in range(8): a(f'v_permlane32_swap_b32 v{r+i}, v{r+i+8}')
        for i in range(8): a(f'v_add_f32 v{r+i}, v{r+i}, v{r+i+8}')
    for r in rs:
        for i in range(4): a(f'v_permlane16_swap_b32 v{r+i}, v{r+i+4}')
        for i in range(4): a(f'v_add_f32 v{r+i}, v{r+i}, v{r+i+4}')
    for sh in (8, 4, 2, 1):
        for r in rs:
            for i in range(4):
                a(f'v_add_f32_dpp v{r+i}, v{r+i}, v{r+i} row_ror:{sh} row_mask:0xf bank_mask:0xf')

def wq_sig(n): return (n + 4) % 6
def wq_dma(n, so='{so}'):
    c, k = divmod(n, 16)
    return [f's_add_u32 m0, {sC}, {slot_lds(wq_sig(n))}', f's_add_u32 {so}, {sA}, {k*32*8192 + c*128}'] + \
           [dma(so, vW4 + p, 'WQ', 1024 * p) for p in range(4)]
def wo_sig(n):
    return 2 + n % 4 if n < 6 else n % 6 if n < 22 else n - 20 if n < 26 else (n - 10) % 6
def wo_dma(n, so='{so}'):
    c, k = divmod(n, 16)
    return [f's_add_u32 m0, {sC}, {slot_lds(wo_sig(n))}', f's_add_u32 {so}, {sB}, {k*32*1024 + c*128}'] + \
           [dma(so, vW4 + p, 'WO', 1024 * p) for p in range(4)]
def kv_buf(t): return L_B if t % 2 == 0 else L_A
def kv_dma(t, which, so='{so}'):
    out = [f's_add_u32 m0, {sC}, {kv_buf(t) + (0 if which == "K" else 16384)}', f's_add_u32 {so}, {sD}, {t*16384}']
    return out + [dma(so, vKD + p if which == 'K' else vVD + p % 2, which, 1024 * p) for p in range(4)]
def w_read(dst, sig, t, r):
    reg, base = (vTRC, 16384 * (sig + 4)) if sig < 0 else (vTRA, 16384 * sig) if sig < 4 else (vTRB, 16384 * (sig - 4))
    return f'ds_read_b64_tr_b16 {dst}, v{reg + t % 2} offset:{base + 2048*r + 256*(t//2)}'
def w64_offsets(a, dst, tmp, pitch, kq_rows, prow):
    lane_fields(a, dst, [(2, 2, pitch), (4, 1, 64), (5, 1, kq_rows * pitch)], tmp)
    a(f'v_lshrrev_b32 v{tmp}, 4, v0'); a(f'v_and_b32 v{tmp}, 2, v{tmp}'); a(f'v_xor_b32 v{tmp}, v{tmp}, v0')
    a(f'v_and_b32 v{tmp}, 3, v{tmp}'); a(f'v_lshl_add_u32 v{dst}, v{tmp}, 4, v{dst}')
    for p in range(1, 4): a(f'v_add_u32 v{dst+p}, {prow(p)*pitch - 1024*p}, v{dst}')

def main_setup(a):
    a.comment('address set-up')
    t = vT + 1
    a(f's_lshl_b32 {sC}, {sW}, 12')
    w64_offsets(a, vW4, t, 8192, 8, lambda p: 16 * (p & 1) + 4 * (p >> 1))
    a(f's_lshl_b32 {sA}, {sG}, 10'); a(f's_lshl_b32 {sT1}, {sW}, 8'); a(f's_add_u32 {sA}, {sA}, {sT1}')
    a(f's_lshl_b32 {sB}, {sG}, 19'); a(f's_add_u32 {sD}, {sB}, {1536*256}'); a(f's_add_u32 {sD}, {sD}, {sC}')
    a(f's_add_u32 {sB}, {sB}, {sT1}')
    lane_fields(a, vVD, [(0, 2, 16), (2, 2, 256), (4, 2, 64)], t)
    a(f'v_xor_b32 v{vVD+1}, 32, v{vVD}')
    a(f'v_lshrrev_b32 v{t}, 4, v0')
    a(f'v_and_b32 v{t+1}, 15, v0')
    a(f'v_xor_b32 v{t+2}, v{t+1}, v{t}')
    a(f'v_lshlrev_b32 v{t+2}, 4, v{t+2}')
    a(f'v_lshl_add_u32 v{vKD}, v{t}, 8, v{t+2}')
    for p in range(1, 4): a(f'v_xor_b32 v{vKD+p}, {64*p}, v{vKD}')
    a(f'v_mov_b32 v{vH}, v{vKD}'); a(f'v_mov_b32 v{vH+1}, v{vKD+1}')
    lane_fields(a, t + 2, [(5, 1, 1), (4, 1, 2)], t)
    a(f'v_xor_b32 v{t+2}, v{t+2}, v{t+1}')
    a(f'v_lshlrev_b32 v{t+2}, 4, v{t+2}')
    a(f'v_lshl_add_u32 v{vK}, v{t+1}, 8, v{t+2}')
    a(f'v_add_u32 v{vK}, {L_B}, v{vK}')
    for s in range(1, 4): a(f'v_xor_b32 v{vK+s}, {64*s}, v{vK}')
    lane_fields(a, t + 1, [(2, 2, 64), (4, 1, 32), (0, 2, 8)], t)
    a(f'v_lshrrev_b32 v{t}, 4, v0')
    a(f'v_lshl_add_u32 v{vTV}, v{t}, 10, v{t+1}'); a(f'v_add_u32 v{vTV}, {L_B}, v{vTV}'); a(f'v_xor_b32 v{vTV+1}, 32, v{vTV}')
    a(f's_add_u32 {sT1}, {sC}, {L_A}')
    a(f'v_lshl_add_u32 v{vTRA}, v{t}, 9, v{t+1}'); a(f'v_add_u32 v{vTRA}, {sT1}, v{vTRA}'); a(f'v_xor_b32 v{vTRA+1}, 32, v{vTRA}')
    for b in range(2): a(f'v_add_u32 v{vTRB+b}, 0x10000, v{vTRA+b}')

def wq_touch(a, c):
    a(f's_lshl_b32 {sT0}, {sN2}, 16'); a(f's_lshl_b32 {sT1}, {sG}, 10'); a(f's_add_u32 {sT0}, {sT0}, {sT1}')
    if c: a(f's_add_u32 {sT0}, {sT0}, 128')
    lane_fields(a, vT + 2, [(2, 3, 8192), (0, 2, 256)], vT + 3)
    touch(a, 'WQ', vT + 2, 32, sT0)
def mod_loads():
    return [f'buffer_load_dwordx4 v[{48+8*vec+4*hf}:{51+8*vec+4*hf}], v{vT+1}, {srd("WS")}, 0 offen offset:{WS_MOD + 2048*vec + 1024*hf} {SC}'
            for vec in range(2) for hf in range(2)]
def clear_flags(a):
    lab = a.newlabel('nz')
    a(f's_lshr_b32 {sT0}, {sPID}, 4'); a(f's_cmp_lg_u32 {sT0}, 3')
    a.raw(f's_cbranch_scc1 {lab}')
    for r in range(4): a.raw(f'v_mov_b32 v{32+r}, 0')
    a.raw(f's_lshl2_add_u32 {sT1}, {sPID}, {sW}'); a.raw(f's_sub_u32 {sT1}, {sT1}, 192'); a.raw(f's_mul_i32 {sT0}, {sT1}, 5120'); a.raw(f's_add_u32 {sT0}, {sT0}, {WS_FLG}')
    for i in range(5):
        if i == 4: a.raw(f's_add_u32 {sT0}, {sT0}, 4096')
        a.raw(f'buffer_store_dwordx4 v[32:35], v{vT}, {srd("WS")}, {sT0} offen offset:{1024*(i%4)} {SC}')
    a.label(lab)
def cleared_signal(a):
    lab = a.newlabel('nz')
    a(f's_lshr_b32 {sT0}, {sPID}, 4'); a(f's_cmp_lg_u32 {sT0}, 3')
    a.raw(f's_cbranch_scc1 {lab}')
    a.raw('s_mov_b64 exec, 1')
    a.raw(f'buffer_atomic_add v{vONE}, v0, {srd("DBG")}, 0 offen offset:136 {SC}')
    a.raw('s_mov_b64 exec, -1')
    a.label(lab)

def ln1_stats(a):
    a.comment('LN1 statistics (rows are held in rotated order)')
    D = 128; R = 32; R2 = 48
    a(f'v_mov_b32 v{vT+1}, 0x3f803f80')
    for i in range(32): a(f'v_mov_b32 v{R+i}, 0')
    for i in range(16):
        for r in range(4):
            a(f'v_dot2c_f32_bf16 v{R+i}, v{XR+4*i+r}, v{vT+1}')
            a(f'v_dot2c_f32_bf16 v{R2+i}, v{XR+4*i+r}, v{XR+4*i+r}')
            if r == 0 and i == OPT['xd']: mod_go(a)
            if r == 0 and i + OPT['xd'] < 16:
                for t in x_load(i + OPT['xd']): a(t)
            if r == 0 and i + OPT['xd'] == 16: stamp(a, 'xissue')
            if r == 0 and i == OPT['wqt']: wq_touch(a, 0)
        for r in range(4):
            a(f'v_lshlrev_b32 v{D+8*i+2*r}, 16, v{XR+4*i+r}')
            a(f'v_and_b32 v{D+8*i+2*r+1}, {sMASK}, v{XR+4*i+r}')
    stamp(a, 'm_pass1')
    a0 = a
    a = Weave(a, [(x, ('wq', n)) for n in range(6) for x in wq_dma(n, sT1)], OPT['wqe'])
    butterfly16(a, [R, R2])
    a(f'v_mov_b32 v{vT+1}, {hx(1e-5)}')
    for i in range(4): a(f'v_mul_f32 v{R+i}, {hx(-1.0/512)}, v{R+i}')
    for i in range(4): a(f'v_mul_f32 v{R2+i}, {hx(1.0/512)}, v{R2+i}')
    for i in range(4): a(f'v_fma_f32 v{R2+i}, -v{R+i}, v{R+i}, v{R2+i}')
    for i in range(4): a(f'v_max_f32 v{R2+i}, 0, v{R2+i}')
    for i in range(4): a(f'v_add_f32 v{R2+i}, v{vT+1}, v{R2+i}')
    for i in range(4): a(f'v_rsq_f32 v{R2+i}, v{R2+i}')
    for i in range(4): a(f'v_mul_f32 v{R+i}, v{R+i}, v{R2+i}')
    for q in range(4):
        for i in range(4):
            a(f'v_readlane_b32 s{sST+2*(i+4*q)}, v{R2+i}, {16*q}'); a(f'v_readlane_b32 s{sST+2*(i+4*q)+1}, v{R+i}, {16*q}')
    for i in range(16):
        d = D + 8 * i; sp = f's[{sST+2*i}:{sST+2*i+1}]'
        for r in range(4):
            a(f'v_pk_fma_f32 v[{d+2*r}:{d+2*r+1}], v[{d+2*r}:{d+2*r+1}], {sp}, {sp} op_sel:[0,0,1] op_sel_hi:[1,0,1]')
    a(f's_lshl_b32 {sT0}, {sW}, 14')
    lane_fields(a, vT + 3, [(0, 6, 256), (0, 3, 16)], vT, add=sT0)
    a(f's_lshl_b32 {sT0}, {sROT}, 5')
    for i in range(16):
        a(f's_add_u32 {sT0}, {sT0}, 16'); a(f's_and_b32 {sT0}, {sT0}, 0xf0'); a(f'v_xor_b32 v{32+i}, {sT0}, v{vT+3}')
    a.flush()

def ln1_apply(a):
    a.comment('h = xn*A + B -> LDS')
    D = 128; M = 48
    a(f'v_lshlrev_b32 v{vT+1}, 4, v0')
    spin(a, 'DBG', '0', vL4, vPOLL, 1); a.vm = []
    for x in mod_loads(): a(x)
    stamp(a, 'modok')
    wq_touch(a, 1)
    a(f's_lshl_b32 {sT0}, {sN2}, 11'); a(f's_lshl_b32 {sT1}, {sG}, 19'); a(f's_add_u32 {sT0}, {sT0}, {sT1}'); a(f's_add_u32 {sT0}, {sT0}, {1536*256}')
    a(f'v_lshlrev_b32 v{vT}, 7, v0')
    touch(a, 'K', vT, 16, sT0); touch(a, 'V', vT, 16, sT0)
    for i in range(16):
        d = D + 8 * i; t = XR + 4 * (i % 8)
        for r in range(4):
            a(f'v_pk_fma_f32 v[{d+2*r}:{d+2*r+1}], v[{d+2*r}:{d+2*r+1}], v[{M+8+2*r}:{M+9+2*r}], v[{M+2*r}:{M+1+2*r}]')
        for r in range(4): a(f'v_cvt_pk_bf16_f32 v{t+r}, v{d+2*r}, v{d+2*r+1}')
        a(f'ds_write_b128 v{32+i}, v[{t}:{t+3}]')

class Proj:
    LA = 14
    def __init__(self, S, name, sig, ring, res, nlast, bread):
        self.S, self.name, self.sig, self.bread, self.res = S, name, sig, bread, res
        self.g0 = len(S.m); self.use = {}; self.reg = {}; self.done = {}; self.rel = {}; self.need = {}
        acc = self.acc = lambda c, t, qt: vO + 64 * c + 16 * qt + 4 * t
        for n in range(32):
            for t in range(4):
                self.reg[n, t] = (res[n][0], res[n][1] + 4 * t) if n in res else ('v', ring + 4 * ((4 * n + t) % 8))
        def mm(n, t, qt):
            c, k = divmod(n, 16); kind, r = self.reg[n, t]
            g = S.mfma(m16(vr(acc(c, t, qt), 4), vr(r, 4, kind), ar(16 * k + 4 * qt, 4), k == 0))
            self.use.setdefault((n, t), g); self.done[c, qt] = g
        for n in range(32 - nlast):
            for t in range(4):
                for qt in range(4): mm(n, t, qt)
        for qt in range(4):
            for t in range(4):
                for n in range(32 - nlast, 32): mm(n, t, qt)
    def step(self, n): return self.g0 + int(16 * n)
    def a_reads(self, n, t):
        kind, r = self.reg[n, t]
        return [w_read(vr(r + 2 * rr, 2, kind), self.sig(n), t, rr) for rr in range(2)]
    def head(self, a):
        for qt in range(4): a(self.bread(0, qt))
        if 0 not in self.res:
            a.wait_tag((self.name, 0))
            for t in range(4):
                for x in self.a_reads(0, t): a(x, ('ar', 0))
    def reads(self):
        S = self.S
        for n in sorted(range(32), key=lambda n: n in self.res):
            if 0 < n < 16:
                for qt in range(4): S.mem(self.step(n - 1) + 4 * qt, self.bread(n, qt))
            self.rel[n] = self.step(n)
            if n == 0 and 0 not in self.res: continue
            if n in self.res and self.res[n][2] is None: continue
            g = g1 = self.g0 + self.res[n][2] if n in self.res else self.step(n) - self.LA
            for t in range(4):
                g = max(g, g1 + 4 * t)
                for x in self.a_reads(n, t): g = S.mem(g, x, ('ar', n))
                assert g <= self.use[n, t] - 6, (self.name, n, t, g, self.use[n, t])
            S.scal(g1, lambda a, n=n: a.wait_tag((self.name, n)), force=True)
            self.rel[n] = g + 5; self.need[n] = g1
    def stream(self, groups):
        slack = []
        for n, g, items, tag, stride in groups:
            pre = [] if n is None else [lambda a, n=n: a.wait_lds_tag(('ar', n))]
            ge = self.S.group(max(g, self.g0 + 1, -1 if n is None else self.rel[n]), pre + items, tag, stride)
            if tag[0] == self.name: slack.append(self.need[tag[1]] - ge)
        print(self.name, 'DMA slack (gaps)', slack)

def o_convert(qt, packed):
    out = []
    for ap in range(4):
        o = vO + 32 * qt + 8 * ap; t = vS + 4 * ((4 * qt + ap) % 4) if packed else vQ + 16 * ap + 4 * qt
        if packed:
            rp = vR + (qt & ~1); sel = 'op_sel_hi:[1,0]' if qt % 2 == 0 else 'op_sel:[0,1] op_sel_hi:[1,1]'
            for r in range(4): out.append(f'v_pk_mul_f32 v[{o+2*r}:{o+2*r+1}], v[{o+2*r}:{o+2*r+1}], v[{rp}:{rp+1}] {sel}')
        else:
            t = vT
            for r in range(8): out.append(f'v_mul_f32 v{o+r}, v{o+r}, v{vR+qt}')
        for r in range(4): out.append(f'v_cvt_pk_bf16_f32 v{t+r}, v{o+2*r}, v{o+2*r+1}')
        out.append(f'ds_write_b128 v{vH}, v[{t}:{t+3}] offset:{16384*qt + 1024*ap}')
    return out
def l_check(qt):
    return [f'v_accvgpr_read_b32 v{vR+qt}, a{aL+4*qt}',
            f'v_med3_f32 v124, v{vR+qt}, v125, v126',
            f'v_cmp_neq_f32 vcc, v124, v{vR+qt}',
            f'v_rcp_f32 v{vR+qt}, v{vR+qt}',
            f's_or_b64 {sBAD}, {sBAD}, vcc']

def phase_main(a):
    S = Sched2(2)
    hread = lambda k, qt: f'ds_read_b128 {ar(16*k + 4*qt, 4)}, v{vH + k % 2} offset:{16384*qt + 1024*k}'
    Pq = Proj(S, 'wq', wq_sig, 96, {30: ('a', aX, 16 * 28 - 4), 31: ('a', aX + 16, 16 * 29 - 4)}, 2, hread)
    G = len(S.m)
    sreg = lambda m: vS + 8 * (m % 2)
    preg = lambda m: vP + 4 * (m % 2)
    kreg = lambda u, kt, s: aK + 32 * (u % 2) + 16 * kt + 4 * s
    vreg = lambda u, t: aV + 32 * (u % 2) + 4 * t
    qk_g, pv_g, ms = {}, {}, {}
    def qk(m):
        u, qt = divmod(m, 4); qk_g[m] = len(S.m)
        for kt in range(2):
            for s in range(4):
                S.mfma(m16(vr(sreg(m) + 4 * kt, 4), ar(kreg(u, kt, s), 4), vr(vQ + 16 * s + 4 * qt, 4), s == 0))
    def pv(m):
        u, qt = divmod(m, 4); pv_g[m] = len(S.m)
        S.mfma(m16(ar(aL + 4 * qt, 4), ar(aONE, 4), vr(preg(m), 4), u == 0))
        for t in range(8):
            S.mfma(m16(vr(vO + 32 * qt + 4 * t, 4), ar(vreg(u, t), 4), vr(preg(m), 4), u == 0))
    qk(0)
    for m in range(64):
        ms[m] = len(S.m)
        if m < 63: qk(m + 1)
        if m >= 1: pv(m - 1)
    ms[64] = len(S.m)
    pv(63)
    Gend = len(S.m)
    for m in range(64):
        g0 = ms[m]; full = 0 < m < 63
        for e in range(8):
            g = g0 + 2 * e if full else (g0 + e if m == 63 else g0 + 1 + (7 * e) // 8)
            S.valu(g, f'v_exp_f32 v{sreg(m)+e}, v{sreg(m)+e}', force=True)
            if e % 2: S.valu(g + 1 if (full or e < 7) else g + (1 if m == 0 else 1), f'v_cvt_pk_bf16_f32 v{preg(m)+e//2}, v{sreg(m)+e-1}, v{sreg(m)+e}', force=True)
    S.scal(Pq.step(16) + 3, barrier)
    Pq.reads()
    grp = [(n, OPT['qd'], wq_dma(n + 6), ('wq', n + 6), 2) for n in range(26)]
    grp.insert(24, (None, 0, kv_dma(0, 'K'), ('kvK', 0), 2))
    grp.append((None, 0, kv_dma(0, 'V'), ('kv', 0), 2))
    Pq.stream(grp)
    def q_conv(c, qt, g):
        for ap in range(2):
            q = vQ + 16 * (2 * c + ap) + 4 * qt; o = Pq.acc(c, 2 * ap, qt)
            for r in range(4): g = S.valu(g, f'v_cvt_pk_bf16_f32 v{q+r}, v{o+2*r}, v{o+2*r+1}', limit=g + (99 if c == 0 else 1))
        for ap in range(2):
            q = vQ + 16 * (2 * c + ap) + 4 * qt
            for r in range(2): g = S.valu(g + 1, f'v_permlane16_swap_b32 v{q+r}, v{q+2+r}', limit=g + (99 if c == 0 else 1))
        return g
    g = Pq.step(16) + 6
    for qt in range(4): g = q_conv(0, qt, g)
    S.chain(Pq.step(26) + 2, [f'v_mov_b32 v{vT+2}, 0x3f803f80'] + [f'v_accvgpr_write_b32 a{aONE+r}, v{vT+2}' for r in range(4)])
    LA = 12
    def kv_bar(t, tag):
        def f(a): a.wait_tag((tag, t)); barrier(a)
        return f
    bar = {}
    for u in range(16):
        t = u // 2; base = kv_buf(t) - L_B + 8192 * (u % 2)
        if u == 0:
            bar[0] = S.scal(G - 34, kv_bar(0, 'kvK'))
            kp = [max(bar[0], G - 34 + 2 * i) for i in range(8)]
            gb = S.scal(G - 14, kv_bar(0, 'kv')); vp = [gb + (5 * i) // 4 for i in range(16)]
        else:
            kp = [ms[4*u-3] + o for o in ((7, 9, 11, 15) if u % 2 else (9, 11, 13, 15))] + [ms[4*u-2] + o for o in (1, 3, 7, 9)]
            vp = [ms[4*u-2] + o for o in (11, 15)] + [ms[m] + o for m in (4*u-1, 4*u) for o in (1, 3, 7, 9, 11, 15)] + [ms[4*u+1] + o for o in (1, 3)]
            if u % 2 == 0: bar[t] = S.scal(kp[0], kv_bar(t, 'kv'), force=True)
        for i in range(8):
            kt, s = divmod(i, 4)
            g = S.mem(kp[i], f'ds_read_b128 {ar(kreg(u,kt,s),4)}, v{vK+s} offset:{base + 4096*kt}')
            assert g <= qk_g[4 * u] + i - 6 and (u == 0 or g == kp[i]), ('K', u, i, g)
        for i in range(16):
            tt, r = divmod(i, 2)
            g = S.mem(vp[i], f'ds_read_b64_tr_b16 {ar(vreg(u,tt)+2*r,2)}, v{vTV + tt % 2} offset:{base + 16384 + 4096*r + 256*(tt//2)}')
            assert g <= pv_g[4 * u] + 1 + tt - 5 and (u == 0 or g == vp[i]), ('V', u, i, g, pv_g[4 * u])
    npre = 6
    def pf_wo(a):
        a(f's_lshl_b32 {sT2}, {sN2}, 13'); a(f's_lshl_b32 {sT3}, {sG}, 19'); a(f's_add_u32 {sT2}, {sT2}, {sT3}')
        touch(a, 'WO', vT + 3, 64, sT2)
    g = S.chain(S.gend + 1, collect(w64_offsets, vW4, vT, 1024, 4, lambda p: 8 * p))
    assert g < G - 20, g
    S.chain(Pq.step(22), [f'v_lshlrev_b32 v{vH+1}, 4, v0', f'v_add_u32 v{vH}, {sC}, v{vH+1}', f'v_lshlrev_b32 v{vT+3}, 7, v0'])
    def pre_reads(n, g):
        g = S.scal(g, lambda a: a.wait_tag(('wo', n)))
        for t_ in range(4):
            for r in range(2): g = S.mem(g + 1, w_read(ar(aX + 16 * n + 4 * t_ + 2 * r, 2), wo_sig(n), t_, r), ('pr', n))
        return g
    plan = {1: ((), (0, 1, 2, 3)), 2: ((0,), (4,)), 3: ((1,), (5,)), 4: ((2,), (24,)), 5: ((3,), (25,)), 6: ((4,), (22,)), 7: ((5,), (23,))}
    def pf(n, mul, add, nl):
        def f(a):
            a(f's_mul_i32 {sT2}, {sN}, {mul}'); a(f's_add_u32 {sT2}, {sT2}, {add}')
            touch(a, n, vT + 3, nl, sT2)
        return f
    warm = {1: pf_wo}
    for q in range(6): warm[q + 2] = pf('W1' if (q < 3) != bool(OPT['word']) else 'W2', 112 * 128, 38 * 128 * (q % 3), 38 if q % 3 < 2 else 36)
    for t in range(8):
        g = bar[t] + 1 if t else G + 12
        if t < 7:
            g = S.group(g, kv_dma(t + 1, 'K') + [x for x in kv_dma(t + 1, 'V') if not x.startswith('s_add_u32 {so}')], ('kv', t + 1), stride=2)
            assert g < bar[t + 1] - 25, ('kv', t, g, bar[t + 1])
        if t: S.block(g + 12, warm[t])
        rd, ld = plan.get(t, ((), ()))
        for n in rd: g = pre_reads(n, g + 1)
        for n in ld:
            prev = [m for m in range(min(n, 6)) if wo_sig(m) == wo_sig(n)]
            pre = [lambda a, m=prev[-1]: a.wait_lds_tag(('pr', m))] if prev else []
            g = S.group(g + (5 if prev else 1), pre + wo_dma(n), ('wo', n), stride=2)
        print('interval', t, 'side work ends', g, 'next barrier', bar.get(t + 1))
    for qt in range(4): q_conv(1, qt, Pq.done[1, qt] + 4)
    S.block(ms[2], cleared_signal)
    g = S.chain(ms[12], [f'v_and_b32 v{vT+2}, 4, v{vL4}', f'v_lshl_add_u32 v{vT+1}, v{vT+2}, 3, 32',
                         f'buffer_load_dword v{vPOLL}, v{vT+2}, {srd("DBG")}, 0 offen offset:132 {SC}'])
    def chk2(a):
        a(f'v_cmp_gt_u32 vcc, v{vT+1}, v{vPOLL}'); a('s_cbranch_vccnz L_mod2'); a.label('L_mod2j')
    S.block(sorted(b for b in bar.values() if b > g)[1] + 1, chk2)
    if OPT['tlb']:
        def tl(a):
            a(f'v_lshlrev_b32 v{vT}, 20, v0'); a(f's_mul_i32 {sT2}, {sRB}, {OPT["tlb"] - 1}')
            touch(a, 'WS', vT, 32, sT2)
        S.block(ms[57], tl)
    S.chain(ms[50], [f'v_mov_b32 v125, {hx(2.0**-40)}', f'v_mov_b32 v126, {hx(2.0**40)}', f's_mov_b64 {sBAD}, 0'])
    g = S.chain(pv_g[60] + 5, l_check(0))
    ins = o_convert(0, False); gs = max(g + 1, ms[62] + 4)
    prev = gs
    for i, x in enumerate(ins):
        gi = max(prev, gs + (i * (Gend - gs - 1)) // len(ins))
        if x.startswith('ds_'): prev = S.mem(gi + 1, x, force=True)
        else: prev = S.valu(gi, x, force=True)
    for nm, gg in (('q16', Pq.step(16)), ('qend', G), ('a8', ms[32]), ('a16', Gend)):
        S.block(gg, lambda a, nm=nm: stamp(a, nm))
    barrier(a)
    Pq.head(a)
    def drop(item, g):
        ab = OPT['abl']
        if not ab: return False
        if callable(item):
            nm = getattr(item, '__qualname__', '')
            return ('B' in ab and 'kv_bar' in nm and g > G) or ('T' in ab and '.pf.' in nm)
        if g < G: return ('q' in ab and item.startswith('buffer')) or ('r' in ab and item.startswith('ds_read'))
        return ('E' in ab and item.startswith('v_exp')) or ('C' in ab and item.startswith('v_cvt')) or ('R' in ab and item.startswith('ds_read')) \
            or ('D' in ab and item.startswith('buffer')) or ('W' in ab and (srd('WO') in item or (item.startswith('ds_read') and int(item.split('[')[1].split(':')[0]) >= aX)))
    S.emit(a, 'qproj+attn', drop)
    for qt in range(1, 4):
        for x in l_check(qt) + o_convert(qt, True): a(x)
    a(f's_cmp_lg_u64 {sBAD}, 0')
    a.raw('s_cbranch_scc1 L_slow')
    a.label('L_join')
    S = Sched2(2)
    oread = lambda k, qt: f'ds_read_b128 {ar(16*k + 4*qt, 4)}, v{vH+1} offset:{16384*qt + 1024*k}'
    nl = OPT['nlast']
    res = {n: ('a', aX + 16 * n, None) for n in range(6)}
    for n in range(22, 26): res[n] = ('v', 32 + 16 * (n - 22), 16 * (n - 22) + 2)
    for n in range(32 - nl, 32):
        q = n - (32 - nl); res[n] = ('v', 32 + 16 * q, 16 * 28 + 16 * q - 4 if nl == 2 else 16 * 25 + 12 * q - 4)
    Po = Proj(S, 'wo', wo_sig, 96, res, nl, oread)
    gb1 = S.scal(Po.step(16) + 3, barrier)
    Po.reads()
    def p_cvt(c, qt, ap, g, lim):
        o = Po.acc(c, 2 * ap, qt)
        for r in range(4): g = S.valu(g, f'v_cvt_pk_bf16_f32 v{o+r}, v{o+2*r}, v{o+2*r+1}', limit=g + lim)
        return g
    lastst = [0, 0]
    def p_store(c, qt, ap, g):
        o = Po.acc(c, 2 * ap, qt)
        g = max(g, S.scal(max(g - 3, lastst[ap] + 1), f's_add_u32 s{sP+1+ap}, s{sP}, {(8*c + 4*ap + qt) << 20}'))
        lastst[ap] = S.mem(g, f'buffer_store_dwordx4 v[{o}:{o+3}], v{vT}, {srd("WS")}, s{sP+1+ap} offen {SC}', ('p1', c))
        return lastst[ap]
    for q in range(8): gs = p_store(0, q // 2, q % 2, p_cvt(0, q // 2, q % 2, Po.step(16) + 6 + OPT['stsp'] * q, 99) + 1)
    grp = [(None, 0, wo_dma(6), ('wo', 6), 2), (None, 0, wo_dma(7), ('wo', 7), 2)]
    grp += [(n, 0, wo_dma(n - 14), ('wo', n - 14), 2) for n in range(22, 26)]
    grp += [(n, 0, wo_dma(n + 6), ('wo', n + 6), 2) for n in range(6, 16)]
    grp += [(n, Po.step(16) + OPT['wpace'] * (n - 16), wo_dma(n + 10), ('wo', n + 10), OPT['wpace'] // 4 - 1) for n in range(16, 22)]
    grp += [(26, 0, red_dma(), 'rd', 0)]
    grp += [(None, 0, w1_dma(0, i), ('w1', 0), OPT['w1st']) for i in range(4)]
    Po.stream(grp)
    print('c0 stores end at step', (gs - Po.g0) / 16, 'side DMA ends', (S.gend - Po.g0) / 16)
    g = S.chain(2, collect(tail_setup))
    assert g < Po.step(16), g
    S.block(Po.step(16), lambda a: flag_base(a, sWV))
    S.block(gs + OPT['siga'], lambda a: wave_signal(a, ('p1', 0), 1, 8))
    S.block(max(Po.rel[n] for n in range(26, 32)), barrier)
    ge = Po.done[1, 0] + 4
    S.mem(ge - OPT['polla'], f'buffer_load_dword v{vPOLL}, v{vT+1}, {srd("WS")}, {sWV} offen {SC}', force=True)
    assert gs + OPT['siga'] < ge
    def early(a):
        lab = a.newlabel('early')
        a(f'v_cmp_gt_u32 vcc, 1, v{vPOLL}'); a(f's_cbranch_vccnz {lab}')
        for x in part_loads(0): a.raw(x)
        a.raw(f's_mov_b32 {sLD}, 1')
        a.label(lab)
    S.block(ge, early)
    for qt in range(4):
        g = Po.done[1, qt] + 4
        for ap in range(2): g = p_store(1, qt, ap, p_cvt(1, qt, ap, g, 1) + 1)
    for nm, gg in (('wo0', 1), ('wo16', Po.step(16)), ('wo24', Po.step(24)), ('wo32', len(S.m))):
        S.block(gg, lambda a, nm=nm: stamp(a, nm))
    barrier(a)
    Po.head(a)
    def drop2(item, g):
        ab = OPT['abl']
        if callable(item): return False
        if 'p' in ab and item.startswith('buffer_store'):
            a(item.replace(' sc1', ''), ('p1', 0 if g < Po.step(29) else 1)); return True
        return ('1' in ab and srd('W1') in item) or ('s' in ab and item.startswith('buffer_store') and g < Po.step(29))
    S.emit(a, 'wo', drop2)

def slow_path(a):
    a.label('L_slow')
    a.fence()
    vM = vT; vAD = 124; vF = 120; vTR = 125
    a(f's_sub_u32 {sT2}, {sD}, {sC}')
    lane_fields(a, vAD, [(0, 4, 256), (5, 1, 16), (4, 1, 32)], vTR)
    a(f's_sub_u32 {sT0}, {sC}, {L_B}')
    for b in range(2): a(f'v_add_u32 v{vTR+b}, {sT0}, v{vTV+b}')
    a('v_mov_b32 v120, 0')
    for qt in range(4): a(f'v_mov_b32 v{vM+qt}, 0xff800000')
    for r in range(16): a(f'v_accvgpr_write_b32 a{aL+r}, v120')
    for r in range(128): a(f'v_mov_b32 v{vO+r}, 0')
    a('s_mov_b32 s98, 0')
    loop = a.newlabel('slowloop')
    a.fence()
    a.label(loop)
    for hf in range(2):
        a(f's_add_u32 m0, {sC}, {16384*hf}')
        a(f's_add_u32 {sT0}, {sT2}, {4096*hf}')
        for p in range(4): a(dma(sT0, vVD + p % 2, 'V', 1024 * p))
    for kt in range(2):
        a(f's_add_u32 {sT0}, {sT2}, {4096*kt}')
        for s in range(4): a(f'buffer_load_dwordx4 {ar(aK+16*kt+4*s,4)}, v{vAD}, {srd("K")}, {sT0} offen offset:{64*s}')
    a.wait_all()
    for tt in range(8):
        for r in range(2):
            a(f'ds_read_b64_tr_b16 {ar(aV+4*tt+2*r,2)}, v{vTR + tt % 2} offset:{16384*r + 256*(tt//2)}')
    for qt in range(4):
        b = vS; t = vF
        for kt in range(2):
            for s in range(4): a(m16(vr(b + 4 * kt, 4), ar(aK + 16 * kt + 4 * s, 4), vr(vQ + 16 * s + 4 * qt, 4), s == 0))
        a(f'v_max3_f32 v{t}, v{b}, v{b+1}, v{vM+qt}')
        for r in range(2, 8, 2): a(f'v_max3_f32 v{t}, v{b+r}, v{b+r+1}, v{t}')
        for sw in ('16', '32'):
            a(f'v_mov_b32 v{t+1}, v{t}'); a(f'v_permlane{sw}_swap_b32 v{t}, v{t+1}'); a(f'v_max_f32 v{t}, v{t}, v{t+1}')
        a(f'v_sub_f32 v{t+1}, v{vM+qt}, v{t}')
        a(f'v_exp_f32 v{t+1}, v{t+1}')
        a(f'v_mov_b32 v{vM+qt}, v{t}')
        a(f'v_accvgpr_read_b32 v{t+2}, a{aL+4*qt}')
        a(f'v_mul_f32 v{t+2}, v{t+2}, v{t+1}')
        for r in range(4): a(f'v_accvgpr_write_b32 a{aL+4*qt+r}, v{t+2}')
        for r in range(32): a(f'v_mul_f32 v{vO+32*qt+r}, v{vO+32*qt+r}, v{t+1}')
        for r in range(8): a(f'v_sub_f32 v{b+r}, v{b+r}, v{t}')
        for r in range(8): a(f'v_exp_f32 v{b+r}, v{b+r}')
        for r in range(4): a(f'v_cvt_pk_bf16_f32 v{vP+r}, v{b+2*r}, v{b+2*r+1}')
        a(m16(ar(aL + 4 * qt, 4), ar(aONE, 4), vr(vP, 4), False))
        for tt in range(8): a(m16(vr(vO + 32 * qt + 4 * tt, 4), ar(aV + 4 * tt, 4), vr(vP, 4), False))
    a(f's_add_u32 {sT2}, {sT2}, 8192')
    a.fence()
    a('s_add_u32 s98, s98, 1')
    a('s_cmp_lt_u32 s98, 16')
    a.raw(f's_cbranch_scc1 {loop}')
    for qt in range(4):
        a(f'v_accvgpr_read_b32 v{vR+qt}, a{aL+4*qt}'); a(f'v_rcp_f32 v{vR+qt}, v{vR+qt}')
    for qt in range(4):
        for x in o_convert(qt, True): a(x)
    a.fence()
    a.raw('s_branch L_join')

vW1, vL16, vRX, vRM, vPA = 6, 10, 11, 20, 21
def tail_setup(a):
    t = vT + 2
    lane_fields(a, vT, [(3, 1, 16384), (4, 2, 128), (0, 3, 16)], t)
    lane_fields(a, vPA, [(5, 1, 1 << 22), (0, 5, 16)], t)
    a(f's_lshl_b32 {sT2}, {sRB}, 15'); a(f's_lshl_b32 {sT0}, {sW}, 9'); a(f's_add_u32 {sT2}, {sT2}, {sT0}'); a(f's_add_u32 {sT2}, {sT2}, {WS_P1}')
    a(f's_lshl_b32 s{sP}, {sG}, 11'); a(f's_add_u32 s{sP}, s{sP}, {sT2}')
    a(f's_lshr_b32 {sRD}, {sG}, 1'); a(f's_lshl_b32 {sRD}, {sRD}, 20'); a(f's_add_u32 {sRD}, {sRD}, {sT2}')
    a(f's_and_b32 {sT0}, {sG}, 1'); a(f's_lshl_b32 {sT0}, {sT0}, 14'); a(f's_add_u32 {sRD}, {sRD}, {sT0}')
    a(f's_mov_b32 {sLD}, 0')
    a(f'v_and_b32 v{vT+1}, 7, v0'); a(f'v_max_u32 v{vT+1}, 1, v{vT+1}'); a(f'v_xor_b32 v{vT+1}, {sG}, v{vT+1}'); a(f'v_lshlrev_b32 v{vT+1}, 2, v{vT+1}')
    a(f'v_lshlrev_b32 v{vL16}, 4, v0')
    a(f'v_lshlrev_b32 v{vSIG}, 9, v0')
    a(f's_lshl_b32 {sT2}, {sW}, 7'); a(f's_add_u32 {sT2}, {sT2}, {F_A}')
    a(f's_lshl_b32 {sSIG}, {sRB}, 12'); a(f's_lshl_b32 {sT0}, {sG}, 2'); a(f's_add_u32 {sSIG}, {sSIG}, {sT0}'); a(f's_add_u32 {sSIG}, {sSIG}, {sT2}')
    a(f's_lshl_b32 {sWV}, {sL}, 9'); a(f's_add_u32 {sWV}, {sWV}, {sT2}'); a(f's_lshl_b32 {sWAIT}, s2, 7'); a(f's_add_u32 {sWAIT}, {sWAIT}, {F_B}')
    a(f's_lshr_b32 {sOWN}, 0x80, {sG}')
    a(f's_and_b32 {sG}, s2, 7'); a(f's_lshr_b32 {sRB}, s2, 3')
    a(f's_mul_i32 {sRH}, {sRB}, 37'); a(f's_lshr_b32 {sRH}, {sRH}, 9')
    a(f's_mul_i32 {sFS}, {sRH}, 14'); a(f's_sub_u32 {sFS}, {sRB}, {sFS}')
    a(f's_lshl_b32 {sW1}, {sFS}, 8'); a(f's_mul_i32 {sT0}, {sW}, {32*3584}'); a(f's_add_u32 {sW1}, {sW1}, {sT0}')
    w64_offsets(a, vW1, t, 3584, 4, lambda p: 8 * p)
    a(f's_and_b32 {sF}, {sRB}, 7'); a(f's_lshr_b32 {sE}, {sRB}, 3'); a(f's_lshl_b32 {sT0}, {sG}, 2'); a(f's_add_u32 {sE}, {sE}, {sT0}')
    a(f's_mul_i32 {sH}, {sW}, {448*1024}'); a(f's_lshl_b32 {sT0}, {sF}, 7'); a(f's_add_u32 {sH}, {sH}, {sT0}')
    lane_fields(a, vRX, [(4, 2, 1024), (0, 4, 16)], t)
    lane_fields(a, vRM, [(5, 1, 2048), (0, 5, 16)], t)
    a(f's_and_b32 {sT0}, {sW}, 1'); a(f's_lshl_b32 {sT0}, {sT0}, 15'); a(f's_sub_u32 {sT0}, {sT0}, {sC}')
    for b in range(2):
        a(f'v_subrev_u32 v{vTRC+b}, 0x10000, v{vTRA+b}'); a(f'v_add_u32 v{vTW1+b}, {sT0}, v{vTRC+b}')
def w1_dma(b, i, so='{so}'):
    return [f's_add_u32 m0, {sC}, {65536*b + 16384*i}', f's_add_u32 {so}, {sW1}, {128*3584*(2*b + i%2) + 128*(i//2)}'] + \
           [dma(so, vW1 + p, 'W1', 1024 * p) for p in range(4)]
def red_dma():
    return [f's_add_u32 m0, {sC}, {slot_lds(4)}', f's_lshl_b32 {sT1}, {sL}, 13', f's_lshl_b32 {sT0}, {sW}, 8', f's_add_u32 {sT1}, {sT1}, {sT0}',
            dma(sT1, vRX, 'X', 0), f's_add_u32 {sT1}, {sT1}, 3072', dma(sT1, vRX, 'X', 1024),
            f's_lshl_b32 {sT1}, {sW}, 9', f's_add_u32 {sT1}, {sT1}, {WS_MOD + 4096 - 2048}', dma(sT1, vRM, 'WS', 2048, SC),
            f's_add_u32 {sT1}, {sT1}, 3072', dma(sT1, vRM, 'WS', 3072, SC)]
PL = 128
def part_loads(c):
    out = []; fl = ['sc1', 'sc1 nt', 'sc0 sc1', 'sc0 sc1 nt'][OPT['pfl']]
    for g in range(8):
        if g % 2 == 0: out.append(f's_add_u32 {sT0}, {sRD}, {(c << 23) + 2048*g}')
        out.append(f'buffer_load_dwordx4 v[{PL+32*c+4*g}:{PL+32*c+4*g+3}], v{vPA}, {srd("WS")}, {sT0} offen offset:{2048*(g%2)} {fl}')
    return out

RX, RM, ACC, T = 64, 192, 80, 96
def red_operands(a):
    a.wait_tag('rd')
    lane_fields(a, 120, [(0, 3, 256), (5, 1, 64), (3, 2, 8)], 121)
    lane_fields(a, 121, [(5, 1, 128), (3, 2, 16)], 122)
    a(f's_add_u32 {sT0}, {sC}, {slot_lds(4)}')
    a(f'v_add_u32 v120, {sT0}, v120'); a(f'v_add_u32 v121, {sT0}, v121')
    for c in range(2):
        for hf in range(2): a(f'ds_read_b64 v[{T+4*c+2*hf}:{T+4*c+2*hf+1}], v120 offset:{128*c + 32*hf}')
    for vec in range(3):
        for c in range(2):
            for hf in range(2):
                b = RM + 16 * vec + 8 * c + 4 * hf
                a(f'ds_read_b128 v[{b}:{b+3}], v121 offset:{2048 + 512*vec + 256*c + 64*hf}')
    for r in range(8):
        a(f'v_lshlrev_b32 v{RX+2*r}, 16, v{T+r}'); a(f'v_and_b32 v{RX+2*r+1}, {sMASK}, v{T+r}')
    a('v_mov_b32 v122, 0x3f80'); a('v_mov_b32 v123, 0x3f800000')
def red_sum(a, c):
    P = PL + 32 * c; A = ACC + 8 * c
    for r in range(4):
        a(f'v_lshlrev_b32 v{A+2*r}, 16, v{P+r}'); a(f'v_and_b32 v{A+2*r+1}, {sMASK}, v{P+r}')
    for g in range(1, 8):
        for r in range(4):
            a(f'v_dot2c_f32_bf16 v{A+2*r}, v{P+4*g+r}, v122'); a(f'v_dot2c_f32_bf16 v{A+2*r+1}, v{P+4*g+r}, v123')
    for r in range(4 * c, 4 * c + 4):
        a(f'v_pk_fma_f32 v[{ACC+2*r}:{ACC+2*r+1}], v[{ACC+2*r}:{ACC+2*r+1}], v[{RM+2*r}:{RM+1+2*r}], v[{RX+2*r}:{RX+2*r+1}]')

def late_sum(a, loads):
    l0, l1 = a.newlabel('ls'), a.newlabel('lsj')
    dm = list(a.vm)
    a(f's_cmp_lg_u32 {sLD}, 0'); a.raw(f's_cbranch_scc1 {l0}')
    a.vm = dm + loads; red_sum(a, 1); a.raw(f's_branch {l1}')
    a.label(l0)
    a.vm = loads + dm; red_sum(a, 1)
    a.label(l1)

def allred8(a, r, t):
    a(f'v_add_f32_dpp v{r}, v{r}, v{r} row_ror:8 row_mask:0xf bank_mask:0xf')
    a(f'v_mov_b32 v{t}, v{r}'); a(f'v_permlane16_swap_b32 v{r}, v{t}'); a(f'v_add_f32 v{r}, v{r}, v{t}')
    a(f'v_mov_b32 v{t}, v{r}'); a(f'v_permlane32_swap_b32 v{r}, v{t}'); a(f'v_add_f32 v{r}, v{r}, v{t}')

def red_addr(a):
    lane_fields(a, 125, [(0, 3, 32)], 124, add=slot_lds(5))
    a(f's_lshl_b32 {sT1}, {sW}, 3'); a(f'v_add_u32 v124, {sT1}, v125')
    lane_fields(a, 126, [(3, 3, 256), (0, 3, 16)], 127)
    a(f's_lshr_b32 s{sP}, {sL}, 1'); a(f's_lshl_b32 s{sP}, s{sP}, 14')
    a(f's_and_b32 {sT1}, {sL}, 1'); a(f's_lshl_b32 {sT1}, {sT1}, 7'); a(f's_add_u32 s{sP}, s{sP}, {sT1}')
    a(f's_add_u32 s{sP}, s{sP}, {sC}'); a(f's_add_u32 s{sP}, s{sP}, {WS_H2}')
    a(f's_lshl_b32 s{sP+2}, {sL}, 13'); a(f's_lshl_b32 {sT1}, {sW}, 11'); a(f's_add_u32 s{sP+2}, s{sP+2}, {sT1}'); a(f's_add_u32 s{sP+2}, s{sP+2}, {WS_X1}')
    a(f'v_lshlrev_b32 v{vSIG}, 10, v0')
    a(f's_bfe_u32 {sSIG}, {sL}, 0x10004'); a(f's_mul_i32 {sSIG}, {sSIG}, {14*8}'); a(f's_lshr_b32 {sT0}, {sL}, 5'); a(f's_add_u32 {sSIG}, {sSIG}, {sT0}')
    a(f's_lshl_b32 {sSIG}, {sSIG}, 7'); a(f's_and_b32 {sT0}, {sL}, 15'); a(f's_lshl_b32 {sT0}, {sT0}, 2'); a(f's_add_u32 {sSIG}, {sSIG}, {sT0}')
    a(f's_add_u32 {sSIG}, {sSIG}, {F_B}')

def red_ln(a):
    X1 = 112
    for r in range(4): a(f'v_pk_add_f32 v[{T+2*r}:{T+2*r+1}], v[{ACC+2*r}:{ACC+2*r+1}], v[{ACC+8+2*r}:{ACC+9+2*r}]')
    for r in range(2): a(f'v_pk_add_f32 v[{T+2*r}:{T+2*r+1}], v[{T+2*r}:{T+2*r+1}], v[{T+4+2*r}:{T+5+2*r}]')
    a(f'v_pk_add_f32 v[{T}:{T+1}], v[{T}:{T+1}], v[{T+2}:{T+3}]')
    a(f'v_add_f32 v{T}, v{T}, v{T+1}')
    for r in range(8): a(f'v_cvt_pk_bf16_f32 v{X1+r}, v{ACC+2*r}, v{ACC+2*r+1}')
    allred8(a, T, T + 1)
    a(f'v_mul_f32 v{T}, {hx(-1.0/128)}, v{T}')
    for r in range(8): a(f'v_pk_add_f32 v[{ACC+2*r}:{ACC+2*r+1}], v[{ACC+2*r}:{ACC+2*r+1}], v[{T}:{T+1}] op_sel_hi:[1,0]')
    for h in range(2): a(f'v_pk_mul_f32 v[{T+2+2*h}:{T+3+2*h}], v[{ACC+2*h}:{ACC+2*h+1}], v[{ACC+2*h}:{ACC+2*h+1}]')
    for r in range(2, 8):
        h = r % 2
        a(f'v_pk_fma_f32 v[{T+2+2*h}:{T+3+2*h}], v[{ACC+2*r}:{ACC+2*r+1}], v[{ACC+2*r}:{ACC+2*r+1}], v[{T+2+2*h}:{T+3+2*h}]')
    a(f'v_pk_add_f32 v[{T+2}:{T+3}], v[{T+2}:{T+3}], v[{T+4}:{T+5}]')
    a(f'v_add_f32 v{T+1}, v{T+2}, v{T+3}')
    allred8(a, T + 1, T + 2)
    a(f'ds_write_b64 v124, v[{T}:{T+1}]')
    for i in range(2): a(f'buffer_store_dwordx4 v[{X1+4*i}:{X1+4*i+3}], v{vL16}, {srd("WS")}, s{sP+2} offen offset:{1024*i} {SC}', 'x1')
    barrier(a)
    a(f'ds_read_b128 v[{T+4}:{T+7}], v125'); a(f'ds_read_b128 v[{T+8}:{T+11}], v125 offset:16')
    a(f'v_pk_add_f32 v[{T+12}:{T+13}], v[{T+4}:{T+5}], v[{T+6}:{T+7}]')
    a(f'v_pk_add_f32 v[{T+14}:{T+15}], v[{T+8}:{T+9}], v[{T+10}:{T+11}]')
    a(f'v_pk_add_f32 v[{T+12}:{T+13}], v[{T+12}:{T+13}], v[{T+14}:{T+15}]')
    a(f'v_mul_f32 v{T+12}, {hx(0.25)}, v{T+12}')
    for w in range(4): a(f'v_sub_f32 v{T+4+2*w}, v{T+4+2*w}, v{T+12}')
    a(f'v_mul_f32 v{T+14}, v{T+4}, v{T+4}')
    for w in range(1, 4): a(f'v_fmac_f32 v{T+14}, v{T+4+2*w}, v{T+4+2*w}')
    a(f'v_fmamk_f32 v{T+13}, v{T+14}, {hx(128.0)}, v{T+13}')
    a(f'v_mov_b32 v{T+14}, {hx(1e-5)}')
    a(f'v_fmamk_f32 v{T+13}, v{T+13}, {hx(1.0/512)}, v{T+14}')
    a(f'v_rsq_f32 v{T+13}, v{T+13}')
    a(f'v_sub_f32 v{T+12}, v{T+12}, v{T}')
    a(f'v_mul_f32 v{T+12}, v{T+12}, v{T+13}')
    for i in range(2):
        for r in range(4 * i, 4 * i + 4):
            a(f'v_pk_fma_f32 v[{ACC+2*r}:{ACC+2*r+1}], v[{ACC+2*r}:{ACC+2*r+1}], v[{T+12}:{T+13}], v[{T+12}:{T+13}] op_sel:[0,1,0] op_sel_hi:[1,1,0]')
        for r in range(4 * i, 4 * i + 4):
            a(f'v_pk_fma_f32 v[{ACC+2*r}:{ACC+2*r+1}], v[{ACC+2*r}:{ACC+2*r+1}], v[{RM+32+2*r}:{RM+33+2*r}], v[{RM+16+2*r}:{RM+17+2*r}]')
        for r in range(4 * i, 4 * i + 4): a(f'v_cvt_pk_bf16_f32 v{T+r}, v{ACC+2*r}, v{ACC+2*r+1}')
        a(f'buffer_store_dwordx4 v[{T+4*i}:{T+4*i+3}], v126, {srd("WS")}, s{sP} offen offset:{2048*i} {SC}', 'h2')

def w1_reads(b):
    return [f'ds_read_b64_tr_b16 {ar(128*b + 16*k + 4*t + 2*r, 2)}, v{vTW1 + t % 2} offset:{4096*k + 2048*r + 256*(t//2)}'
            for k in range(8) for t in range(4) for r in range(2)]
class Weave:
    def __init__(self, a, extra, every): self.a, self.extra, self.every, self.n = a, list(extra), every, 0
    def __getattr__(self, k): return getattr(self.a, k)
    def pop(self):
        while self.extra:
            x, tag = self.extra.pop(0); self.a(x, tag)
            if x.startswith('buffer'): break
    def __call__(self, t, tag=None):
        self.a(t, tag); self.n += 1
        if self.n % self.every == 0: self.pop()
    def flush(self):
        while self.extra: self.pop()
W2_LEFT = []
def w2_sig(k): return k - 4 if k < 10 else k - 14
def w2_dma(k, so='{so}'):
    return [f's_add_u32 m0, {sC}, {slot_lds(w2_sig(k))}', f's_add_u32 {so}, {sH}, {32*1024*k}'] + \
           [dma(so, vW4 + p, 'W2', 1024 * p) for p in range(4)]
def w2_reg(k, t): return ('v', 32 + 16 * k + 4 * t) if k < 4 else ('a', 16 * (k - 4) + 4 * t)
def w2_reads(k):
    return [w_read(vr(w2_reg(k, t)[1] + 2 * r, 2, w2_reg(k, t)[0]), w2_sig(k), t, r) for t in range(4) for r in range(2)]
NB2 = 16
def b2_reg(i, k): return 192 + 4 * ((14 * i + k) % NB2)
def b2_load(i, k):
    out = [f's_add_u32 {sT0}, {sH1}, {57344*i + 4096*(k//4)}'] if k % 4 == 0 else []
    return out + [f'buffer_load_dwordx4 {vr(b2_reg(i,k),4)}, v{vL16}, {srd("WS")}, {sT0} offen offset:{1024*(k%4)} {SC}']
def h1_touch(a, i):
    a(f's_mul_i32 {sT2}, {sF}, {14*128}'); a(f's_add_u32 {sT2}, {sT2}, {sH1}'); a(f's_add_u32 {sT2}, {sT2}, {57344*i}')
    touch(a, 'WS', vT + 2, 14, sT2, vT + 3)
PF2 = 10
def g2_head(a):
    h1_touch(a, 0)
    for k in range(PF2):
        for x in b2_load(0, k): a(x)

def mlp_addr(a):
    a(f'v_lshlrev_b32 v{vT+2}, 7, v0'); a(f'v_min_u32 v{vT+1}, {6*128}, v{vT+2}')
    a(f's_mul_i32 {sT0}, {sW}, {7*128}'); a(f's_lshl_b32 {sWV}, {sE}, 12'); a(f's_add_u32 {sWV}, {sWV}, {sT0}'); a(f's_add_u32 {sWV}, {sWV}, {F_C}')
    a(f's_mul_i32 {sH1}, {sE}, {4*57344}'); a(f's_mul_i32 {sT0}, {sW}, {14*1024}'); a(f's_add_u32 {sH1}, {sH1}, {sT0}'); a(f's_add_u32 {sH1}, {sH1}, {WS_H1}')
    a(f's_lshr_b32 {sT1}, {sW}, 1'); a(f's_lshl1_add_u32 {sT2}, {sRH}, {sT1}'); a(f's_lshl2_add_u32 {sR32}, {sG}, {sT2}')
    a(f's_and_b32 {sT3}, {sW}, 1')
    a(f's_lshl_b32 {sH2}, {sR32}, 16'); a(f's_lshl_b32 {sT0}, {sT3}, 13'); a(f's_add_u32 {sH2}, {sH2}, {sT0}'); a(f's_add_u32 {sH2}, {sH2}, {WS_H2}')
    a(f's_lshl1_add_u32 {sT3}, {sFS}, {sT3}')
    a(f's_mul_i32 s{sP}, {sR32}, {4*57344}'); a(f's_lshl_b32 {sT0}, {sT3}, 11'); a(f's_add_u32 s{sP}, s{sP}, {sT0}'); a(f's_add_u32 s{sP}, s{sP}, {WS_H1}')
    for q in range(1, 4): a(f's_add_u32 s{sP+q}, s{sP}, {57344*q}')
    a(f's_lshl_b32 {sSIG}, {sR32}, 12'); a(f's_lshl_b32 {sT0}, {sT3}, 7'); a(f's_add_u32 {sSIG}, {sSIG}, {sT0}'); a(f's_add_u32 {sSIG}, {sSIG}, {F_C}')
    a(f's_lshl_b32 {sD}, {sW}, 13')
    a(f's_lshl_b32 {sT1}, {sT1}, 14'); a(f'v_add_u32 v{vH}, {sT1}, v{vL16}')

vPK = 176
def silu(i):
    o = 128 + 16 * (i % 2); t = 160; ops = []
    for h in range(8):
        m = []
        for r in (2 * h, 2 * h + 1):
            n = len(ops)
            ops += [(f'v_exp_f32 v{t+r}, v{o+r}', []), (f'v_add_f32 v{t+r}, 1.0, v{t+r}', [n]), (f'v_rcp_f32 v{t+r}, v{t+r}', [n + 1]),
                    (f'v_mul_f32 v{t+r}, v{o+r}, v{t+r}', [n + 2])]
            m.append(n + 3)
        ops.append((f'v_cvt_pk_bf16_f32 v{vPK+8*(i%2)+h}, v{t+2*h}, v{t+2*h+1}', m))
    return ops
def h1_store(i, ap):
    o = vPK + 8 * (i % 2) + 4 * ap
    return f'buffer_store_dwordx4 v[{o}:{o+3}], v{vL16}, {srd("WS")}, s{sP+i} offen offset:{1024*ap} {SC}'

def phase_g1(a):
    def h2_dma(i, hf, so='{so}'):
        return [f's_add_u32 m0, {sD}, {32768*(i%2) + 4096*hf}', f's_add_u32 {so}, {sH2}, {16384*i + 4096*hf}'] + \
               [dma(so, vL16, 'WS', 1024 * p, SC) for p in range(4)]
    a(f's_lshl2_add_u32 {sT1}, {sFS}, {sW}'); a(f's_mul_i32 {sT1}, {sT1}, {19*128}')
    a(f's_min_u32 {sT1}, {sT1}, {131072 - 19*128}'); a(f's_andn2_b32 {sT2}, {sH2}, 0x1ffff'); a(f's_add_u32 {sT2}, {sT1}, {sT2}')
    flag_check(a, 'B', 1)
    barrier(a); stamp(a, 'syncB')
    for hf in range(2):
        for x in h2_dma(0, hf, sT1): a(x, ('h2', 0))
    touch(a, 'WS', vT + 2, 19, sT2, vT + 3)
    flag_base(a, sWV)
    S = Sched2(2)
    breg = lambda i, k: 96 + 4 * (k % 8)
    bread = lambda i, k: f'ds_read_b128 {vr(breg(i,k),4)}, v{vH} offset:{32768*(i%2) + 1024*k}'
    for i in range(4):
        for k in range(16):
            for t in range(4): S.mfma(m16(vr(128 + 16 * (i % 2) + 4 * t, 4), ar(16 * k + 4 * t, 4), vr(breg(i, k), 4), k == 0))
    LA = 28; bar = {}
    a.wait_tag(('h2', 0)); barrier(a)
    for i in range(4):
        if i: bar[i] = S.scal(64 * i - (22 if i == 2 else 12), lambda a, i=i: (a.wait_tag(('h2', i)), barrier(a)), force=True)
        g = 0
        for k in range(16):
            g = max(64 * i + 4 * k - LA, bar.get(i, -99), g + 2 if i else -99)
            if g <= 0: a(bread(i, k))
            else: g = S.mem(g, bread(i, k))
            assert g <= 64 * i + 4 * k - 8 or g <= 0
    left = list(W2_LEFT)
    for i in (2, 3):
        for ap in range(2): S.mem(64 * i + 1 + ap, h1_store(i - 2, ap), ('h1', i - 2))
        S.block(64 * i + OPT['sigc'], lambda a, i=i: wave_signal(a, ('h1', i - 2), i - 1, 1))
    for i in range(4):
        g = bar.get(i, 0) + 1
        if i < 3:
            for hf in range(2): g = S.group(g, h2_dma(i + 1, hf), ('h2', i + 1), stride=3)
        else:
            for k in (10, 11): g = S.group(g, w2_dma(k), ('w2', k), stride=3)
        ge = g
        for _ in range(-(-len(left) // (3 - i)) if i < 3 else 0):
            k = left.pop(0); g = S.group(g + 1, w2_dma(k), ('w2', k), stride=2 if i == 0 else 3)
        print('gemm1 stage', i, 'DMA ends', ge - 64 * i, g - 64 * i)
    assert not left
    S.block(192 + OPT['pollc'], lambda a: (barrier(a), [a(x) for x in flag_loads('C')]))
    for i in range(1, 4):
        at = fill(S, silu(i - 1), 64 * i + 3, 64 * i + 63)
        assert max(at.values()) <= 64 * i + 64, max(at.values())
    for nm, gg in (('g0', 1), ('t_g50', 50), ('t_g64', 64), ('g128', 128), ('t_g192', 192), ('g256', 256)): S.block(gg, lambda a, nm=nm: stamp(a, nm))
    S.emit(a, 'gemm1')
    for ap in range(2): a(h1_store(2, ap), ('h1', 2))
    flag_check(a, 'C', 1); stamp(a, 'syncC')
    g2_head(a)
    a.wait_tag(('w2', 11))

vRW, vRR, vXR, vOA, vGB, vRD = 6, 11, 20, 21, 96, 100
def g2_addr(a):
    a(f'v_lshrrev_b32 v{vT}, 4, v0'); a(f'v_and_b32 v{vH+1}, 15, v0')
    a(f'v_xor_b32 v{vRW}, v{vT}, v{vH+1}'); a(f'v_lshlrev_b32 v{vRW}, 4, v{vRW}'); a(f'v_lshl_add_u32 v{vRW}, v{vT}, 8, v{vRW}')
    a(f's_add_u32 {sT1}, {sC}, {L_A}'); a(f'v_add_u32 v{vRW}, {sT1}, v{vRW}')
    for t in range(1, 4): a(f'v_xor_b32 v{vRW+t}, {64*t}, v{vRW}')
    a(f's_lshl_b32 {sT1}, {sW}, 2'); a(f'v_add_u32 v{vT}, {sT1}, v{vT}')
    a(f'v_xor_b32 v{vRR}, v{vT}, v{vH+1}'); a(f'v_lshlrev_b32 v{vRR}, 4, v{vRR}'); a(f'v_lshl_add_u32 v{vRR}, v{vH+1}, 8, v{vRR}')
    a(f'v_add_u32 v{vRR}, {L_A}, v{vRR}')
    a(f'v_lshlrev_b32 v{vOA}, 3, v{vH+1}'); a(f'v_lshl_add_u32 v{vOA}, v{vT}, 10, v{vOA}')
    lane_fields(a, vXR, [(3, 1, 512), (0, 2, 128), (2, 1, 8), (4, 2, 16)], vT, add=slot_lds(4))
    a(f's_lshr_b32 {sT1}, {sW}, 1'); a(f's_lshl_b32 {sT1}, {sT1}, 10'); a(f's_and_b32 {sT2}, {sW}, 1'); a(f's_lshl_b32 {sT2}, {sT2}, 6')
    a(f's_add_u32 {sT1}, {sT1}, {sT2}'); a(f'v_add_u32 v{vXR}, {sT1}, v{vXR}')
    a(f'v_lshlrev_b32 v{vH+1}, 4, v{vH+1}')
    a(f's_lshl_b32 {sA}, {sE}, 16'); a(f's_lshl_b32 {sT1}, {sF}, 7'); a(f's_add_u32 {sB}, {sA}, {sT1}')
    a(f's_lshl_b32 {sT1}, {sW}, 14'); a(f's_add_u32 {sA}, {sA}, {sT1}'); a(f's_lshl_b32 {sT1}, {sF}, 10'); a(f's_add_u32 {sA}, {sA}, {sT1}')
    a(f's_add_u32 {sA}, {sA}, {WS_X1}')
    a(f's_lshl_b32 {sLD}, {sF}, 8'); a(f's_add_u32 {sLD}, {sLD}, {WS_MOD + 2048*5}')

def phase_g2(a):
    for x in flag_loads('C'): a(x)
    for k in range(4, 12):
        for x in w2_reads(k): a(x, ('ar', k))
    for k in (12, 13):
        for x in w2_dma(k, sT1): a(x, ('w2', k))
    S = Sched2(2)
    acc = lambda i, t: 128 + 16 * (i % 2) + 4 * t
    for i in range(4):
        for k in range(14):
            for t in range(4):
                kind, r = w2_reg(k, t)
                S.mfma(m16(vr(acc(i, t), 4), vr(r, 4, kind), vr(b2_reg(i, k), 4), k == 0))
    g = 1
    for n in range(PF2, 56):
        i, k = divmod(n, 14); g = max(g, 4 * (n - PF2) + 2)
        if k == 0:
            S.block(g - 1, lambda a, i=i: stamp(a, f't_pre{i}'))
            S.block(g - 1, lambda a, i=i: (flag_check(a, 'C', i + 1), stamp(a, f't_chk{i}'), h1_touch(a, i)))
        g = S.chain(g, b2_load(i, k))
    S.block(1, lambda a: wave_signal(a, ('h1', 2), 3, 1))
    g = 20
    for k in range(12, 14):
        g = S.scal(g, lambda a, k=k: a.wait_tag(('w2', k)))
        for x in w2_reads(k): g = S.mem(g, x, ('ar', k))
        assert g <= 4 * k - 3, (k, g)
    S.block(g + 6, lambda a: (a.wait_all(vm=False), [a(x) for x in flag_loads('C')]))
    g = S.group(g + 1, [f's_add_u32 m0, {sC}, {slot_lds(4)}', dma(sA, vL16, 'WS', 0, SC), f's_add_u32 {sA}, {sA}, {8192-1024}', dma(sA, vL16, 'WS', 1024, SC)], 'xe')
    S.mem(g + 1, f'buffer_load_dwordx4 v[{vGB}:{vGB+3}], v{vH+1}, {srd("WS")}, {sLD} offen {SC}')
    at = fill(S, silu(3), 1, OPT['silu3'])
    gl = max(at.values())
    assert gl < 55
    for ap in range(2): gl = S.mem(gl + 1, h1_store(3, ap), ('h1', 3))
    S.block(gl + OPT['sig4'], lambda a: wave_signal(a, ('h1', 3), 4, 1))
    def wr(i): return [f'ds_write_b128 v{vRW+t}, v[{acc(i,t)}:{acc(i,t)+3}] offset:{16384*i + 1024*t}' for t in range(4)]
    def rd(i): return [f'ds_read_b128 v[{vRD+4*w}:{vRD+4*w+3}], v{vRR} offset:{16384*i + 4096*w}' for w in range(4)] + \
                      [f'ds_read_b64 v[{vRD+16}:{vRD+17}], v{vXR} offset:{4096*i}']
    def fin(i):
        X = vRD + 16; out = []
        for e in range(4): out += [f'v_add_f32 v{vRD+e}, v{vRD+e}, v{vRD+4+e}', f'v_add_f32 v{vRD+8+e}, v{vRD+8+e}, v{vRD+12+e}']
        out += [f'v_lshlrev_b32 v{X+2}, 16, v{X}', f'v_and_b32 v{X+3}, {sMASK}, v{X}', f'v_lshlrev_b32 v{X+4}, 16, v{X+1}', f'v_and_b32 v{X+5}, {sMASK}, v{X+1}']
        for e in range(4): out.append(f'v_add_f32 v{vRD+e}, v{vRD+e}, v{vRD+8+e}')
        for e in range(4): out.append(f'v_fmac_f32 v{X+2+e}, v{vRD+e}, v{vGB+e}')
        out += [f'v_cvt_pk_bf16_f32 v{X+6+h}, v{X+2+2*h}, v{X+3+2*h}' for h in range(2)]
        out += [f's_add_u32 {sT1}, {sB}, {16384*i}', f'buffer_store_dwordx2 v[{X+6}:{X+7}], v{vOA}, {srd("OUT")}, {sT1} offen']
        return out
    def bar(a): a.wait_tag('xe'); barrier(a)
    for i in range(3):
        g = S.chain(56 * (i + 1) + 4, wr(i), stride=3)
        g = S.scal(g + 8, bar)
        g = S.chain(g, rd(i))
        if i == 0: S.block(g + 7, lambda a: (a.wait_all(vm=False), [a(x) for x in flag_loads('C')]))
        g = S.chain(g + 8, fin(i))
        assert g < 56 * (i + 2) + 4, g
    S.block(40, lambda a: stamp(a, 't_f40')); S.block(56, lambda a: stamp(a, 't_f56')); S.block(90, lambda a: stamp(a, 't_f90'))
    S.block(1, lambda a: stamp(a, 'f0')); S.block(112, lambda a: stamp(a, 'f112')); S.block(224, lambda a: stamp(a, 'f224'))
    S.emit(a, 'gemm2')
    for x in wr(3): a(x)
    barrier(a)
    for x in rd(3) + fin(3): a(x)

def k_mega(a):
    a.raw('s_cmp_ge_u32 s2, 256')
    a.raw('s_cbranch_scc1 L_end')
    stamp_names.append([])
    if OPT['stamps']: a('s_memrealtime s[98:99]'); a('s_memtime s[96:97]')
    else: stamp(a, 'start')
    names = ['WM', 'C', 'X', 'WS', 'DBG', 'WQ', 'K', 'V', 'WO', 'W1', 'W2', 'OUT']
    for n in names: a(f's_load_dwordx2 s[{SRD[n]}:{SRD[n]+1}], s[0:1], {KOFF[n]}')
    a(f's_lshr_b32 {sRB}, s2, 3')
    lc = a.newlabel('nocode')
    a(f's_cmp_ge_u32 {sRB}, 29')
    a.raw(f's_cbranch_scc0 {lc}')
    a.raw('s_getpc_b64 s[66:67]')
    a.label('L_pc')
    a.raw(f's_sub_u32 {sT0}, {sRB}, 29'); a.raw(f's_lshl_b32 {sT0}, {sT0}, 15')
    a.raw(f'v_lshl_add_u32 v2, v0, 7, {sT0}')
    a.raw('v_min_u32 v2, L_code_end - L_pc - 4, v2')
    a.raw('v_mov_b32 v3, s67'); a.raw('v_add_co_u32 v2, vcc, s66, v2'); a.raw('s_nop 1'); a.raw('v_addc_co_u32 v3, vcc, 0, v3, vcc')
    a.raw('global_load_dword v28, v[2:3], off')
    a.label(lc)
    a('v_lshrrev_b32 v1, 6, v0')
    for n in names:
        a(f's_mov_b32 s{SRD[n]+2}, {SIZE[n]}'); a(f's_mov_b32 s{SRD[n]+3}, 0x20000')
    a(f's_and_b32 {sG}, s2, 7')
    a(f'v_readfirstlane_b32 {sW}, v1')
    a('v_and_b32 v0, 63, v0')
    a(f's_mov_b32 {sMASK}, 0xffff0000')
    if OPT['stamps']:
        stamp_names[-1].append('start')
        a('v_writelane_b32 v1, s98, 0'); a('v_writelane_b32 v1, s96, 32')
        stamp(a, 'args')
    a(f's_lshl2_add_u32 {sN}, {sRB}, {sW}')
    a(f's_lshr_b32 {sT0}, s2, 4'); a(f's_lshl2_add_u32 {sN2}, {sT0}, {sW}')
    a(f's_lshl3_add_u32 {sPID}, {sT0}, {sG}')
    a(f's_and_b32 {sT1}, {sRB}, 1'); a(f's_lshl_b32 {sT2}, {sT1}, 8'); a(f's_add_u32 {sPID}, {sPID}, {sT2}')
    a(f's_lshr_b32 {sRB}, {sG}, 2'); a(f's_lshl4_add_u32 {sRB}, {sRB}, {sT0}')
    a(f's_and_b32 {sG}, {sG}, 3'); a(f's_lshl2_add_u32 {sROT}, {sT1}, {sG}'); a(f's_lshl1_add_u32 {sG}, {sG}, {sT1}')
    a(f's_lshl3_add_u32 {sL}, {sRB}, {sG}')
    a(f's_lshl2_add_u32 {sT2}, {sRB}, {sW}'); a(f's_lshl_b32 {sT2}, {sT2}, 14'); a(f's_lshl_b32 {sT3}, {sROT}, 11')
    a(f'v_lshlrev_b32 v{vT}, 4, v0'); a(f'v_lshlrev_b32 v{vL4}, 2, v0'); a(f'v_mov_b32 v{vONE}, 1')
    a(f's_mov_b32 {sGO}, 0')
    lnp, lj, lnh = a.newlabel('noprod'), a.newlabel('prodj'), a.newlabel('nohelp')
    a.wait_all()
    a(f's_cmp_lt_u32 {sPID}, 48')
    a.raw(f's_cbranch_scc0 {lnp}')
    phase_mod(a)
    a.raw(f's_branch {lj}')
    a.label(lnp)
    a.vm = []; a.lg = []
    a(f's_cmp_lt_u32 {sPID}, 256')
    a.raw(f's_cbranch_scc1 {lnh}')
    lane_fields(a, 2, [(0, 6, 6144)], 3)
    a(f's_and_b32 {sA}, s2, 7'); a(f's_lshl_b32 {sA}, {sA}, 7')
    for sh, nl, p0 in ((5, 16, 0), (4, 32, 2)):
        a(f's_lshr_b32 {sT1}, {sN2}, {sh}'); a(f's_and_b32 {sT0}, {sN2}, {(1 << sh) - 1}')
        a(f's_mul_i32 {sT0}, {sT0}, {nl*6144}'); a(f's_lshl_b32 {sT1}, {sT1}, 10'); a(f's_add_u32 {sT0}, {sT0}, {sT1}')
        a(f's_add_u32 {sT0}, {sT0}, {sA}')
        if p0: a(f's_add_u32 {sT0}, {sT0}, {1024*p0}')
        touch(a, 'WM', 2, nl, sT0)
    if OPT['xwait']: a.raw('s_waitcnt vmcnt(1)')
    a.label(lnh)
    a.vm = []
    clear_flags(a)
    for i in range(OPT['xd']):
        for t in x_load(i): a(t)
    a.label(lj)
    main_setup(a)
    ln1_stats(a); stamp(a, 'stats')
    ln1_apply(a)
    stamp(a, 'apply')
    phase_main(a)
    assert a.vm[-1][1] == ('p1', 1)
    red_operands(a)
    a._wait(vm=OPT['pre2'])
    for x in flag_loads('A'): a(x)
    wave_signal(a, ('p1', 1), 2, 8); stamp(a, 'p1done')
    l0, l1, l2 = (a.newlabel(x) for x in ('c0', 'c1', 'c1j'))
    pl = lambda c: [({('v', PL + 32 * c + 4 * g + r) for r in range(4)}, None) for g in range(8)]
    a(f's_mov_b32 {sT2}, 0')
    for q in range(8):
        a(f's_lshr_b32 s{sFV+q}, s{sFV+q}, 1'); a(f's_lshl1_add_u32 {sT2}, {sT2}, s{sFV+q}')
    a(f's_or_b32 {sT2}, {sT2}, {sOWN}')
    a(f's_cmp_lg_u32 {sLD}, 0')
    a.raw(f's_cbranch_scc1 {l0}')
    sspin(a, 'A', 1)
    for x in part_loads(0): a.raw(x)
    a.label(l0)
    a.vm += pl(0)
    a(f's_mov_b32 {sLD}, 0')
    a(f's_cmp_lg_u32 {sT2}, 0xff')
    a.raw(f's_cbranch_scc1 {l1}')
    for x in part_loads(1): a.raw(x)
    a.raw(f's_mov_b32 {sLD}, 1')
    a.label(l1)
    a.raw('s_barrier')
    for x in w1_reads(0): a(x)
    for b in range(2): a(f'v_add_u32 v{vTW1+b}, 0x10000, v{vTW1+b}')
    red_addr(a)
    stamp(a, 't_w1')
    l3, l4 = a.newlabel('w'), a.newlabel('wj')
    a(f's_cmp_lg_u32 {sLD}, 0'); a.raw(f's_cbranch_scc1 {l3}')
    a.raw('s_waitcnt vmcnt(0)'); a.label(l3); a.raw('s_waitcnt vmcnt(8)'); a.vm = []
    red_sum(a, 0); stamp(a, 't_sum0')
    for i in range(4):
        for x in w1_dma(1, i, sT1): a(x, ('w1', 1))
    a.wait_all(vm=False)
    a(f's_cmp_lg_u32 {sLD}, 0')
    a.raw(f's_cbranch_scc1 {l2}')
    sspin(a, 'A', 2)
    for x in part_loads(1): a.raw(x)
    a.label(l2)
    stamp(a, 'syncA')
    late_sum(a, pl(1)); stamp(a, 'sum')
    red_ln(a); stamp(a, 'red')
    for k in range(2):
        for x in w2_dma(k, sT1): a(x, ('w2', k))
    a.wait_tag(('w1', 1))
    signal(a, 'h2', 14, 0); stamp(a, 'h2done')
    rest = [2, 3, 8, 9][:OPT['w2b']]
    wv = Weave(a, [(x, ('w2', k)) for k in rest for x in w2_dma(k, sT1)], 4)
    for x in w1_reads(1): wv(x)
    wv.flush()
    W2_LEFT[:] = [k for k in range(4, 10) if k not in rest]
    flag_base(a, sWAIT)
    for x in flag_loads('B'): a(x)
    mlp_addr(a); g2_addr(a)
    for k in range(4):
        a.wait_tag(('w2', k))
        for x in w2_reads(k): a(x)
    stamp(a, 't_w2')
    l1, l2 = a.newlabel('nog1'), a.newlabel('nog1j')
    a(f's_cmp_ge_u32 {sRB}, 28')
    a.raw(f's_cbranch_scc1 {l1}')
    phase_g1(a)
    a.raw(f's_branch {l2}')
    a.label(l1)
    save = (list(a.vm), list(a.lg))
    a.raw('s_waitcnt lgkmcnt(0)'); a.raw('s_barrier')
    for k in W2_LEFT + [10, 11]:
        for x in w2_dma(k, sT1): a.raw(x)
    a.vm = []; a.lg = []
    a(f's_lshl2_add_u32 {sT0}, s2, {sW}'); a(f's_lshl_b32 {sT0}, {sT0}, 12'); a(f's_add_u32 s{sP+3}, {sT0}, {WS_DUMMY - 896*4096}')
    a(f's_add_u32 {sSIG}, s{sP+3}, 2048')
    flag_base(a, sWV)
    sspin(a, 'C', 1)
    g2_head(a)
    a.raw('s_waitcnt vmcnt(0)')
    a.vm, a.lg = save
    a.label(l2)
    stamp(a, 'h1done')
    phase_g2(a)
    stamp_flush(a); a.label('L_end'); a.raw('s_endpgm')
    a.label('L_code_end')
    slow_path(a)
    for l0, l1, kind, lvl in late_spins:
        a.label(l0); sspin(a, kind, lvl); a.raw(f's_branch {l1}')
    a.label('L_mod2')
    spin(a, 'DBG', '0', vL4, vPOLL, 2, 132, f'v{vT+1}')
    a.raw('s_branch L_mod2j')

def main(out):
    ref = open(f'cdna_kernels/{NAME}.s.ref').read().splitlines()
    head = [l for l in ref if l.startswith(';') and '@launch' not in l]
    name = NAME + '_kernel'
    a = Asm(); k_mega(a)
    print('nop states', a.nnop, 'lines', len(a.lines))
    s = '\n'.join(head) + '\n'
    s += f'; @launch grid=(256,1,1) block=(256,1,1) lds={LDS_BYTES}\n'
    s += '.amdgcn_target "amdgcn-amd-amdhsa--gfx950"\n.text\n'
    s += f'.globl {name}\n.p2align 8\n.type {name},@function\n{name}:\n' + a.text()
    s += f""".section .rodata,"a"
.p2align 6
.amdhsa_kernel {name}
  .amdhsa_next_free_vgpr 512
  .amdhsa_next_free_sgpr 102
  .amdhsa_accum_offset 256
  .amdhsa_group_segment_fixed_size 0
  .amdhsa_kernarg_size 104
  .amdhsa_user_sgpr_count 2
  .amdhsa_user_sgpr_kernarg_segment_ptr 1
  .amdhsa_system_sgpr_workgroup_id_x 1
.end_amdhsa_kernel
"""
    open(out, 'w').write(s)
    if OPT['stamps']:
        import json; json.dump(stamp_names, open(out + '.stamps', 'w'))

if __name__ == '__main__':
    for o in sys.argv[2:]:
        k, v = o.split('='); OPT[k] = v if k in ('probe', 'abl') else int(v)
    main(sys.argv[1] if len(sys.argv) > 1 else f'cdna_kernels/{NAME}.s')
```

```python
import sys, struct, math
from asmlib import Asm, Sched2, fill

NAME = 'adaLN_cond__sliding_block_cached__dense_activation_silu__prompt'
def f2u(x): return struct.unpack('<I', struct.pack('<f', x))[0]
def hx(x): return '0x%08x' % f2u(x)
LOG2E = 1.4426950408889634

SRD = dict(X=4, K=8, V=12, WQ=16, WO=20, W1=24, W2=28, C=32, WM=36, OUT=40, DBG=44, WS=48)
KOFF = dict(X=0, K=8, V=16, WQ=24, WO=32, W1=48, W2=56, C=64, WM=72, OUT=80, DBG=88, WS=96)
SIZE = dict(X=2048*512*2, K=8*2048*128*2, V=8*2048*128*2, WQ=512*4096*2, WO=4096*512*2, W1=512*1792*2,
            W2=1792*512*2, C=1024, WM=512*3072*2, OUT=2048*512*2, DBG=256, WS=1 << 28)
def srd(n): return f's[{SRD[n]}:{SRD[n]+3}]'
sW, sG, sRB = 's52', 's53', 's54'
sT0, sT1, sT2, sT3 = 's55', 's56', 's57', 's58'
sMASK = 's59'
sA, sB, sC, sD = 's60', 's61', 's62', 's63'
sST = 64
sN, sN2, sL, sPID, sGO, sOWN = 's99', 's97', 's3', 's96', 's72', 's96'
sROT = 's98'
sBAD = 's[64:65]'
sP = 66
sSIG, sWAIT, sLD = 's70', 's71', 's72'
sRH, sR32, sFS = 's73', 's74', 's75'
sE, sF, sH = 's76', 's77', 's78'
sW1, sRD, sH1, sWV, sH2 = 's79', 's80', 's81', 's84', 's85'

WS_MOD = 0
WS_FLG = 0x10000
WS_STAMP = 0x80000
WS_DUMMY = 0x100000
WS_X1 = 0x200000
WS_H2 = 0x400000
WS_H1 = 0x600000
WS_P1 = 0x1000000
SC = 'sc1'
F_A, F_B, F_C = WS_FLG, WS_FLG + 0x20000, WS_FLG + 0x28000

L_B, L_A = 32768, 65536
LDS_BYTES = 163840
def slot_lds(sig): return L_A + 16384 * sig

def vr(b, n=1, k='v'): return f'{k}{b}' if n == 1 else f'{k}[{b}:{b+n-1}]'
def ar(b, n=1): return vr(b, n, 'a')

OPT = dict(stamps=0, probe='', pwg=100, pmul=4, st0=16, abl='', qpace=160, wpace=24, r2=0, stsp=18, siga=48, polla=30, nlast=2, w1st=3, wq0=4, kvt=8, xwait=0, xd=4, wqt=6, wqe=12, qd=0, tlb=0, sigc=50, pollc=40, sig4=36, pre2=2, silu3=36, w2b=4, pfl=0, word=1)
stamp_names = []
def stamp(a, name):
    if OPT['probe']:
        pa, pb = OPT['probe'].split(':')
        if name == pa: a('s_memrealtime s[100:101]')
        if name == pb: a('s_memrealtime s[0:1]')
    if not OPT['stamps']: return
    if OPT['stamps'] == 3:
        if not name.startswith('t_') and name not in ('args', 'wo32', 'p1done', 'syncA', 'h2done', 'syncB', 'g0', 'g128', 'g256', 'syncC', 'h1done', 'f0', 'f112', 'f224', 'end'): return
    elif name.startswith('t_'): return
    elif name.startswith('m_') != (OPT['stamps'] == 2) and name not in ('args', 'xissue', 'stats', 'modok', 'apply', 'end', 'q16'): return
    i = len(stamp_names[-1]); stamp_names[-1].append(name)
    a('s_memrealtime s[100:101]')
    a(f'v_writelane_b32 v1, s100, {i}')
    a('s_memtime s[100:101]')
    a(f'v_writelane_b32 v1, s100, {32+i}')
def stamp_flush(a):
    if OPT['probe']:
        a.wait_all(); stamp(a, 'end')
        a('s_memrealtime s[94:95]'); a.wait_all()
        a(f's_cmp_lg_u32 s2, {OPT["pwg"]}'); a.raw('s_cbranch_scc1 L_end')
        a('s_sub_u32 s92, s0, s100'); a(f's_mul_i32 s92, s92, {OPT["pmul"]}'); a('s_min_u32 s92, s92, 100000')
        a.label('L_probe')
        a.raw('s_memrealtime s[90:91]'); a.raw('s_waitcnt lgkmcnt(0)'); a.raw('s_sub_u32 s90, s90, s94'); a.raw('s_cmp_lt_u32 s90, s92'); a.raw('s_cbranch_scc1 L_probe')
    if not OPT['stamps']: return
    a.wait_all()
    stamp(a, 'end')
    a(f's_lshl_b32 s100, s2, 10'); a(f's_lshl_b32 s101, {sW}, 8'); a('s_add_u32 s100, s100, s101')
    a(f's_add_u32 s100, s100, {WS_STAMP}')
    a('v_lshlrev_b32 v0, 2, v0')
    a(f'buffer_store_dword v1, v0, {srd("WS")}, s100 offen')

class Collect:
    def __init__(self): self.l = []
    def __call__(self, t, tag=None): self.l.append(t)
def collect(fn, *args, **kw):
    c = Collect(); fn(c, *args, **kw); return c.l

def lane_fields(a, dst, spec, tmp, add=None):
    first = True
    for sh, nb, sc in spec:
        t = dst if first else tmp
        src = t
        if sh == 0 and nb == 6: src = 0
        elif sh == 0: a(f'v_and_b32 v{t}, {(1 << nb) - 1}, v0')
        elif sh + nb == 6: a(f'v_lshrrev_b32 v{t}, {sh}, v0')
        else: a(f'v_bfe_u32 v{t}, v0, {sh}, {nb}')
        if sc & (sc - 1) == 0:
            if first:
                if sc > 1 or src != t: a(f'v_lshlrev_b32 v{t}, {sc.bit_length()-1}, v{src}')
            else: a(f'v_lshl_add_u32 v{dst}, v{src}, {sc.bit_length()-1}, v{dst}')
        else:
            a(f'v_mul_u32_u24 v{t}, {sc}, v{src}')
            if not first: a(f'v_add_u32 v{dst}, v{dst}, v{t}')
        first = False
    if add is not None: a(f'v_add_u32 v{dst}, {add}, v{dst}')

def dma(soff, voff, srdn, imm, fl=''):
    return f'buffer_load_dwordx4 v{voff}, {srd(srdn)}, {soff} offen offset:{imm} {fl + " " if fl else ""}lds'
def barrier(a):
    a.wait_all(vm=False); a.raw('s_barrier')
def set_exec(a, nl):
    if nl == 64: return
    if nl < 32: a.raw(f's_mov_b64 exec, {hex((1 << nl) - 1)}')
    else: a.raw('s_mov_b32 exec_lo, -1'); a.raw(f's_mov_b32 exec_hi, {hex((1 << (nl - 32)) - 1)}')
def touch(a, n, vaddr, nl, soff, dst=28):
    if nl < 64: set_exec(a, nl)
    a.raw(f'buffer_load_dword v{dst}, v{vaddr}, {srd(n)}, {soff} offen'); a.fake_vm(1, None)
    if nl < 64: a.raw('s_mov_b64 exec, -1')

def spin(a, srdn, soff, vaddr, vdst, nl, imm=0, lvl=1):
    loop, out = a.newlabel('poll'), a.newlabel('pollout')
    set_exec(a, nl)
    a.raw('s_mov_b32 s98, 0x200000')
    a.label(loop)
    a.raw(f'buffer_load_dword v{vdst}, v{vaddr}, {srd(srdn)}, {soff} offen offset:{imm} {SC}')
    a.raw('s_sub_u32 s98, s98, 1')
    a.raw(f's_cbranch_scc1 {out}')
    a.raw('s_waitcnt vmcnt(0)')
    a.raw(f'v_cmp_gt_u32 vcc, {lvl}, v{vdst}')
    a.raw('s_nop 0')
    a.raw(f's_cbranch_vccnz {loop}')
    a.label(out)
    a.raw('s_waitcnt vmcnt(0)')
    a.raw('s_mov_b64 exec, -1')
def signal(a, tag, nl, imm):
    a.wait_tag(tag); barrier(a)
    l0 = a.newlabel('sig')
    a(f's_cmp_lg_u32 {sW}, 0')
    a.raw(f's_cbranch_scc1 {l0}')
    set_exec(a, nl)
    a.raw(f'buffer_store_dword v{vONE}, v{vSIG}, {srd("WS")}, {sSIG} offen offset:{imm} {SC}')
    a.raw('s_mov_b64 exec, -1')
    a.label(l0)
def wave_signal(a, tag, lvl, nl, cond=False):
    a(f'v_mov_b32 v{vONE}, {lvl}')
    a.wait_tag(tag)
    l0 = a.newlabel('ws')
    if cond: a(f's_cmp_ge_u32 {sRB}, 28'); a.raw(f's_cbranch_scc1 {l0}')
    set_exec(a, nl)
    a.raw(f'buffer_store_dword v{vONE}, v{vSIG}, {srd("WS")}, {sSIG} offen {SC}')
    a.raw('s_mov_b64 exec, -1')
    if cond: a.label(l0)
    else: a.fake_vm(1, None)
sFP, sFV = 86, 88
late_spins = []
def flag_base(a, soff):
    a(f's_add_u32 s{sFP}, s{SRD["WS"]}, {soff}'); a(f's_addc_u32 s{sFP+1}, s{SRD["WS"]+1}, 0')
def flag_loads(kind):
    if kind == 'C': return [f's_load_dword s{sFV+n}, s[{sFP}:{sFP+1}], {128*n} glc' for n in range(7)]
    out = [f's_load_dwordx8 s[{sFV}:{sFV+7}], s[{sFP}:{sFP+1}], 0 glc']
    if kind == 'B': out.append(f's_load_dwordx8 s[32:39], s[{sFP}:{sFP+1}], 32 glc')
    return out
def flag_test(em, kind, lvl):
    n = 7 if kind == 'C' else 8
    if kind == 'B':
        for q in range(8): em(f's_min_u32 s{sFV+q}, s{sFV+q}, s{32+q}')
    for st in (1, 2, 4):
        for q in range(0, n - st, 2 * st): em(f's_min_u32 s{sFV+q}, s{sFV+q}, s{sFV+q+st}')
    em(f's_cmp_lt_u32 s{sFV}, {lvl}')
def sspin(a, kind, lvl):
    loop, out = a.newlabel('sp'), a.newlabel('spout')
    a.raw('s_mov_b32 s98, 0x200000')
    a.label(loop)
    for x in flag_loads(kind): a.raw(x)
    a.raw('s_sub_u32 s98, s98, 1')
    a.raw('s_waitcnt lgkmcnt(0)')
    a.raw(f's_cbranch_scc1 {out}')
    flag_test(a.raw, kind, lvl)
    a.raw(f's_cbranch_scc1 {loop}')
    a.label(out)
def flag_check(a, kind, lvl):
    l0, l1 = a.newlabel('fc'), a.newlabel('fcj')
    flag_test(a, kind, lvl); a.raw(f's_cbranch_scc1 {l0}'); a.label(l1)
    late_spins.append((l0, l1, kind, lvl))
def await_flags(a, nl, imm, srdn='WS', soff=None):
    l1 = a.newlabel('aw')
    a(f's_cmp_lg_u32 {sW}, 1')
    a.raw(f's_cbranch_scc1 {l1}')
    spin(a, srdn, soff or sWAIT, vL4, vPOLL, nl, imm)
    a.label(l1)
    barrier(a)

vW4, vKD, vVD = 2, 6, 10
vTRA, vTRB, vTV, vK, vH = 12, 14, 16, 18, 22
vTRC, vTW1 = 16, 18
vT = 24
vSIG, vPOLL, vONE, vL4 = 28, 29, 30, 31
vQ, vS, vP, vR, vO = 32, 96, 112, 120, 128
aK, aV, aL, aONE, aX = 0, 64, 128, 144, 160

def m16(d, A, B, first): return f'v_mfma_f32_16x16x32_bf16 {d}, {A}, {B}, {"0" if first else d}'
def m32(d, A, B, first): return f'v_mfma_f32_32x32x16_bf16 {d}, {A}, {B}, {"0" if first else d}'

XR = 64
def x_load(i):
    return [f's_add_u32 {sT3}, {sT3}, 1024', f's_and_b32 {sT3}, {sT3}, 0x3c00', f's_add_u32 {sT0}, {sT2}, {sT3}',
            f'buffer_load_dwordx4 v[{XR+4*i}:{XR+4*i+3}], v{vT}, {srd("X")}, {sT0} offen']

def phase_mod(a):
    a.comment('mod = silu(c) @ w_mod, 64 columns per producer')
    W = 128; SL = 32; SH = 48; ACC = 8
    a(f's_lshl_b32 {sA}, {sPID}, 7')
    a(f's_mul_i32 {sT1}, {sW}, {128*6144}')
    a(f's_add_u32 {sA}, {sA}, {sT1}')
    lane_fields(a, 2, [(3, 3, 16 * 6144), (0, 3, 16)], 3)
    lane_fields(a, 3, [(3, 3, 32)], 4)
    a(f's_lshl_b32 {sB}, {sW}, 8')
    for i in range(2): a(f'buffer_load_dwordx4 v[{16+4*i}:{19+4*i}], v3, {srd("C")}, {sB} offen offset:{16*i}')
    def wl(i):
        a(f'buffer_load_dwordx4 v[{W+4*i}:{W+4*i+3}], v2, {srd("WM")}, {sA} offen')
        if i < 15: a(f's_add_u32 {sA}, {sA}, 6144')
    for i in range(8): wl(i)
    for i in range(8): a(f'v_mov_b32 v{ACC+i}, 0')
    for r in range(8):
        a(f'v_lshlrev_b32 v{SH+2*r}, 16, v{16+r}'); a(f'v_and_b32 v{SH+2*r+1}, {sMASK}, v{16+r}')
    for i in range(16): a(f'v_mul_f32 v{SL+i}, {hx(-LOG2E)}, v{SH+i}')
    for i in range(16): a(f'v_exp_f32 v{SL+i}, v{SL+i}')
    for i in range(16): a(f'v_add_f32 v{SL+i}, 1.0, v{SL+i}')
    for i in range(16): a(f'v_rcp_f32 v{SL+i}, v{SL+i}')
    for i in range(16): a(f'v_mul_f32 v{SH+i}, v{SH+i}, v{SL+i}')
    for i in range(16): a(f'v_cvt_pk_bf16_f32 v{SL+i}, v{SH+i}, 0')
    for i in range(16): a(f'v_lshlrev_b32 v{SH+i}, 16, v{SL+i}')
    stamp(a, 'm_silu')
    for i in range(8, 12): wl(i)
    for i in range(16):
        for r in range(4):
            a(f'v_dot2c_f32_bf16 v{ACC+2*r}, v{W+4*i+r}, v{SL+i}')
            a(f'v_dot2c_f32_bf16 v{ACC+2*r+1}, v{W+4*i+r}, v{SH+i}')
        if i < 4: wl(12 + i)
    stamp(a, 'm_dot16')
    for i in range(4): a(f'v_permlane32_swap_b32 v{ACC+i}, v{ACC+4+i}')
    for i in range(4): a(f'v_add_f32 v{ACC+i}, v{ACC+i}, v{ACC+4+i}')
    for i in range(2): a(f'v_permlane16_swap_b32 v{ACC+i}, v{ACC+2+i}')
    for i in range(2): a(f'v_add_f32 v{ACC+i}, v{ACC+i}, v{ACC+2+i}')
    lane_fields(a, 4, [(0, 3, 32), (4, 2, 8)], 5)
    a(f'v_add_u32 v4, {sB}, v4')
    for i in range(2): a(f'v_add_f32_dpp v{ACC+i}, v{ACC+i}, v{ACC+i} row_ror:8 row_mask:0xf bank_mask:0xf')
    a(f'ds_write_b64 v4, v[{ACC}:{ACC+1}]')
    a(f's_lshr_b32 {sT1}, {sPID}, 3')
    a(f's_mov_b32 {sB}, {hx(LOG2E/math.sqrt(128.0))}')
    a(f's_cmp_eq_u32 {sT1}, 2'); a(f's_cselect_b32 {sB}, 1.0, {sB}')
    a(f's_cmp_ge_u32 {sT1}, 3'); a(f's_cselect_b32 {sB}, {hx(-LOG2E)}, {sB}')
    a(f's_cmp_eq_u32 {sT1}, 5'); a(f's_cselect_b32 {sB}, {hx(-1.0/LOG2E)}, {sB}')
    a(f's_mov_b32 {sC}, 0')
    a(f's_cmp_eq_u32 {sT1}, 1'); a(f's_cselect_b32 {sC}, 1.0, {sC}')
    a(f's_cmp_eq_u32 {sT1}, 4'); a(f's_cselect_b32 {sC}, 1.0, {sC}')
    barrier(a)
    stamp(a, 'm_bar')
    lab = a.newlabel('modskip')
    a(f's_cmp_lg_u32 {sW}, 0')
    a.raw(f's_cbranch_scc1 {lab}')
    for i in range(4): a(f'ds_read_b32 v{ACC+i}, v{vL4} offset:{256*i}')
    lane_fields(a, 4, [(2, 1, 1024), (3, 3, 16), (0, 2, 4)], 5)
    a(f's_and_b32 {sT0}, s2, 7'); a(f's_lshl_b32 {sT0}, {sT0}, 7'); a(f's_lshl_b32 {sT1}, {sPID}, 8'); a(f's_sub_u32 {sT0}, {sT1}, {sT0}')
    a(f's_cmp_ge_u32 {sPID}, 16'); a(f's_cselect_b32 {sT1}, {sT1}, {sT0}'); a('s_cselect_b64 vcc, -1, 0')
    a(f'v_cndmask_b32 v4, v4, v{vL4}, vcc')
    a(f'v_add_f32 v8, v8, v9'); a('v_add_f32 v10, v10, v11'); a('v_add_f32 v8, v8, v10')
    a('v_cvt_pk_bf16_f32 v8, v8, v8'); a(f'v_and_b32 v8, {sMASK}, v8')
    a(f'v_add_f32 v8, {sC}, v8')
    a('v_cvt_pk_bf16_f32 v8, v8, v8'); a(f'v_and_b32 v8, {sMASK}, v8')
    a(f'v_mul_f32 v8, {sB}, v8')
    a(f'buffer_store_dword v8, v4, {srd("WS")}, {sT1} offen offset:{WS_MOD} {SC}')
    stamp(a, 'm_st')
    a.label(lab)
    a.vm = []
    for i in range(8):
        for t in x_load(i): a(t)
    lab = a.newlabel('modskip')
    a(f's_cmp_lg_u32 {sW}, 0')
    a.raw(f's_cbranch_scc1 {lab}')
    a.raw(f's_cmp_ge_u32 {sPID}, 16'); a.raw(f's_cselect_b32 {sT1}, 4, 0'); a.raw(f's_cselect_b32 {sGO}, 0, 1')
    a.raw(f'v_mov_b32 v{vPOLL}, 1')
    a.raw('s_mov_b64 exec, 1')
    a.raw('s_waitcnt vmcnt(8)')
    a.raw(f'buffer_atomic_add v{vPOLL}, v0, {srd("DBG")}, {sT1} offen offset:128 sc0 sc1')
    a.raw('s_mov_b64 exec, -1')
    a.label(lab)
    for i in range(8, 16):
        for t in x_load(i): a(t)
def mod_go(a):
    lab, lab2 = a.newlabel('nogo'), a.newlabel('noprod')
    a(f's_cmp_lt_u32 {sPID}, 48'); a.raw(f's_cbranch_scc0 {lab2}')
    a.raw(f's_cmp_eq_u32 {sGO}, 0')
    a.raw(f's_cbranch_scc1 {lab}')
    a.raw('s_waitcnt vmcnt(8)')
    a.raw(f'v_readfirstlane_b32 {sT1}, v{vPOLL}')
    a.raw('s_nop 1')
    a.raw(f's_cmp_lg_u32 {sT1}, 15')
    a.raw(f's_cbranch_scc1 {lab}')
    a.raw('s_mov_b64 exec, 1')
    a.raw(f'buffer_store_dword v{vONE}, v0, {srd("DBG")}, 0 offen {SC}')
    a.raw('s_mov_b64 exec, -1')
    a.raw('s_waitcnt vmcnt(1)')
    a.raw(f's_branch {lab2}')
    a.label(lab)
    a.raw('s_waitcnt vmcnt(0)')
    a.label(lab2)
    stamp(a, 'm_stdone')

def butterfly16(a, rs):
    for r in rs:
        for i in range(8): a(f'v_permlane32_swap_b32 v{r+i}, v{r+i+8}')
        for i in range(8): a(f'v_add_f32 v{r+i}, v{r+i}, v{r+i+8}')
    for r in rs:
        for i in range(4): a(f'v_permlane16_swap_b32 v{r+i}, v{r+i+4}')
        for i in range(4): a(f'v_add_f32 v{r+i}, v{r+i}, v{r+i+4}')
    for sh in (8, 4, 2, 1):
        for r in rs:
            for i in range(4):
                a(f'v_add_f32_dpp v{r+i}, v{r+i}, v{r+i} row_ror:{sh} row_mask:0xf bank_mask:0xf')

def wq_sig(n): return (n + 4) % 6
def wq_dma(n, so='{so}'):
    c, k = divmod(n, 16)
    return [f's_add_u32 m0, {sC}, {slot_lds(wq_sig(n))}', f's_add_u32 {so}, {sA}, {k*32*8192 + c*128}'] + \
           [dma(so, vW4 + p, 'WQ', 1024 * p) for p in range(4)]
def wo_sig(n):
    return 2 + n % 4 if n < 6 else n % 6 if n < 22 else n - 20 if n < 26 else (n - 10) % 6
def wo_dma(n, so='{so}'):
    c, k = divmod(n, 16)
    return [f's_add_u32 m0, {sC}, {slot_lds(wo_sig(n))}', f's_add_u32 {so}, {sB}, {k*32*1024 + c*128}'] + \
           [dma(so, vW4 + p, 'WO', 1024 * p) for p in range(4)]
def kv_buf(t): return L_B if t % 2 == 0 else L_A
def kv_dma(t, which, so='{so}'):
    out = [f's_add_u32 m0, {sC}, {kv_buf(t) + (0 if which == "K" else 16384)}', f's_add_u32 {so}, {sD}, {t*16384}']
    return out + [dma(so, vKD + p if which == 'K' else vVD + p % 2, which, 1024 * p) for p in range(4)]
def w_read(dst, sig, t, r):
    reg, base = (vTRC, 16384 * (sig + 4)) if sig < 0 else (vTRA, 16384 * sig) if sig < 4 else (vTRB, 16384 * (sig - 4))
    return f'ds_read_b64_tr_b16 {dst}, v{reg + t % 2} offset:{base + 2048*r + 256*(t//2)}'
def w64_offsets(a, dst, tmp, pitch, kq_rows, prow):
    lane_fields(a, dst, [(2, 2, pitch), (4, 1, 64), (5, 1, kq_rows * pitch)], tmp)
    a(f'v_lshrrev_b32 v{tmp}, 4, v0'); a(f'v_and_b32 v{tmp}, 2, v{tmp}'); a(f'v_xor_b32 v{tmp}, v{tmp}, v0')
    a(f'v_and_b32 v{tmp}, 3, v{tmp}'); a(f'v_lshl_add_u32 v{dst}, v{tmp}, 4, v{dst}')
    for p in range(1, 4): a(f'v_add_u32 v{dst+p}, {prow(p)*pitch - 1024*p}, v{dst}')

vHW = 27
def main_setup(a):
    a.comment('address set-up')
    t = vT + 1
    a(f's_lshl_b32 {sC}, {sW}, 12')
    w64_offsets(a, vW4, t, 8192, 8, lambda p: 16 * (p & 1) + 4 * (p >> 1))
    a(f's_lshl_b32 {sA}, {sG}, 10'); a(f's_lshl_b32 {sT1}, {sW}, 8'); a(f's_add_u32 {sA}, {sA}, {sT1}')
    a(f's_lshl_b32 {sB}, {sG}, 19'); a(f's_add_u32 {sD}, {sB}, {1536*256}'); a(f's_add_u32 {sD}, {sD}, {sC}')
    a(f's_add_u32 {sB}, {sB}, {sT1}')
    lane_fields(a, vVD, [(0, 2, 16), (2, 2, 256), (4, 2, 64)], t)
    a(f'v_xor_b32 v{vVD+1}, 32, v{vVD}')
    a(f'v_lshrrev_b32 v{t}, 4, v0')
    a(f'v_and_b32 v{t+1}, 15, v0')
    a(f'v_xor_b32 v{t+2}, v{t+1}, v{t}')
    a(f'v_lshlrev_b32 v{t+2}, 4, v{t+2}')
    a(f'v_lshl_add_u32 v{vKD}, v{t}, 8, v{t+2}')
    for p in range(1, 4): a(f'v_xor_b32 v{vKD+p}, {64*p}, v{vKD}')
    a(f'v_mov_b32 v{vH}, v{vKD}'); a(f'v_mov_b32 v{vH+1}, v{vKD+1}')
    lane_fields(a, t + 2, [(5, 1, 1), (4, 1, 2)], t)
    a(f'v_xor_b32 v{t+2}, v{t+2}, v{t+1}')
    a(f'v_lshlrev_b32 v{t+2}, 4, v{t+2}')
    a(f'v_lshl_add_u32 v{vK}, v{t+1}, 8, v{t+2}')
    a(f'v_add_u32 v{vK}, {L_B}, v{vK}')
    for s in range(1, 4): a(f'v_xor_b32 v{vK+s}, {64*s}, v{vK}')
    lane_fields(a, t + 1, [(2, 2, 64), (4, 1, 32), (0, 2, 8)], t)
    a(f'v_lshrrev_b32 v{t}, 4, v0')
    a(f'v_lshl_add_u32 v{vTV}, v{t}, 10, v{t+1}'); a(f'v_add_u32 v{vTV}, {L_B}, v{vTV}'); a(f'v_xor_b32 v{vTV+1}, 32, v{vTV}')
    a(f's_add_u32 {sT1}, {sC}, {L_A}')
    a(f'v_lshl_add_u32 v{vTRA}, v{t}, 9, v{t+1}'); a(f'v_add_u32 v{vTRA}, {sT1}, v{vTRA}'); a(f'v_xor_b32 v{vTRA+1}, 32, v{vTRA}')
    for b in range(2): a(f'v_add_u32 v{vTRB+b}, 0x10000, v{vTRA+b}')
    a(f's_lshl_b32 {sT0}, {sW}, 14')
    lane_fields(a, vHW, [(0, 6, 256), (0, 3, 16)], t, add=sT0)

def warm_up(a, c):
    lab = a.newlabel('nowarm')
    if c: lane_fields(a, vT, [(0, 4, 128), (4, 1, 1 << 19)], vT + 1)
    else: lane_fields(a, vT + 2, [(2, 3, 8192), (0, 2, 256), (5, 1, 1024)], 255)
    a(f's_cmp_lt_u32 {sPID}, 48'); a.raw(f's_cbranch_scc1 {lab}')
    r = a.raw
    r(f's_sub_u32 {sT0}, {sPID}, 256'); r(f's_cmp_lt_u32 {sT0}, 48'); r('s_cselect_b32 exec_hi, -1, 0'); r('s_cselect_b32 s65, -1, 0xffff')
    r(f's_cselect_b32 s64, 1, 0'); r(f's_sub_u32 s64, {sG}, s64')
    r(f's_lshl_b32 {sT0}, {sN2}, 16'); r(f's_lshl_b32 {sT1}, s64, 10'); r(f's_add_u32 {sT0}, {sT0}, {sT1}')
    r(f'buffer_load_dword v28, v{vT+2}, {srd("WQ")}, {sT0} offen offset:{128*c}')
    if c:
        r('s_mov_b32 exec_hi, 0'); r('s_mov_b32 exec_lo, s65')
        r(f's_lshl_b32 {sT0}, {sN2}, 11'); r(f's_lshl_b32 {sT1}, s64, 19'); r(f's_add_u32 {sT0}, {sT0}, {sT1}'); r(f's_add_u32 {sT0}, {sT0}, {1536*256}')
        for n in 'KV': r(f'buffer_load_dword v28, v{vT}, {srd(n)}, {sT0} offen')
    r('s_mov_b64 exec, -1')
    a.label(lab)
def mod_loads():
    return [f'buffer_load_dwordx4 v[{96+8*vec+4*hf}:{99+8*vec+4*hf}], v{vT}, {srd("WS")}, 0 offen offset:{WS_MOD + 2048*vec + 1024*hf} {SC}'
            for vec in range(2) for hf in range(2)]
def clear_flags(a):
    lab = a.newlabel('nz')
    a(f's_lshr_b32 {sT0}, {sPID}, 4'); a(f's_cmp_lg_u32 {sT0}, 3')
    a.raw(f's_cbranch_scc1 {lab}')
    for r in range(4): a.raw(f'v_mov_b32 v{32+r}, 0')
    a.raw(f's_lshl2_add_u32 {sT1}, {sPID}, {sW}'); a.raw(f's_sub_u32 {sT1}, {sT1}, 192'); a.raw(f's_mul_i32 {sT0}, {sT1}, 5120'); a.raw(f's_add_u32 {sT0}, {sT0}, {WS_FLG}')
    for i in range(5):
        if i == 4: a.raw(f's_add_u32 {sT0}, {sT0}, 4096')
        a.raw(f'buffer_store_dwordx4 v[32:35], v{vT}, {srd("WS")}, {sT0} offen offset:{1024*(i%4)} {SC}')
    a.label(lab)
def cleared_signal(a):
    lab = a.newlabel('nz')
    a(f's_lshr_b32 {sT0}, {sPID}, 4'); a(f's_cmp_lg_u32 {sT0}, 3')
    a.raw(f's_cbranch_scc1 {lab}')
    a.raw('s_mov_b64 exec, 1')
    a.raw(f'buffer_atomic_add v{vONE}, v0, {srd("DBG")}, 0 offen offset:136 {SC}')
    a.raw('s_mov_b64 exec, -1')
    a.label(lab)

def try_mod(a, last):
    lab = a.newlabel('mod')
    if last:
        a(f's_cmp_lg_u32 {sT3}, 0'); a.raw(f's_cbranch_scc1 {lab}')
        spin(a, 'DBG', '0', vL4, vPOLL, 1)
    else:
        a(f'v_readfirstlane_b32 {sT0}, v{vPOLL}'); a(f's_andn2_b32 {sT0}, {sT0}, {sT3}'); a.raw(f's_cbranch_scc0 {lab}')
    for x in mod_loads(): a.raw(x)
    a.raw(f's_mov_b32 {sT3}, 1')
    a.label(lab)

def ln1_stats(a):
    a.comment('LN1 statistics (rows are held in rotated order)')
    D = 128; R = 32; R2 = 48; XD = OPT['xd']
    a(f'v_mov_b32 v{vT+1}, 0x3f803f80')
    for i in range(32): a(f'v_mov_b32 v{R+i}, 0')
    l0, l1 = a.newlabel('p'), a.newlabel('p')
    a(f's_cmp_lt_u32 {sPID}, 48'); a.raw(f's_cbranch_scc1 {l0}')
    a._wait(vm=XD - 1)
    a.label(l0)
    a.raw('s_waitcnt vmcnt(9)')
    a(f's_cmp_eq_u32 {sW}, 0'); a.raw(f's_cbranch_scc1 {l1}')
    a.raw('s_waitcnt vmcnt(8)')
    a.label(l1)
    for i in range(16):
        if i == 8: mod_go(a)
        lab = a.newlabel('havex')
        a(f's_cmp_lt_u32 {sPID}, 48'); a.raw(f's_cbranch_scc1 {lab}')
        a.prewait(f'v_mov_b32 v{XR+4*i}, v{XR+4*i}'); a.flush_prewait()
        if i + XD < 16:
            for t in x_load(i + XD): a(t)
        a.label(lab)
        if i + XD == 16: stamp(a, 'xissue')
        if i == OPT['wqt']: warm_up(a, 0); a.fake_vm(1, None)
        for r in range(4):
            a(f'v_dot2c_f32_bf16 v{R+i}, v{XR+4*i+r}, v{vT+1}')
            a(f'v_lshlrev_b32 v{D+8*i+2*r}, 16, v{XR+4*i+r}')
            a(f'v_dot2c_f32_bf16 v{R2+i}, v{XR+4*i+r}, v{XR+4*i+r}')
            a(f'v_and_b32 v{D+8*i+2*r+1}, {sMASK}, v{XR+4*i+r}')
    stamp(a, 'm_pass1')
    poll = f'buffer_load_dword v{vPOLL}, off, {srd("DBG")}, 0 {SC}'
    a(poll); a(f's_mov_b32 {sT3}, 0')
    a0 = a
    a = Weave(a, [(x, ('wq', n)) for n in range(OPT['wq0']) for x in wq_dma(n, sT1)], OPT['wqe'])
    butterfly16(a, [R, R2])
    a(f'v_mov_b32 v{vT+1}, {hx(1e-5)}')
    for i in range(4): a(f'v_mul_f32 v{R+i}, {hx(-1.0/512)}, v{R+i}')
    for i in range(4): a(f'v_mul_f32 v{R2+i}, {hx(1.0/512)}, v{R2+i}')
    for i in range(4): a(f'v_fma_f32 v{R2+i}, -v{R+i}, v{R+i}, v{R2+i}')
    for i in range(4): a(f'v_max_f32 v{R2+i}, 0, v{R2+i}')
    for i in range(4): a(f'v_add_f32 v{R2+i}, v{vT+1}, v{R2+i}')
    for i in range(4): a(f'v_rsq_f32 v{R2+i}, v{R2+i}')
    try_mod(a0, False); a0(poll)
    for i in range(4): a(f'v_mul_f32 v{R+i}, v{R+i}, v{R2+i}')
    for q in range(4):
        for i in range(4):
            a(f'v_readlane_b32 s{sST+2*(i+4*q)}, v{R2+i}, {16*q}'); a(f'v_readlane_b32 s{sST+2*(i+4*q)+1}, v{R+i}, {16*q}')
    for i in range(16):
        d = D + 8 * i; sp = f's[{sST+2*i}:{sST+2*i+1}]'
        if i == 10: try_mod(a0, False)
        for r in range(4):
            a(f'v_pk_fma_f32 v[{d+2*r}:{d+2*r+1}], v[{d+2*r}:{d+2*r+1}], {sp}, {sp} op_sel:[0,0,1] op_sel_hi:[1,0,1]')
    a.flush()

def ln1_apply(a):
    a.comment('h = xn*A + B -> LDS; register set i holds row (i + 2 rot + 1) & 15')
    D = 128; M = 96
    a(f's_lshl_b32 {sT2}, {sROT}, 5')
    try_mod(a, True)
    stamp(a, 'modok')
    a.vm += [({('v', M + 4 * q + r) for r in range(4)}, None) for q in range(4)]
    a0 = a
    a = Weave(a, [(x, ('wq', n)) for n in range(OPT['wq0'], 6) for x in wq_dma(n, sT1)], 12)
    for i in range(16):
        d = D + 8 * i; t = XR + 4 * (i % 8)
        a(f's_add_u32 {sT2}, {sT2}, 16'); a(f's_and_b32 {sT2}, {sT2}, 0xf0')
        for r in range(4):
            a(f'v_pk_fma_f32 v[{d+2*r}:{d+2*r+1}], v[{d+2*r}:{d+2*r+1}], v[{M+8+2*r}:{M+9+2*r}], v[{M+2*r}:{M+1+2*r}]')
        a(f'v_xor_b32 v{32+i}, {sT2}, v{vHW}')
        for r in range(4): a(f'v_cvt_pk_bf16_f32 v{t+r}, v{d+2*r}, v{d+2*r+1}')
        a(f'ds_write_b128 v{32+i}, v[{t}:{t+3}]')
        if i == OPT['kvt']: a.flush(); warm_up(a0, 1)

class Proj:
    LA = 14
    def __init__(self, S, name, sig, ring, res, nlast, bread):
        self.S, self.name, self.sig, self.bread, self.res = S, name, sig, bread, res
        self.g0 = len(S.m); self.use = {}; self.reg = {}; self.done = {}; self.rel = {}; self.need = {}
        acc = self.acc = lambda c, t, qt: vO + 64 * c + 16 * qt + 4 * t
        for n in range(32):
            for t in range(4):
                self.reg[n, t] = (res[n][0], res[n][1] + 4 * t) if n in res else ('v', ring + 4 * ((4 * n + t) % 8))
        def mm(n, t, qt):
            c, k = divmod(n, 16); kind, r = self.reg[n, t]
            g = S.mfma(m16(vr(acc(c, t, qt), 4), vr(r, 4, kind), ar(16 * k + 4 * qt, 4), k == 0))
            self.use.setdefault((n, t), g); self.done[c, qt] = g
        for n in range(32 - nlast):
            for t in range(4):
                for qt in range(4): mm(n, t, qt)
        for qt in range(4):
            for t in range(4):
                for n in range(32 - nlast, 32): mm(n, t, qt)
    def step(self, n): return self.g0 + int(16 * n)
    def a_reads(self, n, t):
        kind, r = self.reg[n, t]
        return [w_read(vr(r + 2 * rr, 2, kind), self.sig(n), t, rr) for rr in range(2)]
    def head(self, a):
        for qt in range(4): a(self.bread(0, qt))
        if 0 not in self.res:
            a.wait_tag((self.name, 0))
            for t in range(4):
                for x in self.a_reads(0, t): a(x, ('ar', 0))
    def reads(self):
        S = self.S
        for n in sorted(range(32), key=lambda n: n in self.res):
            if 0 < n < 16:
                for qt in range(4): S.mem(self.step(n - 1) + 4 * qt, self.bread(n, qt))
            self.rel[n] = self.step(n)
            if n == 0 and 0 not in self.res: continue
            if n in self.res and self.res[n][2] is None: continue
            g = g1 = self.g0 + self.res[n][2] if n in self.res else self.step(n) - self.LA
            for t in range(4):
                g = max(g, g1 + 4 * t)
                for x in self.a_reads(n, t): g = S.mem(g, x, ('ar', n))
                assert g <= self.use[n, t] - 6, (self.name, n, t, g, self.use[n, t])
            S.scal(g1, lambda a, n=n: a.wait_tag((self.name, n)), force=True)
            self.rel[n] = g + 5; self.need[n] = g1
    def stream(self, groups):
        slack = []
        for n, g, items, tag, stride in groups:
            pre = [] if n is None else [lambda a, n=n: a.wait_lds_tag(('ar', n))]
            ge = self.S.group(max(g, self.g0 + 1, -1 if n is None else self.rel[n]), pre + items, tag, stride)
            if tag[0] == self.name: slack.append(self.need[tag[1]] - ge)
        print(self.name, 'DMA slack (gaps)', slack)

def o_convert(qt, packed):
    out = []
    for ap in range(4):
        o = vO + 32 * qt + 8 * ap; t = vS + 4 * ((4 * qt + ap) % 4) if packed else vQ + 16 * ap + 4 * qt
        if packed:
            rp = vR + (qt & ~1); sel = 'op_sel_hi:[1,0]' if qt % 2 == 0 else 'op_sel:[0,1] op_sel_hi:[1,1]'
            for r in range(4): out.append(f'v_pk_mul_f32 v[{o+2*r}:{o+2*r+1}], v[{o+2*r}:{o+2*r+1}], v[{rp}:{rp+1}] {sel}')
        else:
            t = vT
            for r in range(8): out.append(f'v_mul_f32 v{o+r}, v{o+r}, v{vR+qt}')
        for r in range(4): out.append(f'v_cvt_pk_bf16_f32 v{t+r}, v{o+2*r}, v{o+2*r+1}')
        out.append(f'ds_write_b128 v{vH}, v[{t}:{t+3}] offset:{16384*qt + 1024*ap}')
    return out
def l_check(qt):
    return [f'v_accvgpr_read_b32 v{vR+qt}, a{aL+4*qt}',
            f'v_med3_f32 v124, v{vR+qt}, v125, v126',
            f'v_cmp_neq_f32 vcc, v124, v{vR+qt}',
            f'v_rcp_f32 v{vR+qt}, v{vR+qt}',
            f's_or_b64 {sBAD}, {sBAD}, vcc']

def phase_main(a):
    S = Sched2(2)
    hread = lambda k, qt: f'ds_read_b128 {ar(16*k + 4*qt, 4)}, v{vH + k % 2} offset:{16384*qt + 1024*k}'
    Pq = Proj(S, 'wq', wq_sig, 96, {30: ('a', aX, 16 * 28 - 4), 31: ('a', aX + 16, 16 * 29 - 4)}, 2, hread)
    G = len(S.m)
    sreg = lambda m: vS + 8 * (m % 2)
    preg = lambda m: vP + 4 * (m % 2)
    kreg = lambda u, kt, s: aK + 32 * (u % 2) + 16 * kt + 4 * s
    vreg = lambda u, t: aV + 32 * (u % 2) + 4 * t
    qk_g, pv_g, ms = {}, {}, {}
    def qk(m):
        u, qt = divmod(m, 4); qk_g[m] = len(S.m)
        for kt in range(2):
            for s in range(4):
                S.mfma(m16(vr(sreg(m) + 4 * kt, 4), ar(kreg(u, kt, s), 4), vr(vQ + 16 * s + 4 * qt, 4), s == 0))
    def pv(m):
        u, qt = divmod(m, 4); pv_g[m] = len(S.m)
        S.mfma(m16(ar(aL + 4 * qt, 4), ar(aONE, 4), vr(preg(m), 4), u == 0))
        for t in range(8):
            S.mfma(m16(vr(vO + 32 * qt + 4 * t, 4), ar(vreg(u, t), 4), vr(preg(m), 4), u == 0))
    qk(0)
    for m in range(64):
        ms[m] = len(S.m)
        if m < 63: qk(m + 1)
        if m >= 1: pv(m - 1)
    ms[64] = len(S.m)
    pv(63)
    Gend = len(S.m)
    for m in range(64):
        g0 = ms[m]; full = 0 < m < 63
        for e in range(8):
            g = g0 + 2 * e if full else (g0 + e if m == 63 else g0 + 1 + (7 * e) // 8)
            S.valu(g, f'v_exp_f32 v{sreg(m)+e}, v{sreg(m)+e}', force=True)
            if e % 2: S.valu(g + 1 if (full or e < 7) else g + (1 if m == 0 else 1), f'v_cvt_pk_bf16_f32 v{preg(m)+e//2}, v{sreg(m)+e-1}, v{sreg(m)+e}', force=True)
    S.scal(Pq.step(16) + 3, barrier)
    Pq.reads()
    grp = [(n, OPT['qd'], wq_dma(n + 6), ('wq', n + 6), 2) for n in range(26)]
    grp.insert(24, (None, 0, kv_dma(0, 'K'), ('kvK', 0), 2))
    grp.append((None, 0, kv_dma(0, 'V'), ('kv', 0), 2))
    Pq.stream(grp)
    def q_conv(c, qt, g):
        for ap in range(2):
            q = vQ + 16 * (2 * c + ap) + 4 * qt; o = Pq.acc(c, 2 * ap, qt)
            for r in range(4): g = S.valu(g, f'v_cvt_pk_bf16_f32 v{q+r}, v{o+2*r}, v{o+2*r+1}', limit=g + (99 if c == 0 else 1))
        for ap in range(2):
            q = vQ + 16 * (2 * c + ap) + 4 * qt
            for r in range(2): g = S.valu(g + 1, f'v_permlane16_swap_b32 v{q+r}, v{q+2+r}', limit=g + (99 if c == 0 else 1))
        return g
    g = Pq.step(16) + 6
    for qt in range(4): g = q_conv(0, qt, g)
    S.chain(Pq.step(26) + 2, [f'v_mov_b32 v{vT+2}, 0x3f803f80'] + [f'v_accvgpr_write_b32 a{aONE+r}, v{vT+2}' for r in range(4)])
    LA = 12
    def kv_bar(t, tag):
        def f(a): a.wait_tag((tag, t)); barrier(a)
        return f
    bar = {}
    for u in range(16):
        t = u // 2; base = kv_buf(t) - L_B + 8192 * (u % 2)
        if u == 0:
            bar[0] = S.scal(G - 34, kv_bar(0, 'kvK'))
            kp = [max(bar[0], G - 34 + 2 * i) for i in range(8)]
            gb = S.scal(G - 14, kv_bar(0, 'kv')); vp = [gb + (5 * i) // 4 for i in range(16)]
        else:
            kp = [ms[4*u-3] + o for o in ((7, 9, 11, 15) if u % 2 else (9, 11, 13, 15))] + [ms[4*u-2] + o for o in (1, 3, 7, 9)]
            vp = [ms[4*u-2] + o for o in (11, 15)] + [ms[m] + o for m in (4*u-1, 4*u) for o in (1, 3, 7, 9, 11, 15)] + [ms[4*u+1] + o for o in (1, 3)]
            if u % 2 == 0: bar[t] = S.scal(kp[0], kv_bar(t, 'kv'), force=True)
        for i in range(8):
            kt, s = divmod(i, 4)
            g = S.mem(kp[i], f'ds_read_b128 {ar(kreg(u,kt,s),4)}, v{vK+s} offset:{base + 4096*kt}')
            assert g <= qk_g[4 * u] + i - 6 and (u == 0 or g == kp[i]), ('K', u, i, g)
        for i in range(16):
            tt, r = divmod(i, 2)
            g = S.mem(vp[i], f'ds_read_b64_tr_b16 {ar(vreg(u,tt)+2*r,2)}, v{vTV + tt % 2} offset:{base + 16384 + 4096*r + 256*(tt//2)}')
            assert g <= pv_g[4 * u] + 1 + tt - 5 and (u == 0 or g == vp[i]), ('V', u, i, g, pv_g[4 * u])
    npre = 6
    def pf_wo(a):
        a(f's_lshl_b32 {sT2}, {sN2}, 13'); a(f's_lshl_b32 {sT3}, {sG}, 19'); a(f's_add_u32 {sT2}, {sT2}, {sT3}')
        touch(a, 'WO', vT + 3, 64, sT2)
    g = S.chain(S.gend + 1, collect(w64_offsets, vW4, vT, 1024, 4, lambda p: 8 * p))
    assert g < G - 20, g
    S.chain(Pq.step(22), [f'v_lshlrev_b32 v{vH+1}, 4, v0', f'v_add_u32 v{vH}, {sC}, v{vH+1}', f'v_lshlrev_b32 v{vT+3}, 7, v0'])
    def pre_reads(n, g):
        g = S.scal(g, lambda a: a.wait_tag(('wo', n)))
        for t_ in range(4):
            for r in range(2): g = S.mem(g + 1, w_read(ar(aX + 16 * n + 4 * t_ + 2 * r, 2), wo_sig(n), t_, r), ('pr', n))
        return g
    plan = {1: ((), (0, 1, 2, 3)), 2: ((0,), (4,)), 3: ((1,), (5,)), 4: ((2,), (24,)), 5: ((3,), (25,)), 6: ((4,), (22,)), 7: ((5,), (23,))}
    def pf(n, mul, add, nl):
        def f(a):
            a(f's_mul_i32 {sT2}, {sN}, {mul}'); a(f's_add_u32 {sT2}, {sT2}, {add}')
            touch(a, n, vT + 3, nl, sT2)
        return f
    warm = {1: pf_wo}
    for q in range(6): warm[q + 2] = pf('W1' if (q < 3) != bool(OPT['word']) else 'W2', 112 * 128, 38 * 128 * (q % 3), 38 if q % 3 < 2 else 36)
    for t in range(8):
        g = bar[t] + 1 if t else G + 12
        if t < 7:
            g = S.group(g, kv_dma(t + 1, 'K') + [x for x in kv_dma(t + 1, 'V') if not x.startswith('s_add_u32 {so}')], ('kv', t + 1), stride=2)
            assert g < bar[t + 1] - 25, ('kv', t, g, bar[t + 1])
        if t: S.block(g + 12, warm[t])
        rd, ld = plan.get(t, ((), ()))
        for n in rd: g = pre_reads(n, g + 1)
        for n in ld:
            prev = [m for m in range(min(n, 6)) if wo_sig(m) == wo_sig(n)]
            pre = [lambda a, m=prev[-1]: a.wait_lds_tag(('pr', m))] if prev else []
            g = S.group(g + (5 if prev else 1), pre + wo_dma(n), ('wo', n), stride=2)
        print('interval', t, 'side work ends', g, 'next barrier', bar.get(t + 1))
    for qt in range(4): q_conv(1, qt, Pq.done[1, qt] + 4)
    S.block(ms[2], cleared_signal)
    g = S.chain(ms[12], [f'v_and_b32 v{vT+2}, 4, v{vL4}', f'v_lshl_add_u32 v{vT+1}, v{vT+2}, 3, 32',
                         f'buffer_load_dword v{vPOLL}, v{vT+2}, {srd("DBG")}, 0 offen offset:132 {SC}'])
    def chk2(a):
        a(f'v_cmp_gt_u32 vcc, v{vT+1}, v{vPOLL}'); a('s_cbranch_vccnz L_mod2'); a.label('L_mod2j')
    S.block(sorted(b for b in bar.values() if b > g)[1] + 1, chk2)
    if OPT['tlb']:
        def tl(a):
            a(f'v_lshlrev_b32 v{vT}, 20, v0'); a(f's_mul_i32 {sT2}, {sRB}, {OPT["tlb"] - 1}')
            touch(a, 'WS', vT, 32, sT2)
        S.block(ms[57], tl)
    S.chain(ms[50], [f'v_mov_b32 v125, {hx(2.0**-40)}', f'v_mov_b32 v126, {hx(2.0**40)}', f's_mov_b64 {sBAD}, 0'])
    g = S.chain(pv_g[60] + 5, l_check(0))
    ins = o_convert(0, False); gs = max(g + 1, ms[62] + 4)
    prev = gs
    for i, x in enumerate(ins):
        gi = max(prev, gs + (i * (Gend - gs - 1)) // len(ins))
        if x.startswith('ds_'): prev = S.mem(gi + 1, x, force=True)
        else: prev = S.valu(gi, x, force=True)
    for nm, gg in (('q16', Pq.step(16)), ('qend', G), ('a8', ms[32]), ('a16', Gend)):
        S.block(gg, lambda a, nm=nm: stamp(a, nm))
    barrier(a)
    Pq.head(a)
    def drop(item, g):
        ab = OPT['abl']
        if not ab: return False
        if callable(item):
            nm = getattr(item, '__qualname__', '')
            return ('B' in ab and 'kv_bar' in nm and g > G) or ('T' in ab and '.pf.' in nm)
        if g < G: return ('q' in ab and item.startswith('buffer')) or ('r' in ab and item.startswith('ds_read'))
        return ('E' in ab and item.startswith('v_exp')) or ('C' in ab and item.startswith('v_cvt')) or ('R' in ab and item.startswith('ds_read')) \
            or ('D' in ab and item.startswith('buffer')) or ('W' in ab and (srd('WO') in item or (item.startswith('ds_read') and int(item.split('[')[1].split(':')[0]) >= aX)))
    S.emit(a, 'qproj+attn', drop)
    for qt in range(1, 4):
        for x in l_check(qt) + o_convert(qt, True): a(x)
    a(f's_cmp_lg_u64 {sBAD}, 0')
    a.raw('s_cbranch_scc1 L_slow')
    a.label('L_join')
    S = Sched2(2)
    oread = lambda k, qt: f'ds_read_b128 {ar(16*k + 4*qt, 4)}, v{vH+1} offset:{16384*qt + 1024*k}'
    nl = OPT['nlast']
    res = {n: ('a', aX + 16 * n, None) for n in range(6)}
    for n in range(22, 26): res[n] = ('v', 32 + 16 * (n - 22), 16 * (n - 22) + 2)
    for n in range(32 - nl, 32):
        q = n - (32 - nl); res[n] = ('v', 32 + 16 * q, 16 * 28 + 16 * q - 4 if nl == 2 else 16 * 25 + 12 * q - 4)
    Po = Proj(S, 'wo', wo_sig, 96, res, nl, oread)
    gb1 = S.scal(Po.step(16) + 3, barrier)
    Po.reads()
    def p_cvt(c, qt, ap, g, lim):
        o = Po.acc(c, 2 * ap, qt)
        for r in range(4): g = S.valu(g, f'v_cvt_pk_bf16_f32 v{o+r}, v{o+2*r}, v{o+2*r+1}', limit=g + lim)
        return g
    lastst = [0, 0]
    def p_store(c, qt, ap, g):
        o = Po.acc(c, 2 * ap, qt)
        g = max(g, S.scal(max(g - 3, lastst[ap] + 1), f's_add_u32 s{sP+1+ap}, s{sP}, {(8*c + 4*ap + qt) << 20}'))
        lastst[ap] = S.mem(g, f'buffer_store_dwordx4 v[{o}:{o+3}], v{vT}, {srd("WS")}, s{sP+1+ap} offen {SC}', ('p1', c))
        return lastst[ap]
    for q in range(8): gs = p_store(0, q // 2, q % 2, p_cvt(0, q // 2, q % 2, Po.step(16) + 6 + OPT['stsp'] * q, 99) + 1)
    grp = [(None, 0, wo_dma(6), ('wo', 6), 2), (None, 0, wo_dma(7), ('wo', 7), 2)]
    grp += [(n, 0, wo_dma(n - 14), ('wo', n - 14), 2) for n in range(22, 26)]
    grp += [(n, 0, wo_dma(n + 6), ('wo', n + 6), 2) for n in range(6, 16)]
    grp += [(n, Po.step(16) + OPT['wpace'] * (n - 16), wo_dma(n + 10), ('wo', n + 10), OPT['wpace'] // 4 - 1) for n in range(16, 22)]
    grp += [(26, 0, red_dma(), 'rd', 0)]
    grp += [(None, 0, w1_dma(0, i), ('w1', 0), OPT['w1st']) for i in range(4)]
    Po.stream(grp)
    print('c0 stores end at step', (gs - Po.g0) / 16, 'side DMA ends', (S.gend - Po.g0) / 16)
    g = S.chain(2, collect(tail_setup))
    assert g < Po.step(16), g
    S.block(Po.step(16), lambda a: flag_base(a, sWV))
    S.block(gs + OPT['siga'], lambda a: wave_signal(a, ('p1', 0), 1, 8))
    S.block(max(Po.rel[n] for n in range(26, 32)), barrier)
    ge = Po.done[1, 0] + 4
    S.mem(ge - OPT['polla'], f'buffer_load_dword v{vPOLL}, v{vT+1}, {srd("WS")}, {sWV} offen {SC}', force=True)
    assert gs + OPT['siga'] < ge
    def early(a):
        lab = a.newlabel('early')
        a(f'v_cmp_gt_u32 vcc, 1, v{vPOLL}'); a(f's_cbranch_vccnz {lab}')
        for x in part_loads(0): a.raw(x)
        a.raw(f's_mov_b32 {sLD}, 1')
        a.label(lab)
    S.block(ge, early)
    for qt in range(4):
        g = Po.done[1, qt] + 4
        for ap in range(2): g = p_store(1, qt, ap, p_cvt(1, qt, ap, g, 1) + 1)
    for nm, gg in (('wo0', 1), ('wo16', Po.step(16)), ('wo24', Po.step(24)), ('wo32', len(S.m))):
        S.block(gg, lambda a, nm=nm: stamp(a, nm))
    barrier(a)
    Po.head(a)
    def drop2(item, g):
        ab = OPT['abl']
        if callable(item): return False
        if 'p' in ab and item.startswith('buffer_store'):
            a(item.replace(' sc1', ''), ('p1', 0 if g < Po.step(29) else 1)); return True
        return ('1' in ab and srd('W1') in item) or ('s' in ab and item.startswith('buffer_store') and g < Po.step(29))
    S.emit(a, 'wo', drop2)

def slow_path(a):
    a.label('L_slow')
    a.fence()
    vM = vT; vAD = 124; vF = 120; vTR = 125
    a(f's_sub_u32 {sT2}, {sD}, {sC}')
    lane_fields(a, vAD, [(0, 4, 256), (5, 1, 16), (4, 1, 32)], vTR)
    a(f's_sub_u32 {sT0}, {sC}, {L_B}')
    for b in range(2): a(f'v_add_u32 v{vTR+b}, {sT0}, v{vTV+b}')
    a('v_mov_b32 v120, 0')
    for qt in range(4): a(f'v_mov_b32 v{vM+qt}, 0xff800000')
    for r in range(16): a(f'v_accvgpr_write_b32 a{aL+r}, v120')
    for r in range(128): a(f'v_mov_b32 v{vO+r}, 0')
    a('s_mov_b32 s98, 0')
    loop = a.newlabel('slowloop')
    a.fence()
    a.label(loop)
    for hf in range(2):
        a(f's_add_u32 m0, {sC}, {16384*hf}')
        a(f's_add_u32 {sT0}, {sT2}, {4096*hf}')
        for p in range(4): a(dma(sT0, vVD + p % 2, 'V', 1024 * p))
    for kt in range(2):
        a(f's_add_u32 {sT0}, {sT2}, {4096*kt}')
        for s in range(4): a(f'buffer_load_dwordx4 {ar(aK+16*kt+4*s,4)}, v{vAD}, {srd("K")}, {sT0} offen offset:{64*s}')
    a.wait_all()
    for tt in range(8):
        for r in range(2):
            a(f'ds_read_b64_tr_b16 {ar(aV+4*tt+2*r,2)}, v{vTR + tt % 2} offset:{16384*r + 256*(tt//2)}')
    for qt in range(4):
        b = vS; t = vF
        for kt in range(2):
            for s in range(4): a(m16(vr(b + 4 * kt, 4), ar(aK + 16 * kt + 4 * s, 4), vr(vQ + 16 * s + 4 * qt, 4), s == 0))
        a(f'v_max3_f32 v{t}, v{b}, v{b+1}, v{vM+qt}')
        for r in range(2, 8, 2): a(f'v_max3_f32 v{t}, v{b+r}, v{b+r+1}, v{t}')
        for sw in ('16', '32'):
            a(f'v_mov_b32 v{t+1}, v{t}'); a(f'v_permlane{sw}_swap_b32 v{t}, v{t+1}'); a(f'v_max_f32 v{t}, v{t}, v{t+1}')
        a(f'v_sub_f32 v{t+1}, v{vM+qt}, v{t}')
        a(f'v_exp_f32 v{t+1}, v{t+1}')
        a(f'v_mov_b32 v{vM+qt}, v{t}')
        a(f'v_accvgpr_read_b32 v{t+2}, a{aL+4*qt}')
        a(f'v_mul_f32 v{t+2}, v{t+2}, v{t+1}')
        for r in range(4): a(f'v_accvgpr_write_b32 a{aL+4*qt+r}, v{t+2}')
        for r in range(32): a(f'v_mul_f32 v{vO+32*qt+r}, v{vO+32*qt+r}, v{t+1}')
        for r in range(8): a(f'v_sub_f32 v{b+r}, v{b+r}, v{t}')
        for r in range(8): a(f'v_exp_f32 v{b+r}, v{b+r}')
        for r in range(4): a(f'v_cvt_pk_bf16_f32 v{vP+r}, v{b+2*r}, v{b+2*r+1}')
        a(m16(ar(aL + 4 * qt, 4), ar(aONE, 4), vr(vP, 4), False))
        for tt in range(8): a(m16(vr(vO + 32 * qt + 4 * tt, 4), ar(aV + 4 * tt, 4), vr(vP, 4), False))
    a(f's_add_u32 {sT2}, {sT2}, 8192')
    a.fence()
    a('s_add_u32 s98, s98, 1')
    a('s_cmp_lt_u32 s98, 16')
    a.raw(f's_cbranch_scc1 {loop}')
    for qt in range(4):
        a(f'v_accvgpr_read_b32 v{vR+qt}, a{aL+4*qt}'); a(f'v_rcp_f32 v{vR+qt}, v{vR+qt}')
    for qt in range(4):
        for x in o_convert(qt, True): a(x)
    a.fence()
    a.raw('s_branch L_join')

vW1, vL16, vRX, vRM, vPA = 6, 10, 11, 20, 21
def tail_setup(a):
    t = vT + 2
    lane_fields(a, vT, [(3, 1, 16384), (4, 2, 128), (0, 3, 16)], t)
    lane_fields(a, vPA, [(5, 1, 1 << 22), (0, 5, 16)], t)
    a(f's_lshl_b32 {sT2}, {sRB}, 15'); a(f's_lshl_b32 {sT0}, {sW}, 9'); a(f's_add_u32 {sT2}, {sT2}, {sT0}'); a(f's_add_u32 {sT2}, {sT2}, {WS_P1}')
    a(f's_lshl_b32 s{sP}, {sG}, 11'); a(f's_add_u32 s{sP}, s{sP}, {sT2}')
    a(f's_lshr_b32 {sRD}, {sG}, 1'); a(f's_lshl_b32 {sRD}, {sRD}, 20'); a(f's_add_u32 {sRD}, {sRD}, {sT2}')
    a(f's_and_b32 {sT0}, {sG}, 1'); a(f's_lshl_b32 {sT0}, {sT0}, 14'); a(f's_add_u32 {sRD}, {sRD}, {sT0}')
    a(f's_mov_b32 {sLD}, 0')
    a(f'v_and_b32 v{vT+1}, 7, v0'); a(f'v_max_u32 v{vT+1}, 1, v{vT+1}'); a(f'v_xor_b32 v{vT+1}, {sG}, v{vT+1}'); a(f'v_lshlrev_b32 v{vT+1}, 2, v{vT+1}')
    a(f'v_lshlrev_b32 v{vL16}, 4, v0')
    a(f'v_lshlrev_b32 v{vSIG}, 9, v0')
    a(f's_lshl_b32 {sT2}, {sW}, 7'); a(f's_add_u32 {sT2}, {sT2}, {F_A}')
    a(f's_lshl_b32 {sSIG}, {sRB}, 12'); a(f's_lshl_b32 {sT0}, {sG}, 2'); a(f's_add_u32 {sSIG}, {sSIG}, {sT0}'); a(f's_add_u32 {sSIG}, {sSIG}, {sT2}')
    a(f's_lshl_b32 {sWV}, {sL}, 9'); a(f's_add_u32 {sWV}, {sWV}, {sT2}'); a(f's_lshl_b32 {sWAIT}, s2, 7'); a(f's_add_u32 {sWAIT}, {sWAIT}, {F_B}')
    a(f's_lshr_b32 {sOWN}, 0x80, {sG}')
    a(f's_and_b32 {sG}, s2, 7'); a(f's_lshr_b32 {sRB}, s2, 3')
    a(f's_mul_i32 {sRH}, {sRB}, 37'); a(f's_lshr_b32 {sRH}, {sRH}, 9')
    a(f's_mul_i32 {sFS}, {sRH}, 14'); a(f's_sub_u32 {sFS}, {sRB}, {sFS}')
    a(f's_lshl_b32 {sW1}, {sFS}, 8'); a(f's_mul_i32 {sT0}, {sW}, {32*3584}'); a(f's_add_u32 {sW1}, {sW1}, {sT0}')
    w64_offsets(a, vW1, t, 3584, 4, lambda p: 8 * p)
    a(f's_and_b32 {sF}, {sRB}, 7'); a(f's_lshr_b32 {sE}, {sRB}, 3'); a(f's_lshl_b32 {sT0}, {sG}, 2'); a(f's_add_u32 {sE}, {sE}, {sT0}')
    a(f's_mul_i32 {sH}, {sW}, {448*1024}'); a(f's_lshl_b32 {sT0}, {sF}, 7'); a(f's_add_u32 {sH}, {sH}, {sT0}')
    lane_fields(a, vRX, [(4, 2, 1024), (0, 4, 16)], t)
    lane_fields(a, vRM, [(5, 1, 2048), (0, 5, 16)], t)
    a(f's_and_b32 {sT0}, {sW}, 1'); a(f's_lshl_b32 {sT0}, {sT0}, 15'); a(f's_sub_u32 {sT0}, {sT0}, {sC}')
    for b in range(2):
        a(f'v_subrev_u32 v{vTRC+b}, 0x10000, v{vTRA+b}'); a(f'v_add_u32 v{vTW1+b}, {sT0}, v{vTRC+b}')
def w1_dma(b, i, so='{so}'):
    return [f's_add_u32 m0, {sC}, {65536*b + 16384*i}', f's_add_u32 {so}, {sW1}, {128*3584*(2*b + i%2) + 128*(i//2)}'] + \
           [dma(so, vW1 + p, 'W1', 1024 * p) for p in range(4)]
def red_dma():
    return [f's_add_u32 m0, {sC}, {slot_lds(4)}', f's_lshl_b32 {sT1}, {sL}, 13', f's_lshl_b32 {sT0}, {sW}, 8', f's_add_u32 {sT1}, {sT1}, {sT0}',
            dma(sT1, vRX, 'X', 0), f's_add_u32 {sT1}, {sT1}, 3072', dma(sT1, vRX, 'X', 1024),
            f's_lshl_b32 {sT1}, {sW}, 9', f's_add_u32 {sT1}, {sT1}, {WS_MOD + 4096 - 2048}', dma(sT1, vRM, 'WS', 2048, SC),
            f's_add_u32 {sT1}, {sT1}, 3072', dma(sT1, vRM, 'WS', 3072, SC)]
PL = 128
def part_loads(c):
    out = []; fl = ['sc1', 'sc1 nt', 'sc0 sc1', 'sc0 sc1 nt'][OPT['pfl']]
    for g in range(8):
        if g % 2 == 0: out.append(f's_add_u32 {sT0}, {sRD}, {(c << 23) + 2048*g}')
        out.append(f'buffer_load_dwordx4 v[{PL+32*c+4*g}:{PL+32*c+4*g+3}], v{vPA}, {srd("WS")}, {sT0} offen offset:{2048*(g%2)} {fl}')
    return out

RX, RM, ACC, T = 64, 192, 80, 96
def red_operands(a):
    a.wait_tag('rd')
    lane_fields(a, 120, [(0, 3, 256), (5, 1, 64), (3, 2, 8)], 121)
    lane_fields(a, 121, [(5, 1, 128), (3, 2, 16)], 122)
    a(f's_add_u32 {sT0}, {sC}, {slot_lds(4)}')
    a(f'v_add_u32 v120, {sT0}, v120'); a(f'v_add_u32 v121, {sT0}, v121')
    for c in range(2):
        for hf in range(2): a(f'ds_read_b64 v[{T+4*c+2*hf}:{T+4*c+2*hf+1}], v120 offset:{128*c + 32*hf}')
    for vec in range(3):
        for c in range(2):
            for hf in range(2):
                b = RM + 16 * vec + 8 * c + 4 * hf
                a(f'ds_read_b128 v[{b}:{b+3}], v121 offset:{2048 + 512*vec + 256*c + 64*hf}')
    for r in range(8):
        a(f'v_lshlrev_b32 v{RX+2*r}, 16, v{T+r}'); a(f'v_and_b32 v{RX+2*r+1}, {sMASK}, v{T+r}')
    a('v_mov_b32 v122, 0x3f80'); a('v_mov_b32 v123, 0x3f800000')
def red_sum(a, c):
    P = PL + 32 * c; A = ACC + 8 * c
    for r in range(4):
        a(f'v_lshlrev_b32 v{A+2*r}, 16, v{P+r}'); a(f'v_and_b32 v{A+2*r+1}, {sMASK}, v{P+r}')
    for g in range(1, 8):
        for r in range(4):
            a(f'v_dot2c_f32_bf16 v{A+2*r}, v{P+4*g+r}, v122'); a(f'v_dot2c_f32_bf16 v{A+2*r+1}, v{P+4*g+r}, v123')
    for r in range(4 * c, 4 * c + 4):
        a(f'v_pk_fma_f32 v[{ACC+2*r}:{ACC+2*r+1}], v[{ACC+2*r}:{ACC+2*r+1}], v[{RM+2*r}:{RM+1+2*r}], v[{RX+2*r}:{RX+2*r+1}]')

def late_sum(a, loads):
    l0, l1 = a.newlabel('ls'), a.newlabel('lsj')
    dm = list(a.vm)
    a(f's_cmp_lg_u32 {sLD}, 0'); a.raw(f's_cbranch_scc1 {l0}')
    a.vm = dm + loads; red_sum(a, 1); a.raw(f's_branch {l1}')
    a.label(l0)
    a.vm = loads + dm; red_sum(a, 1)
    a.label(l1)

def allred8(a, r, t):
    a(f'v_add_f32_dpp v{r}, v{r}, v{r} row_ror:8 row_mask:0xf bank_mask:0xf')
    a(f'v_mov_b32 v{t}, v{r}'); a(f'v_permlane16_swap_b32 v{r}, v{t}'); a(f'v_add_f32 v{r}, v{r}, v{t}')
    a(f'v_mov_b32 v{t}, v{r}'); a(f'v_permlane32_swap_b32 v{r}, v{t}'); a(f'v_add_f32 v{r}, v{r}, v{t}')

def red_addr(a):
    lane_fields(a, 125, [(0, 3, 32)], 124, add=slot_lds(5))
    a(f's_lshl_b32 {sT1}, {sW}, 3'); a(f'v_add_u32 v124, {sT1}, v125')
    lane_fields(a, 126, [(3, 3, 256), (0, 3, 16)], 127)
    a(f's_lshr_b32 s{sP}, {sL}, 1'); a(f's_lshl_b32 s{sP}, s{sP}, 14')
    a(f's_and_b32 {sT1}, {sL}, 1'); a(f's_lshl_b32 {sT1}, {sT1}, 7'); a(f's_add_u32 s{sP}, s{sP}, {sT1}')
    a(f's_add_u32 s{sP}, s{sP}, {sC}'); a(f's_add_u32 s{sP}, s{sP}, {WS_H2}')
    a(f's_lshl_b32 s{sP+2}, {sL}, 13'); a(f's_lshl_b32 {sT1}, {sW}, 11'); a(f's_add_u32 s{sP+2}, s{sP+2}, {sT1}'); a(f's_add_u32 s{sP+2}, s{sP+2}, {WS_X1}')
    a(f'v_lshlrev_b32 v{vSIG}, 10, v0')
    a(f's_bfe_u32 {sSIG}, {sL}, 0x10004'); a(f's_mul_i32 {sSIG}, {sSIG}, {14*8}'); a(f's_lshr_b32 {sT0}, {sL}, 5'); a(f's_add_u32 {sSIG}, {sSIG}, {sT0}')
    a(f's_lshl_b32 {sSIG}, {sSIG}, 7'); a(f's_and_b32 {sT0}, {sL}, 15'); a(f's_lshl_b32 {sT0}, {sT0}, 2'); a(f's_add_u32 {sSIG}, {sSIG}, {sT0}')
    a(f's_add_u32 {sSIG}, {sSIG}, {F_B}')

def red_ln(a):
    X1 = 112
    for r in range(4): a(f'v_pk_add_f32 v[{T+2*r}:{T+2*r+1}], v[{ACC+2*r}:{ACC+2*r+1}], v[{ACC+8+2*r}:{ACC+9+2*r}]')
    for r in range(2): a(f'v_pk_add_f32 v[{T+2*r}:{T+2*r+1}], v[{T+2*r}:{T+2*r+1}], v[{T+4+2*r}:{T+5+2*r}]')
    a(f'v_pk_add_f32 v[{T}:{T+1}], v[{T}:{T+1}], v[{T+2}:{T+3}]')
    a(f'v_add_f32 v{T}, v{T}, v{T+1}')
    for r in range(8): a(f'v_cvt_pk_bf16_f32 v{X1+r}, v{ACC+2*r}, v{ACC+2*r+1}')
    allred8(a, T, T + 1)
    a(f'v_mul_f32 v{T}, {hx(-1.0/128)}, v{T}')
    for r in range(8): a(f'v_pk_add_f32 v[{ACC+2*r}:{ACC+2*r+1}], v[{ACC+2*r}:{ACC+2*r+1}], v[{T}:{T+1}] op_sel_hi:[1,0]')
    for h in range(2): a(f'v_pk_mul_f32 v[{T+2+2*h}:{T+3+2*h}], v[{ACC+2*h}:{ACC+2*h+1}], v[{ACC+2*h}:{ACC+2*h+1}]')
    for r in range(2, 8):
        h = r % 2
        a(f'v_pk_fma_f32 v[{T+2+2*h}:{T+3+2*h}], v[{ACC+2*r}:{ACC+2*r+1}], v[{ACC+2*r}:{ACC+2*r+1}], v[{T+2+2*h}:{T+3+2*h}]')
    a(f'v_pk_add_f32 v[{T+2}:{T+3}], v[{T+2}:{T+3}], v[{T+4}:{T+5}]')
    a(f'v_add_f32 v{T+1}, v{T+2}, v{T+3}')
    allred8(a, T + 1, T + 2)
    a(f'ds_write_b64 v124, v[{T}:{T+1}]')
    for i in range(2): a(f'buffer_store_dwordx4 v[{X1+4*i}:{X1+4*i+3}], v{vL16}, {srd("WS")}, s{sP+2} offen offset:{1024*i} {SC}', 'x1')
    barrier(a)
    a(f'ds_read_b128 v[{T+4}:{T+7}], v125'); a(f'ds_read_b128 v[{T+8}:{T+11}], v125 offset:16')
    a(f'v_pk_add_f32 v[{T+12}:{T+13}], v[{T+4}:{T+5}], v[{T+6}:{T+7}]')
    a(f'v_pk_add_f32 v[{T+14}:{T+15}], v[{T+8}:{T+9}], v[{T+10}:{T+11}]')
    a(f'v_pk_add_f32 v[{T+12}:{T+13}], v[{T+12}:{T+13}], v[{T+14}:{T+15}]')
    a(f'v_mul_f32 v{T+12}, {hx(0.25)}, v{T+12}')
    for w in range(4): a(f'v_sub_f32 v{T+4+2*w}, v{T+4+2*w}, v{T+12}')
    a(f'v_mul_f32 v{T+14}, v{T+4}, v{T+4}')
    for w in range(1, 4): a(f'v_fmac_f32 v{T+14}, v{T+4+2*w}, v{T+4+2*w}')
    a(f'v_fmamk_f32 v{T+13}, v{T+14}, {hx(128.0)}, v{T+13}')
    a(f'v_mov_b32 v{T+14}, {hx(1e-5)}')
    a(f'v_fmamk_f32 v{T+13}, v{T+13}, {hx(1.0/512)}, v{T+14}')
    a(f'v_rsq_f32 v{T+13}, v{T+13}')
    a(f'v_sub_f32 v{T+12}, v{T+12}, v{T}')
    a(f'v_mul_f32 v{T+12}, v{T+12}, v{T+13}')
    for i in range(2):
        for r in range(4 * i, 4 * i + 4):
            a(f'v_pk_fma_f32 v[{ACC+2*r}:{ACC+2*r+1}], v[{ACC+2*r}:{ACC+2*r+1}], v[{T+12}:{T+13}], v[{T+12}:{T+13}] op_sel:[0,1,0] op_sel_hi:[1,1,0]')
        for r in range(4 * i, 4 * i + 4):
            a(f'v_pk_fma_f32 v[{ACC+2*r}:{ACC+2*r+1}], v[{ACC+2*r}:{ACC+2*r+1}], v[{RM+32+2*r}:{RM+33+2*r}], v[{RM+16+2*r}:{RM+17+2*r}]')
        for r in range(4 * i, 4 * i + 4): a(f'v_cvt_pk_bf16_f32 v{T+r}, v{ACC+2*r}, v{ACC+2*r+1}')
        a(f'buffer_store_dwordx4 v[{T+4*i}:{T+4*i+3}], v126, {srd("WS")}, s{sP} offen offset:{2048*i} {SC}', 'h2')

def w1_reads(b):
    return [f'ds_read_b64_tr_b16 {ar(128*b + 16*k + 4*t + 2*r, 2)}, v{vTW1 + t % 2} offset:{4096*k + 2048*r + 256*(t//2)}'
            for k in range(8) for t in range(4) for r in range(2)]
class Weave:
    def __init__(self, a, extra, every): self.a, self.extra, self.every, self.n = a, list(extra), every, 0
    def __getattr__(self, k): return getattr(self.a, k)
    def pop(self):
        while self.extra:
            x, tag = self.extra.pop(0); self.a(x, tag)
            if x.startswith('buffer'): break
    def __call__(self, t, tag=None):
        self.a(t, tag); self.n += 1
        if self.n % self.every == 0: self.pop()
    def flush(self):
        while self.extra: self.pop()
W2_LEFT = []
def w2_sig(k): return k - 4 if k < 10 else k - 14
def w2_dma(k, so='{so}'):
    return [f's_add_u32 m0, {sC}, {slot_lds(w2_sig(k))}', f's_add_u32 {so}, {sH}, {32*1024*k}'] + \
           [dma(so, vW4 + p, 'W2', 1024 * p) for p in range(4)]
def w2_reg(k, t): return ('v', 32 + 16 * k + 4 * t) if k < 4 else ('a', 16 * (k - 4) + 4 * t)
def w2_reads(k):
    return [w_read(vr(w2_reg(k, t)[1] + 2 * r, 2, w2_reg(k, t)[0]), w2_sig(k), t, r) for t in range(4) for r in range(2)]
NB2 = 16
def b2_reg(i, k): return 192 + 4 * ((14 * i + k) % NB2)
def b2_load(i, k):
    out = [f's_add_u32 {sT0}, {sH1}, {57344*i + 4096*(k//4)}'] if k % 4 == 0 else []
    return out + [f'buffer_load_dwordx4 {vr(b2_reg(i,k),4)}, v{vL16}, {srd("WS")}, {sT0} offen offset:{1024*(k%4)} {SC}']
def h1_touch(a, i):
    a(f's_mul_i32 {sT2}, {sF}, {14*128}'); a(f's_add_u32 {sT2}, {sT2}, {sH1}'); a(f's_add_u32 {sT2}, {sT2}, {57344*i}')
    touch(a, 'WS', vT + 2, 14, sT2, vT + 3)
PF2 = 10
def g2_head(a):
    h1_touch(a, 0)
    for k in range(PF2):
        for x in b2_load(0, k): a(x)

def mlp_addr(a):
    a(f'v_lshlrev_b32 v{vT+2}, 7, v0'); a(f'v_min_u32 v{vT+1}, {6*128}, v{vT+2}')
    a(f's_mul_i32 {sT0}, {sW}, {7*128}'); a(f's_lshl_b32 {sWV}, {sE}, 12'); a(f's_add_u32 {sWV}, {sWV}, {sT0}'); a(f's_add_u32 {sWV}, {sWV}, {F_C}')
    a(f's_mul_i32 {sH1}, {sE}, {4*57344}'); a(f's_mul_i32 {sT0}, {sW}, {14*1024}'); a(f's_add_u32 {sH1}, {sH1}, {sT0}'); a(f's_add_u32 {sH1}, {sH1}, {WS_H1}')
    a(f's_lshr_b32 {sT1}, {sW}, 1'); a(f's_lshl1_add_u32 {sT2}, {sRH}, {sT1}'); a(f's_lshl2_add_u32 {sR32}, {sG}, {sT2}')
    a(f's_and_b32 {sT3}, {sW}, 1')
    a(f's_lshl_b32 {sH2}, {sR32}, 16'); a(f's_lshl_b32 {sT0}, {sT3}, 13'); a(f's_add_u32 {sH2}, {sH2}, {sT0}'); a(f's_add_u32 {sH2}, {sH2}, {WS_H2}')
    a(f's_lshl1_add_u32 {sT3}, {sFS}, {sT3}')
    a(f's_mul_i32 s{sP}, {sR32}, {4*57344}'); a(f's_lshl_b32 {sT0}, {sT3}, 11'); a(f's_add_u32 s{sP}, s{sP}, {sT0}'); a(f's_add_u32 s{sP}, s{sP}, {WS_H1}')
    for q in range(1, 4): a(f's_add_u32 s{sP+q}, s{sP}, {57344*q}')
    a(f's_lshl_b32 {sSIG}, {sR32}, 12'); a(f's_lshl_b32 {sT0}, {sT3}, 7'); a(f's_add_u32 {sSIG}, {sSIG}, {sT0}'); a(f's_add_u32 {sSIG}, {sSIG}, {F_C}')
    a(f's_lshl_b32 {sD}, {sW}, 13')
    a(f's_lshl_b32 {sT1}, {sT1}, 14'); a(f'v_add_u32 v{vH}, {sT1}, v{vL16}')

vPK = 176
def silu(i):
    o = 128 + 16 * (i % 2); t = 160; ops = []
    for h in range(8):
        m = []
        for r in (2 * h, 2 * h + 1):
            n = len(ops)
            ops += [(f'v_exp_f32 v{t+r}, v{o+r}', []), (f'v_add_f32 v{t+r}, 1.0, v{t+r}', [n]), (f'v_rcp_f32 v{t+r}, v{t+r}', [n + 1]),
                    (f'v_mul_f32 v{t+r}, v{o+r}, v{t+r}', [n + 2])]
            m.append(n + 3)
        ops.append((f'v_cvt_pk_bf16_f32 v{vPK+8*(i%2)+h}, v{t+2*h}, v{t+2*h+1}', m))
    return ops
def h1_store(i, ap):
    o = vPK + 8 * (i % 2) + 4 * ap
    return f'buffer_store_dwordx4 v[{o}:{o+3}], v{vL16}, {srd("WS")}, s{sP+i} offen offset:{1024*ap} {SC}'

def phase_g1(a):
    def h2_dma(i, hf, so='{so}'):
        return [f's_add_u32 m0, {sD}, {32768*(i%2) + 4096*hf}', f's_add_u32 {so}, {sH2}, {16384*i + 4096*hf}'] + \
               [dma(so, vL16, 'WS', 1024 * p, SC) for p in range(4)]
    a(f's_lshl2_add_u32 {sT1}, {sFS}, {sW}'); a(f's_mul_i32 {sT1}, {sT1}, {19*128}')
    a(f's_min_u32 {sT1}, {sT1}, {131072 - 19*128}'); a(f's_andn2_b32 {sT2}, {sH2}, 0x1ffff'); a(f's_add_u32 {sT2}, {sT1}, {sT2}')
    flag_check(a, 'B', 1)
    barrier(a); stamp(a, 'syncB')
    for hf in range(2):
        for x in h2_dma(0, hf, sT1): a(x, ('h2', 0))
    touch(a, 'WS', vT + 2, 19, sT2, vT + 3)
    flag_base(a, sWV)
    S = Sched2(2)
    breg = lambda i, k: 96 + 4 * (k % 8)
    bread = lambda i, k: f'ds_read_b128 {vr(breg(i,k),4)}, v{vH} offset:{32768*(i%2) + 1024*k}'
    for i in range(4):
        for k in range(16):
            for t in range(4): S.mfma(m16(vr(128 + 16 * (i % 2) + 4 * t, 4), ar(16 * k + 4 * t, 4), vr(breg(i, k), 4), k == 0))
    LA = 28; bar = {}
    a.wait_tag(('h2', 0)); barrier(a)
    for i in range(4):
        if i: bar[i] = S.scal(64 * i - (22 if i == 2 else 12), lambda a, i=i: (a.wait_tag(('h2', i)), barrier(a)), force=True)
        g = 0
        for k in range(16):
            g = max(64 * i + 4 * k - LA, bar.get(i, -99), g + 2 if i else -99)
            if g <= 0: a(bread(i, k))
            else: g = S.mem(g, bread(i, k))
            assert g <= 64 * i + 4 * k - 8 or g <= 0
    left = list(W2_LEFT)
    for i in (2, 3):
        for ap in range(2): S.mem(64 * i + 1 + ap, h1_store(i - 2, ap), ('h1', i - 2))
        S.block(64 * i + OPT['sigc'], lambda a, i=i: wave_signal(a, ('h1', i - 2), i - 1, 1))
    for i in range(4):
        g = bar.get(i, 0) + 1
        if i < 3:
            for hf in range(2): g = S.group(g, h2_dma(i + 1, hf), ('h2', i + 1), stride=3)
        else:
            for k in (10, 11): g = S.group(g, w2_dma(k), ('w2', k), stride=3)
        ge = g
        for _ in range(-(-len(left) // (3 - i)) if i < 3 else 0):
            k = left.pop(0); g = S.group(g + 1, w2_dma(k), ('w2', k), stride=2 if i == 0 else 3)
        print('gemm1 stage', i, 'DMA ends', ge - 64 * i, g - 64 * i)
    assert not left
    S.block(192 + OPT['pollc'], lambda a: (barrier(a), [a(x) for x in flag_loads('C')]))
    for i in range(1, 4):
        at = fill(S, silu(i - 1), 64 * i + 3, 64 * i + 63)
        assert max(at.values()) <= 64 * i + 64, max(at.values())
    for nm, gg in (('g0', 1), ('t_g50', 50), ('t_g64', 64), ('g128', 128), ('t_g192', 192), ('g256', 256)): S.block(gg, lambda a, nm=nm: stamp(a, nm))
    S.emit(a, 'gemm1')
    for ap in range(2): a(h1_store(2, ap), ('h1', 2))
    flag_check(a, 'C', 1); stamp(a, 'syncC')
    g2_head(a)
    a.wait_tag(('w2', 11))

vRW, vRR, vXR, vOA, vGB, vRD = 6, 11, 20, 21, 96, 100
def g2_addr(a):
    a(f'v_lshrrev_b32 v{vT}, 4, v0'); a(f'v_and_b32 v{vH+1}, 15, v0')
    a(f'v_xor_b32 v{vRW}, v{vT}, v{vH+1}'); a(f'v_lshlrev_b32 v{vRW}, 4, v{vRW}'); a(f'v_lshl_add_u32 v{vRW}, v{vT}, 8, v{vRW}')
    a(f's_add_u32 {sT1}, {sC}, {L_A}'); a(f'v_add_u32 v{vRW}, {sT1}, v{vRW}')
    for t in range(1, 4): a(f'v_xor_b32 v{vRW+t}, {64*t}, v{vRW}')
    a(f's_lshl_b32 {sT1}, {sW}, 2'); a(f'v_add_u32 v{vT}, {sT1}, v{vT}')
    a(f'v_xor_b32 v{vRR}, v{vT}, v{vH+1}'); a(f'v_lshlrev_b32 v{vRR}, 4, v{vRR}'); a(f'v_lshl_add_u32 v{vRR}, v{vH+1}, 8, v{vRR}')
    a(f'v_add_u32 v{vRR}, {L_A}, v{vRR}')
    a(f'v_lshlrev_b32 v{vOA}, 3, v{vH+1}'); a(f'v_lshl_add_u32 v{vOA}, v{vT}, 10, v{vOA}')
    lane_fields(a, vXR, [(3, 1, 512), (0, 2, 128), (2, 1, 8), (4, 2, 16)], vT, add=slot_lds(4))
    a(f's_lshr_b32 {sT1}, {sW}, 1'); a(f's_lshl_b32 {sT1}, {sT1}, 10'); a(f's_and_b32 {sT2}, {sW}, 1'); a(f's_lshl_b32 {sT2}, {sT2}, 6')
    a(f's_add_u32 {sT1}, {sT1}, {sT2}'); a(f'v_add_u32 v{vXR}, {sT1}, v{vXR}')
    a(f'v_lshlrev_b32 v{vH+1}, 4, v{vH+1}')
    a(f's_lshl_b32 {sA}, {sE}, 16'); a(f's_lshl_b32 {sT1}, {sF}, 7'); a(f's_add_u32 {sB}, {sA}, {sT1}')
    a(f's_lshl_b32 {sT1}, {sW}, 14'); a(f's_add_u32 {sA}, {sA}, {sT1}'); a(f's_lshl_b32 {sT1}, {sF}, 10'); a(f's_add_u32 {sA}, {sA}, {sT1}')
    a(f's_add_u32 {sA}, {sA}, {WS_X1}')
    a(f's_lshl_b32 {sLD}, {sF}, 8'); a(f's_add_u32 {sLD}, {sLD}, {WS_MOD + 2048*5}')

def phase_g2(a):
    for x in flag_loads('C'): a(x)
    for k in range(4, 12):
        for x in w2_reads(k): a(x, ('ar', k))
    for k in (12, 13):
        for x in w2_dma(k, sT1): a(x, ('w2', k))
    S = Sched2(2)
    acc = lambda i, t: 128 + 16 * (i % 2) + 4 * t
    for i in range(4):
        for k in range(14):
            for t in range(4):
                kind, r = w2_reg(k, t)
                S.mfma(m16(vr(acc(i, t), 4), vr(r, 4, kind), vr(b2_reg(i, k), 4), k == 0))
    g = 1
    for n in range(PF2, 56):
        i, k = divmod(n, 14); g = max(g, 4 * (n - PF2) + 2)
        if k == 0:
            S.block(g - 1, lambda a, i=i: stamp(a, f't_pre{i}'))
            S.block(g - 1, lambda a, i=i: (flag_check(a, 'C', i + 1), stamp(a, f't_chk{i}'), h1_touch(a, i)))
        g = S.chain(g, b2_load(i, k))
    S.block(1, lambda a: wave_signal(a, ('h1', 2), 3, 1))
    g = 20
    for k in range(12, 14):
        g = S.scal(g, lambda a, k=k: a.wait_tag(('w2', k)))
        for x in w2_reads(k): g = S.mem(g, x, ('ar', k))
        assert g <= 4 * k - 3, (k, g)
    S.block(g + 6, lambda a: (a.wait_all(vm=False), [a(x) for x in flag_loads('C')]))
    g = S.group(g + 1, [f's_add_u32 m0, {sC}, {slot_lds(4)}', dma(sA, vL16, 'WS', 0, SC), f's_add_u32 {sA}, {sA}, {8192-1024}', dma(sA, vL16, 'WS', 1024, SC)], 'xe')
    S.mem(g + 1, f'buffer_load_dwordx4 v[{vGB}:{vGB+3}], v{vH+1}, {srd("WS")}, {sLD} offen {SC}')
    at = fill(S, silu(3), 1, OPT['silu3'])
    gl = max(at.values())
    assert gl < 55
    for ap in range(2): gl = S.mem(gl + 1, h1_store(3, ap), ('h1', 3))
    S.block(gl + OPT['sig4'], lambda a: wave_signal(a, ('h1', 3), 4, 1))
    def wr(i): return [f'ds_write_b128 v{vRW+t}, v[{acc(i,t)}:{acc(i,t)+3}] offset:{16384*i + 1024*t}' for t in range(4)]
    def rd(i): return [f'ds_read_b128 v[{vRD+4*w}:{vRD+4*w+3}], v{vRR} offset:{16384*i + 4096*w}' for w in range(4)] + \
                      [f'ds_read_b64 v[{vRD+16}:{vRD+17}], v{vXR} offset:{4096*i}']
    def fin(i):
        X = vRD + 16; out = []
        for e in range(4): out += [f'v_add_f32 v{vRD+e}, v{vRD+e}, v{vRD+4+e}', f'v_add_f32 v{vRD+8+e}, v{vRD+8+e}, v{vRD+12+e}']
        out += [f'v_lshlrev_b32 v{X+2}, 16, v{X}', f'v_and_b32 v{X+3}, {sMASK}, v{X}', f'v_lshlrev_b32 v{X+4}, 16, v{X+1}', f'v_and_b32 v{X+5}, {sMASK}, v{X+1}']
        for e in range(4): out.append(f'v_add_f32 v{vRD+e}, v{vRD+e}, v{vRD+8+e}')
        for e in range(4): out.append(f'v_fmac_f32 v{X+2+e}, v{vRD+e}, v{vGB+e}')
        out += [f'v_cvt_pk_bf16_f32 v{X+6+h}, v{X+2+2*h}, v{X+3+2*h}' for h in range(2)]
        out += [f's_add_u32 {sT1}, {sB}, {16384*i}', f'buffer_store_dwordx2 v[{X+6}:{X+7}], v{vOA}, {srd("OUT")}, {sT1} offen']
        return out
    def bar(a): a.wait_tag('xe'); barrier(a)
    for i in range(3):
        g = S.chain(56 * (i + 1) + 4, wr(i), stride=3)
        g = S.scal(g + 8, bar)
        g = S.chain(g, rd(i))
        if i == 0: S.block(g + 7, lambda a: (a.wait_all(vm=False), [a(x) for x in flag_loads('C')]))
        g = S.chain(g + 8, fin(i))
        assert g < 56 * (i + 2) + 4, g
    S.block(40, lambda a: stamp(a, 't_f40')); S.block(56, lambda a: stamp(a, 't_f56')); S.block(90, lambda a: stamp(a, 't_f90'))
    S.block(1, lambda a: stamp(a, 'f0')); S.block(112, lambda a: stamp(a, 'f112')); S.block(224, lambda a: stamp(a, 'f224'))
    S.emit(a, 'gemm2')
    for x in wr(3): a(x)
    barrier(a)
    for x in rd(3) + fin(3): a(x)

def k_mega(a):
    a.raw('s_cmp_ge_u32 s2, 256')
    a.raw('s_cbranch_scc1 L_end')
    stamp_names.append([])
    if OPT['stamps']: a('s_memrealtime s[98:99]'); a('s_memtime s[96:97]')
    else: stamp(a, 'start')
    names = ['WM', 'C', 'X', 'WS', 'DBG', 'WQ', 'K', 'V', 'WO', 'W1', 'W2', 'OUT']
    for n in names: a(f's_load_dwordx2 s[{SRD[n]}:{SRD[n]+1}], s[0:1], {KOFF[n]}')
    a(f's_lshr_b32 {sRB}, s2, 3')
    lc = a.newlabel('nocode')
    a(f's_cmp_ge_u32 {sRB}, 29')
    a.raw(f's_cbranch_scc0 {lc}')
    a.raw('s_getpc_b64 s[66:67]')
    a.label('L_pc')
    a.raw(f's_sub_u32 {sT0}, {sRB}, 29'); a.raw(f's_lshl_b32 {sT0}, {sT0}, 15')
    a.raw(f'v_lshl_add_u32 v2, v0, 7, {sT0}')
    a.raw('v_min_u32 v2, L_code_end - L_pc - 4, v2')
    a.raw('v_mov_b32 v3, s67'); a.raw('v_add_co_u32 v2, vcc, s66, v2'); a.raw('s_nop 1'); a.raw('v_addc_co_u32 v3, vcc, 0, v3, vcc')
    a.raw('global_load_dword v28, v[2:3], off')
    a.label(lc)
    a('v_lshrrev_b32 v1, 6, v0')
    for n in names:
        a(f's_mov_b32 s{SRD[n]+2}, {SIZE[n]}'); a(f's_mov_b32 s{SRD[n]+3}, 0x20000')
    a(f's_and_b32 {sG}, s2, 7')
    a(f'v_readfirstlane_b32 {sW}, v1')
    a('v_and_b32 v0, 63, v0')
    a(f's_mov_b32 {sMASK}, 0xffff0000')
    if OPT['stamps']:
        stamp_names[-1].append('start')
        a('v_writelane_b32 v1, s98, 0'); a('v_writelane_b32 v1, s96, 32')
        stamp(a, 'args')
    a(f's_lshl2_add_u32 {sN}, {sRB}, {sW}')
    a(f's_lshr_b32 {sT0}, s2, 4'); a(f's_lshl2_add_u32 {sN2}, {sT0}, {sW}')
    a(f's_lshl3_add_u32 {sPID}, {sT0}, {sG}')
    a(f's_and_b32 {sT1}, {sRB}, 1'); a(f's_lshl_b32 {sT2}, {sT1}, 8'); a(f's_add_u32 {sPID}, {sPID}, {sT2}')
    a(f's_lshr_b32 {sRB}, {sG}, 2'); a(f's_lshl4_add_u32 {sRB}, {sRB}, {sT0}')
    a(f's_and_b32 {sG}, {sG}, 3'); a(f's_lshl2_add_u32 {sROT}, {sT1}, {sG}'); a(f's_lshl1_add_u32 {sG}, {sG}, {sT1}')
    a(f's_lshl3_add_u32 {sL}, {sRB}, {sG}')
    a(f's_lshl2_add_u32 {sT2}, {sRB}, {sW}'); a(f's_lshl_b32 {sT2}, {sT2}, 14'); a(f's_lshl_b32 {sT3}, {sROT}, 11')
    a(f'v_lshlrev_b32 v{vT}, 4, v0'); a(f'v_lshlrev_b32 v{vL4}, 2, v0'); a(f'v_mov_b32 v{vONE}, 1')
    a(f's_mov_b32 {sGO}, 0')
    lnp, lj, lnh = a.newlabel('noprod'), a.newlabel('prodj'), a.newlabel('nohelp')
    a.wait_all()
    a(f's_cmp_lt_u32 {sPID}, 48')
    a.raw(f's_cbranch_scc0 {lnp}')
    phase_mod(a)
    a.raw(f's_branch {lj}')
    a.label(lnp)
    a.vm = []; a.lg = []
    a(f's_cmp_lt_u32 {sPID}, 256')
    a.raw(f's_cbranch_scc1 {lnh}')
    lane_fields(a, 2, [(0, 6, 6144)], 3)
    a(f's_and_b32 {sA}, s2, 7'); a(f's_lshl_b32 {sA}, {sA}, 7')
    for sh, nl, p0 in ((5, 16, 0), (4, 32, 2)):
        a(f's_lshr_b32 {sT1}, {sN2}, {sh}'); a(f's_and_b32 {sT0}, {sN2}, {(1 << sh) - 1}')
        a(f's_mul_i32 {sT0}, {sT0}, {nl*6144}'); a(f's_lshl_b32 {sT1}, {sT1}, 10'); a(f's_add_u32 {sT0}, {sT0}, {sT1}')
        a(f's_add_u32 {sT0}, {sT0}, {sA}')
        if p0: a(f's_add_u32 {sT0}, {sT0}, {1024*p0}')
        touch(a, 'WM', 2, nl, sT0)
    if OPT['xwait']: a.raw('s_waitcnt vmcnt(1)')
    a.label(lnh)
    a.vm = []
    clear_flags(a)
    for i in range(OPT['xd']):
        for t in x_load(i): a(t)
    a.label(lj)
    main_setup(a)
    ln1_stats(a); stamp(a, 'stats')
    ln1_apply(a)
    stamp(a, 'apply')
    phase_main(a)
    assert a.vm[-1][1] == ('p1', 1)
    red_operands(a)
    a._wait(vm=OPT['pre2'])
    for x in flag_loads('A'): a(x)
    wave_signal(a, ('p1', 1), 2, 8); stamp(a, 'p1done')
    l0, l1, l2 = (a.newlabel(x) for x in ('c0', 'c1', 'c1j'))
    pl = lambda c: [({('v', PL + 32 * c + 4 * g + r) for r in range(4)}, None) for g in range(8)]
    a(f's_mov_b32 {sT2}, 0')
    for q in range(8):
        a(f's_lshr_b32 s{sFV+q}, s{sFV+q}, 1'); a(f's_lshl1_add_u32 {sT2}, {sT2}, s{sFV+q}')
    a(f's_or_b32 {sT2}, {sT2}, {sOWN}')
    a(f's_cmp_lg_u32 {sLD}, 0')
    a.raw(f's_cbranch_scc1 {l0}')
    sspin(a, 'A', 1)
    for x in part_loads(0): a.raw(x)
    a.label(l0)
    a.vm += pl(0)
    a(f's_mov_b32 {sLD}, 0')
    a(f's_cmp_lg_u32 {sT2}, 0xff')
    a.raw(f's_cbranch_scc1 {l1}')
    for x in part_loads(1): a.raw(x)
    a.raw(f's_mov_b32 {sLD}, 1')
    a.label(l1)
    a.raw('s_barrier')
    for x in w1_reads(0): a(x)
    for b in range(2): a(f'v_add_u32 v{vTW1+b}, 0x10000, v{vTW1+b}')
    red_addr(a)
    stamp(a, 't_w1')
    l3, l4 = a.newlabel('w'), a.newlabel('wj')
    a(f's_cmp_lg_u32 {sLD}, 0'); a.raw(f's_cbranch_scc1 {l3}')
    a.raw('s_waitcnt vmcnt(0)'); a.label(l3); a.raw('s_waitcnt vmcnt(8)'); a.vm = []
    red_sum(a, 0); stamp(a, 't_sum0')
    for i in range(4):
        for x in w1_dma(1, i, sT1): a(x, ('w1', 1))
    a.wait_all(vm=False)
    a(f's_cmp_lg_u32 {sLD}, 0')
    a.raw(f's_cbranch_scc1 {l2}')
    sspin(a, 'A', 2)
    for x in part_loads(1): a.raw(x)
    a.label(l2)
    stamp(a, 'syncA')
    late_sum(a, pl(1)); stamp(a, 'sum')
    red_ln(a); stamp(a, 'red')
    for k in range(2):
        for x in w2_dma(k, sT1): a(x, ('w2', k))
    a.wait_tag(('w1', 1))
    signal(a, 'h2', 14, 0); stamp(a, 'h2done')
    rest = [2, 3, 8, 9][:OPT['w2b']]
    wv = Weave(a, [(x, ('w2', k)) for k in rest for x in w2_dma(k, sT1)], 4)
    for x in w1_reads(1): wv(x)
    wv.flush()
    W2_LEFT[:] = [k for k in range(4, 10) if k not in rest]
    flag_base(a, sWAIT)
    for x in flag_loads('B'): a(x)
    mlp_addr(a); g2_addr(a)
    for k in range(4):
        a.wait_tag(('w2', k))
        for x in w2_reads(k): a(x)
    stamp(a, 't_w2')
    l1, l2 = a.newlabel('nog1'), a.newlabel('nog1j')
    a(f's_cmp_ge_u32 {sRB}, 28')
    a.raw(f's_cbranch_scc1 {l1}')
    phase_g1(a)
    a.raw(f's_branch {l2}')
    a.label(l1)
    save = (list(a.vm), list(a.lg))
    a.raw('s_waitcnt lgkmcnt(0)'); a.raw('s_barrier')
    for k in W2_LEFT + [10, 11]:
        for x in w2_dma(k, sT1): a.raw(x)
    a.vm = []; a.lg = []
    a(f's_lshl2_add_u32 {sT0}, s2, {sW}'); a(f's_lshl_b32 {sT0}, {sT0}, 12'); a(f's_add_u32 s{sP+3}, {sT0}, {WS_DUMMY - 896*4096}')
    a(f's_add_u32 {sSIG}, s{sP+3}, 2048')
    flag_base(a, sWV)
    sspin(a, 'C', 1)
    g2_head(a)
    a.raw('s_waitcnt vmcnt(0)')
    a.vm, a.lg = save
    a.label(l2)
    stamp(a, 'h1done')
    phase_g2(a)
    stamp_flush(a); a.label('L_end'); a.raw('s_endpgm')
    a.label('L_code_end')
    slow_path(a)
    for l0, l1, kind, lvl in late_spins:
        a.label(l0); sspin(a, kind, lvl); a.raw(f's_branch {l1}')
    a.label('L_mod2')
    spin(a, 'DBG', '0', vL4, vPOLL, 2, 132, f'v{vT+1}')
    a.raw('s_branch L_mod2j')

def main(out):
    ref = open(f'cdna_kernels/{NAME}.s.ref').read().splitlines()
    head = [l for l in ref if l.startswith(';') and '@launch' not in l]
    name = NAME + '_kernel'
    a = Asm(); k_mega(a)
    print('nop states', a.nnop, 'lines', len(a.lines))
    s = '\n'.join(head) + '\n'
    s += f'; @launch grid=(256,1,1) block=(256,1,1) lds={LDS_BYTES}\n'
    s += '.amdgcn_target "amdgcn-amd-amdhsa--gfx950"\n.text\n'
    s += f'.globl {name}\n.p2align 8\n.type {name},@function\n{name}:\n' + a.text()
    s += f""".section .rodata,"a"
.p2align 6
.amdhsa_kernel {name}
  .amdhsa_next_free_vgpr 512
  .amdhsa_next_free_sgpr 102
  .amdhsa_accum_offset 256
  .amdhsa_group_segment_fixed_size 0
  .amdhsa_kernarg_size 104
  .amdhsa_user_sgpr_count 2
  .amdhsa_user_sgpr_kernarg_segment_ptr 1
  .amdhsa_system_sgpr_workgroup_id_x 1
.end_amdhsa_kernel
"""
    open(out, 'w').write(s)
    if OPT['stamps']:
        import json; json.dump(stamp_names, open(out + '.stamps', 'w'))

if __name__ == '__main__':
    for o in sys.argv[2:]:
        k, v = o.split('='); OPT[k] = v if k in ('probe', 'abl') else int(v)
    main(sys.argv[1] if len(sys.argv) > 1 else f'cdna_kernels/{NAME}.s')
```
